```python
import torch

def _softmax(x, axis=-1):
    return torch.softmax(x, dim=axis)
def _gelu(x):
    return torch.nn.functional.gelu(x, approximate="tanh")
def _silu(x):
    return torch.nn.functional.silu(x)
def _sigmoid(x):
    return torch.sigmoid(x)
def _layernorm(x, axis=-1, eps=1e-5):
    m = x.mean(dim=axis, keepdim=True)
    v = x.var(dim=axis, keepdim=True, unbiased=False)
    return (x - m) / torch.sqrt(v + eps)
def _scatter_add(tgt, idx, src, axis=0):
    return tgt.clone().index_add_(axis, idx, src)
def _segment_sum(src, seg, n):
    out = torch.zeros((n,) + src.shape[1:], dtype=src.dtype)
    return out.index_add_(0, seg, src)
def _pad(x, pw):
    flat = tuple(v for pair in reversed(pw) for v in pair)
    return torch.nn.functional.pad(x, flat)

kernel_name = 'concat_heads__linear_kernel_hedgehog__compressed_kv_cla__prompt'

def setup_inputs():

    _w = (lambda a: (lambda t: t.to(torch.bfloat16) if t.is_floating_point() else t)(torch.as_tensor(a)))
    def _A_setup():
        B, S, D, H = 1, 2048, 512, 32
        Dh = D // H
        return {
            "x": _w((lambda *s: torch.randn(*s, dtype=torch.bfloat16) * 0.4)(B, S, D)),
            "wqkv": _w((lambda *s: torch.randn(*s, dtype=torch.bfloat16) * 0.4)(D, 3 * D)),
            "w_phi": _w((lambda *s: torch.randn(*s, dtype=torch.bfloat16) * 0.4)(H, Dh, Dh) * (Dh ** -0.5)),
            "wo": _w((lambda *s: torch.randn(*s, dtype=torch.bfloat16) * 0.05)(D, D)),
        }
    _A_in = _A_setup()

    def _B_setup():
        B, H, Sq, Sk, D, M = 1, 32, 2048, 2048, 128, 512
        Dc = 4 * D
        return {
            "x": _w((lambda *s: torch.randn(*s, dtype=torch.bfloat16) * 0.8)(B, Sq, M)),
            "c_kv": _w((lambda *s: torch.randn(*s, dtype=torch.bfloat16) * 0.4)(B, Sk, Dc)),
            "w_q": _w((lambda *s: torch.randn(*s, dtype=torch.bfloat16) * 6.4)(M, H, D) * (M ** -0.5)),
            "w_uk": _w((lambda *s: torch.randn(*s, dtype=torch.bfloat16) * 6.4)(Dc, H, D) * (Dc ** -0.5)),
            "w_uv": _w((lambda *s: torch.randn(*s, dtype=torch.bfloat16) * 0.4)(Dc, H, D) * (Dc ** -0.5)),
            "w_o": _w((lambda *s: torch.randn(*s, dtype=torch.bfloat16) * 0.4)(H, D, M) * ((H * D) ** -0.5)),
        }
    _B_in = _B_setup()

    return {
        "A_x": _A_in["x"],
        "A_wqkv": _A_in["wqkv"],
        "A_w_phi": _A_in["w_phi"],
        "A_wo": _A_in["wo"],
        "B_x": _B_in["x"],
        "B_c_kv": _B_in["c_kv"],
        "B_w_q": _B_in["w_q"],
        "B_w_uk": _B_in["w_uk"],
        "B_w_uv": _B_in["w_uv"],
        "B_w_o": _B_in["w_o"],
    }

def reference(A_x, A_wqkv, A_w_phi, A_wo, B_x, B_c_kv, B_w_q, B_w_uk, B_w_uv, B_w_o):
    def _A_ref(x, wqkv, w_phi, wo):
        B, S, D = x.shape
        H = 32; Dh = D // H
        qkv = (lambda x, *d: x.permute(*d))((x @ wqkv).reshape(B, S, 3, H, Dh), 2, 0, 3, 1, 4)
        q, k, v = qkv[0], qkv[1], qkv[2]
        pq = torch.einsum("bhsd,hdf->bhsf", q, w_phi)
        pk = torch.einsum("bhsd,hdf->bhsf", k, w_phi)
        phi_q = torch.concatenate([_softmax(pq, axis=-1), _softmax(-pq, axis=-1)], axis=-1)
        phi_k = torch.concatenate([_softmax(pk, axis=-1), _softmax(-pk, axis=-1)], axis=-1)
        kv = torch.einsum("bhsf,bhsd->bhfd", phi_k, v)
        z  = torch.einsum("bhsf->bhf", phi_k)
        num = torch.einsum("bhqf,bhfd->bhqd", phi_q, kv)
        den = torch.einsum("bhqf,bhf->bhq", phi_q, z)[..., None] + 1e-6
        o = num / den
        return (lambda x, *d: x.permute(*d))(o, 0, 2, 1, 3).reshape(B, S, D) @ wo

    def _B_ref(x, c_kv, w_q, w_uk, w_uv, w_o):
        B, Sq, M = x.shape[0], x.shape[1], x.shape[2]
        Sk = c_kv.shape[1]
        H, D = w_q.shape[1], w_q.shape[2]
        q = torch.einsum("bqm,mhd->bhqd", x, w_q)
        k = torch.einsum("bkc,chd->bhkd", c_kv, w_uk)
        v = torch.einsum("bkc,chd->bhkd", c_kv, w_uv)
        scores = torch.einsum("bhqd,bhkd->bhqk", q, k) * (D ** -0.5)
        off = Sk - Sq
        qi = torch.arange(Sq)[:, None]
        kj = torch.arange(Sk)[None, :]
        cmask = kj <= (qi + off)
        scores = torch.where(cmask[None, None], scores, -1e9)
        p = _softmax(scores, axis=-1)
        ctx = torch.einsum("bhqk,bhkd->bhqd", p, v)
        return torch.einsum("bhqd,hdm->bqm", ctx, w_o)

    a = _A_ref(A_x, A_wqkv, A_w_phi, A_wo)
    b = _B_ref(B_x, B_c_kv, B_w_q, B_w_uk, B_w_uv, B_w_o)
    return torch.concatenate([a, b], axis=-1)
```

```python
class Asm:
    def __init__(self):
        self.launch = []
        self.body = []
        self.kds = []
        self.nlab = 0
    def __call__(self, s):
        for line in s.strip("\n").split("\n"):
            line = line.strip()
            if not line: continue
            if line.endswith(":"):
                self.body.append(line)
            else:
                self.body.append("    " + line)
    def lab(self, base="L"):
        self.nlab += 1
        return f"{base}_{self.nlab}"
    def kernel_begin(self, name, grid, block, lds):
        self.launch.append(f"; @launch kernel={name} grid=({grid},1,1) block=({block},1,1) lds={lds}")
        self.body.append(f".globl {name}")
        self.body.append(".p2align 8")
        self.body.append(f".type {name},@function")
        self.body.append(f"{name}:")
    def relaunch(self, name, grid, block, lds):
        self.launch.append(f"; @launch kernel={name} grid=({grid},1,1) block=({block},1,1) lds={lds}")
    def kernel_end(self, name, vgpr=256, accum=256, sgpr=102, denorm=3):
        self.kds.append(f""".p2align 6
.amdhsa_kernel {name}
  .amdhsa_next_free_vgpr {vgpr}
  .amdhsa_next_free_sgpr {sgpr}
  .amdhsa_accum_offset {accum}
  .amdhsa_group_segment_fixed_size 0
  .amdhsa_kernarg_size 104
  .amdhsa_user_sgpr_count 2
  .amdhsa_user_sgpr_kernarg_segment_ptr 1
  .amdhsa_system_sgpr_workgroup_id_x 1
  .amdhsa_float_denorm_mode_32 {denorm}
.end_amdhsa_kernel""")
    def text(self, header=""):
        out = []
        if header: out.append(header.rstrip("\n"))
        out += self.launch
        out.append('.amdgcn_target "amdgcn-amd-amdhsa--gfx950"')
        out.append(".text")
        out += self.body
        out.append('.section .rodata,"a"')
        out += self.kds
        return "\n".join(out) + "\n"

def srd(a, d, base, nbytes):
    a(f"s_mov_b32 s{d}, s{base}")
    a(f"s_and_b32 s{d+1}, s{base+1}, 0xffff")
    a(f"s_mov_b32 s{d+2}, {nbytes}")
    a(f"s_mov_b32 s{d+3}, 0x20000")
```

```python
import re, sys
REG = re.compile(r"^(-?)(abs\()?([vsa])(\d+)\)?$")
RNG = re.compile(r"^(-?)([vsa])\[(\d+):(\d+)\]$")
def regs(tok):
    tok = tok.strip()
    m = REG.match(tok)
    if m: return {(m.group(3), int(m.group(4)))}
    m = RNG.match(tok)
    if m: return {(m.group(2), i) for i in range(int(m.group(3)), int(m.group(4)) + 1)}
    if tok == "vcc": return {("s", "vcc")}
    if tok == "exec": return {("s", "exec")}
    if tok == "m0": return {("s", "m0")}
    return set()
TRANS = ("v_exp_f32", "v_log_f32", "v_rcp_f32", "v_rsq_f32", "v_sqrt_f32", "v_sin_f32", "v_cos_f32")
class I:
    def __init__(s, line, n):
        s.line = line; s.n = n
        t = line.split(";")[0].strip()
        parts = t.split(None, 1)
        s.op = parts[0]
        rest = parts[1] if len(parts) > 1 else ""
        rest = re.sub(r"\s+op_sel\S*", "", rest)
        ops = [x.strip() for x in rest.split(",")]
        if ops and ops[-1]:
            last = ops[-1].split()
            s.mods = last[1:]
            ops[-1] = last[0]
        else:
            s.mods = []
        s.ops = [o for o in ops if o]
        op = s.op
        s.w = set(); s.r = set(); s.kind = "other"; s.states = 1; s.passes = 0
        s.A = s.B = s.C = set(); s.target = None; s.fall = True; s.data = set()
        R = [regs(o) for o in s.ops]
        if op == "s_nop": s.states = int(s.ops[0], 0) + 1; s.kind = "nop"
        elif op.startswith("v_mfma"):
            s.kind = "mfma"; s.passes = 8 if "32x32" in op else 4
            s.w = R[0]; s.A, s.B, s.C = R[1], R[2], R[3]; s.r = s.A | s.B | s.C
        elif op.startswith("v_"):
            s.kind = "valu"
            if op.startswith("v_cmp"):
                s.w = R[0]; s.r = set().union(*R[1:])
            elif op.startswith("v_permlane") and "swap" in op:
                s.w = R[0] | R[1]; s.r = R[0] | R[1]
            elif op.startswith(("v_add_co", "v_sub_co", "v_addc_co")):
                s.w = R[0] | R[1]; s.r = set().union(*R[2:])
            else:
                s.w = R[0]; s.r = set().union(*R[1:]) if len(R) > 1 else set()
                if op.startswith(("v_fmac", "v_writelane")) or "dpp" in op: s.r |= R[0]
        elif op.startswith(("buffer_load", "global_load")):
            s.kind = "vload"
            if "lds" in s.mods or "lds" in op:
                s.r = set().union(*R) | {("s", "m0")}; s.dma = True
            else:
                s.w = R[0]; s.r = set().union(*R[1:])
                if "d16" in op: s.r |= R[0]
        elif op.startswith(("buffer_store", "buffer_atomic")):
            s.kind = "vstore"; s.r = set().union(*R); s.data = R[0]
            if op.startswith("buffer_atomic") and "sc0" in s.mods: s.w = R[0]
        elif op.startswith("global_store"):
            s.kind = "vstore"; s.r = set().union(*R); s.data = R[1]
        elif op.startswith("ds_read") or op.startswith(("ds_bpermute", "ds_swizzle", "ds_permute")):
            s.kind = "ds"; s.w = R[0]; s.r = set().union(*R[1:])
        elif op.startswith("ds_"):
            s.kind = "ds"; s.r = set().union(*R)
        elif op.startswith("s_cbranch"):
            s.kind = "br"; s.target = s.ops[0]
        elif op == "s_branch":
            s.kind = "br"; s.target = s.ops[0]; s.fall = False
        elif op == "s_endpgm":
            s.fall = False
        elif op.startswith("s_") and not op.startswith(("s_waitcnt", "s_barrier", "s_sleep", "s_setprio", "s_cmp", "s_bitcmp")):
            s.kind = "salu"
            if R: s.w = R[0]; s.r = set().union(*R[1:]) if len(R) > 1 else set()
            if "saveexec" in op: s.w = s.w | {("s", "exec")}
        s.wide = s.kind == "vstore" and ("x4" in op or "x3" in op)
        s.trans = op.split("_e")[0] in TRANS
def need(p, c):
    n = 0; why = ""
    def up(k, w):
        nonlocal n, why
        if k > n: n, why = k, w
    vw = {x for x in p.w if x[0] in "va"}
    sw = {x for x in p.w if x[0] == "s"}
    if p.kind == "valu":
        if c.kind == "mfma" and vw & c.r: up(2, "valu->mfma operand")
        if c.op.startswith("v_permlane") and vw & c.r: up(2, "valu->permlane")
        if "dpp" in c.op and vw & c.r: up(2, "valu->dpp")
        if c.op.startswith(("v_readfirstlane", "v_readlane")) and vw & c.r: up(1, "valu->readlane")
        if p.trans and c.kind == "valu" and not c.trans and vw & c.r: up(1, "trans->valu")
        if p.trans and c.kind in ("vstore", "ds", "vload") and vw & c.r: up(1, "trans->mem")
        if sw:
            cr = set(c.r)
            if c.op.startswith("v_cndmask") and len(c.ops) == 3: cr |= {("s", "vcc")}
            if c.kind == "valu" and sw & cr: up(4 if c.op.startswith(("v_readlane", "v_writelane")) else 2, "valu sgpr->valu")
            if c.kind in ("vload", "vstore") and sw & cr: up(5, "valu sgpr->vmem")
            if c.kind == "salu" and (sw & cr) - {("s", "vcc")}: up(1, "valu sgpr->salu (pad)")
    if p.kind == "mfma":
        big = p.passes == 8
        if c.kind == "mfma":
            if p.w & (c.A | c.B): up(12 if big else 8, "mfma D->A/B")
            if p.w & c.C and not (p.w == c.C and p.passes == c.passes): up(10 if big else 6, "mfma D->C overlap")
        elif c.kind == "valu":
            if p.w & (c.r | c.w): up(12 if big else 8, "mfma D->valu")
            if p.C & c.w: up(7 if big else 3, "mfma C WAR")
        elif c.kind in ("vload", "vstore", "ds"):
            if p.w & (c.r | c.w): up(12 if big else 8, "mfma D->mem")
    if p.kind == "salu" and ("s", "m0") in p.w and getattr(c, "dma", False): up(1, "m0->dma")
    if p.wide and p.data & c.w: up(2 if c.kind == "valu" else 1, "store data WAR")
    return n, why
def check(text):
    ins = []; labels = {}
    for ln, line in enumerate(text.split("\n"), 1):
        t = line.split(";")[0].strip()
        if not t or t.startswith("."): continue
        if t.endswith(":"): labels[t[:-1]] = len(ins); continue
        ins.append(I(t, ln))
    errs = []
    for i, p in enumerate(ins):
        if p.kind not in ("valu", "mfma", "salu", "vstore"): continue
        if p.kind == "salu" and ("s", "m0") not in p.w: continue
        if p.kind == "vstore" and not p.wide: continue
        lim = 12 if p.kind == "mfma" else 5
        stack = []
        def succ(k):
            out = []
            q = ins[k]
            if q.fall and k + 1 < len(ins): out.append(k + 1)
            if q.target is not None and q.target in labels and labels[q.target] < len(ins): out.append(labels[q.target])
            return out
        seen = {}
        stack = [(k, 0) for k in succ(i)]
        while stack:
            k, d = stack.pop()
            if d >= lim or seen.get(k, 99) <= d: continue
            seen[k] = d
            c = ins[k]
            n, why = need(p, c)
            if d < n: errs.append(f"line {p.n}: '{p.line}' -> line {c.n}: '{c.line}' has {d} states, needs {n} ({why})")
            for k2 in succ(k): stack.append((k2, d + c.states))
    return errs, len(ins)
if __name__ == "__main__":
    e, n = check(open(sys.argv[1]).read())
    for x in e: print(x)
    print(f"{n} instructions, {len(e)} hazards")
```

```python
import sys, struct, math
from agen import Asm
import hazard

NAME = "concat_heads__linear_kernel_hedgehog__compressed_kv_cla__prompt"
KF   = 0x0100000
VF   = 0x1200000
CTX  = 0x2400000
OAF  = 0x3500000
WOF  = 0x3800000
WOAF = 0x3D00000
KVP  = 0x3E00000
STAMP = 0xF000000
WS_BYTES = 0x10000000
SLOT = 32768
SCR = 4 * SLOT

def f32(x): return struct.unpack("<I", struct.pack("<f", x))[0]

CFG = dict(stamps=False, bias=0.0, thr=40.0, st_flags="sc1", ctx_flags="sc1", stop=None, spin=200000)

sW, sHEAD, sTB, sTBA, sHP = 3, 4, 5, 6, 7
R_C, R_WUK, R_WUV, R_WS, R_XA, R_WQKV, R_XB, R_WQ, R_WOB, R_WOA, R_PHI, R_DBG = [8 + 4 * i for i in range(12)]
sT0, sT1, sT2, sT3 = 56, 57, 58, 59
sDM = 60
sDMW = 61
sO0, sO1, sO2, sO3 = 62, 63, 64, 65
sST = 66
sCNT = 67
sG = 68
sREM = 69
sSLOT = 70
sRET = 71
sTHR = 72
sKO, sVO = 73, 74
sDST = 75
sTMAX = 76
sLD = 77
sA0, sA1, sA2, sA3 = 78, 79, 80, 81
sB0, sB1, sB2 = 82, 83, 84
sEX = 86
sSTAMP = 88
sSCL = 90
vLANE, vTOK = 0, 1
vW = [2 + i for i in range(8)]
vDTOK, vDW, vDWA, vST0, vST1 = 10, 11, 12, 13, 14
vT = [15 + i for i in range(9)]
vPHIQ = 24

def srd_s(r): return f"s[{r}:{r+3}]"
def vr(a, n): return f"v[{a}:{a+n-1}]" if n > 1 else f"v{a}"

class VM:
    def __init__(s): s.ops = []
    def add(s, tag): s.ops.append(tag)
    def n_after(s, tag):
        idx = max(i for i, t in enumerate(s.ops) if t == tag)
        return len(s.ops) - 1 - idx

def interleave(a, mf, fill, start=0, per=None):
    n = len(mf); m = len(fill)
    slots = [[] for _ in range(n)]
    for k, f in enumerate(fill):
        pos = start + (k * (n - start)) // max(m, 1) if per is None else min(n - 1, start + k // per)
        slots[min(pos, n - 1)].append(f)
    for x, s in zip(mf, slots):
        a(x)
        for f in s: a(f)

def mfma16(d, x, y, c=None):
    c = vr(d, 4) if c is None else c
    return f"v_mfma_f32_16x16x32_bf16 {vr(d,4)}, {vr(x,4)}, {vr(y,4)}, {c}"
def mfma32(d, x, y, c=None):
    c = vr(d, 16) if c is None else c
    return f"v_mfma_f32_32x32x16_bf16 {vr(d,16)}, {vr(x,4)}, {vr(y,4)}, {c}"

def stamp(a, idx, wave0_only=True):
    if not CFG["stamps"]: return
    a(f"s_memrealtime s[{sSTAMP}:{sSTAMP+1}]")
    a("s_waitcnt lgkmcnt(0)")
    a(f"v_mov_b32 v{vT[7]}, s{sSTAMP}")
    a(f"s_lshl_b32 s{sSTAMP}, s2, 3\ns_add_u32 s{sSTAMP}, s{sSTAMP}, s{sW}\ns_lshl_b32 s{sSTAMP}, s{sSTAMP}, 7\ns_add_u32 s{sSTAMP}, s{sSTAMP}, {STAMP + idx*4}")
    a(f"v_mov_b32 v{vT[8]}, 0")
    a(f"buffer_store_dword v{vT[7]}, v{vT[8]}, {srd_s(R_WS)}, s{sSTAMP} offen")
    if hasattr(a, "vm"): a.vm.add("stamp")

def dma(a, m0_expr_lines, voff, srd, soff, imm=0, tag=None):
    s = "\n".join(m0_expr_lines)
    s += f"\nbuffer_load_dwordx4 v{voff}, {srd_s(srd)}, s{soff} offen" + (f" offset:{imm}" if imm else "") + " lds"
    return s

def gen_KA(a):
    K = "ka_kernel"
    a.kernel_begin(K, 256, 512, 160 * 1024)
    a.vm = vm = VM()
    END = "ka_end"
    a(f"s_cmp_ge_u32 s2, 256\ns_cbranch_scc1 {END}")
    for r, off in ((R_XA, 0), (R_WQKV, 8), (R_PHI, 16), (R_WOA, 24), (R_XB, 32), (R_C, 40), (R_WQ, 48), (R_WUK, 56),
                   (R_WUV, 64), (R_WOB, 72), (R_DBG, 88), (R_WS, 96)):
        a(f"s_load_dwordx2 s[{r}:{r+1}], s[0:1], {off}")
    a(f"v_lshrrev_b32 v1, 6, v0\nv_and_b32 v0, 63, v0\nv_readfirstlane_b32 s{sW}, v1")
    for r, n in ((R_XA, 2 << 20), (R_WQKV, 512 * 3072), (R_PHI, 16384), (R_WOA, 512 * 1024), (R_XB, 2 << 20), (R_C, 2 << 20),
                 (R_WQ, 4 << 20), (R_WUK, 4 << 20), (R_WUV, 4 << 20), (R_WOB, 4 << 20), (R_DBG, 256), (R_WS, WS_BYTES)):
        a(f"s_mov_b32 s{r+2}, {n}\ns_mov_b32 s{r+3}, 0x20000")
    a(f"""s_and_b32 s{sT0}, s2, 7
    s_lshr_b32 s{sT1}, s2, 3
    s_and_b32 s{sT2}, s{sT1}, 3
    s_lshl_b32 s{sHEAD}, s{sT0}, 2
    s_add_u32 s{sHEAD}, s{sHEAD}, s{sT2}
    s_lshr_b32 s{sTB}, s2, 5
    s_and_b32 s{sT2}, s{sT1}, 1
    s_lshl_b32 s{sTBA}, s{sT0}, 1
    s_add_u32 s{sTBA}, s{sTBA}, s{sT2}
    s_lshr_b32 s{sHP}, s2, 4
    s_lshl_b32 s{sDM}, s{sW}, 11
    s_lshl_b32 s{sDMW}, s{sW}, 10
    s_add_u32 s{sDMW}, s{sDMW}, 16384""")
    t0, t1, t2, t3, t4 = vT[0], vT[1], vT[2], vT[3], vT[4]
    def emit_f(x, out, tmp):
        a(f"v_lshrrev_b32 v{tmp}, 1, v{x}\nv_xor_b32 v{out}, v{x}, v{tmp}\nv_and_b32 v{out}, 1, v{out}\nv_lshl_or_b32 v{out}, v{out}, 1, v{tmp}")
    a(f"v_lshrrev_b32 v{t0}, 4, v0")
    emit_f(t0, t1, t2)
    a(f"v_and_b32 v{t2}, 3, v0\nv_xor_b32 v{t1}, v{t1}, v{t2}\nv_lshlrev_b32 v{t1}, 4, v{t1}")
    a(f"v_lshrrev_b32 v{t2}, 2, v0\nv_lshl_or_b32 v{vDTOK}, v{t2}, 10, v{t1}")
    a(f"v_bfe_u32 v{t3}, v0, 2, 2")
    emit_f(t3, t1, t2)
    a(f"v_xor_b32 v{t1}, v{t1}, v{t0}\nv_lshlrev_b32 v{t1}, 4, v{t1}\nv_and_b32 v{t2}, 15, v0\nv_lshl_or_b32 v{vTOK}, v{t2}, 6, v{t1}")
    a(f"s_and_b32 s{sT0}, s{sW}, 2\ns_lshl_b32 s{sT0}, s{sT0}, 1\ns_lshl_b32 s{sT1}, s{sW}, 2")
    a(f"v_or_b32 v{t1}, s{sT0}, v{t0}\nv_lshlrev_b32 v{t1}, 1, v{t1}\nv_xor_b32 v{t1}, v{t1}, v{t2}")
    a(f"v_add_u32 v{t4}, s{sT1}, v{t0}")
    a(f"v_lshlrev_b32 v{vDW}, 13, v{t4}\nv_lshl_or_b32 v{vDW}, v{t1}, 4, v{vDW}")
    a(f"v_mul_u32_u24 v{vDWA}, 3072, v{t4}\nv_lshrrev_b32 v{t3}, 2, v{t1}\nv_lshl_add_u32 v{vDWA}, v{t3}, 10, v{vDWA}")
    a(f"v_and_b32 v{t4}, 3, v{t1}\nv_lshl_add_u32 v{vDWA}, v{t4}, 4, v{vDWA}")
    a(f"v_cmp_eq_u32 vcc, 3, v{t3}\nv_mov_b32 v{t4}, 0x40000000\ns_nop 0\nv_cndmask_b32 v{vDWA}, v{vDWA}, v{t4}, vcc")
    a(f"""s_lshl_b32 s{sO0}, s{sTB}, 8
    s_lshl_b32 s{sT0}, s{sW}, 5
    s_add_u32 s{sO0}, s{sO0}, s{sT0}
    s_lshl_b32 s{sO0}, s{sO0}, 10
    s_add_u32 s{sO1}, s{sO0}, 16384
    s_lshl_b32 s{sO2}, s{sHEAD}, 8""")
    a("s_waitcnt lgkmcnt(0)")
    stamp(a, 0)

    def m0set(base_s, const):
        return [f"s_add_u32 m0, s{base_s}, {const}"]
    def dma_p1(slot, slot_dyn=False):
        b = slot * SLOT
        out = [dma(a, m0set(sDM, b) + ["s_nop 0"], vDTOK, R_C, sO0),
               dma(a, m0set(sDM, b + 1024) + [f"s_add_u32 s{sO0}, s{sO0}, 64"], vDTOK, R_C, sO1),
               dma(a, m0set(sDMW, b) + [f"s_add_u32 s{sO1}, s{sO1}, 64"], vDW, R_WUK, sO2),
               dma(a, m0set(sDMW, b + 8192) + ["s_nop 0"], vDW, R_WUV, sO2) + f"\ns_add_u32 s{sO2}, s{sO2}, {32*8192}"]
        return out
    def dma_a1(slot):
        b = slot * SLOT
        return [dma(a, m0set(sDM, b) + [f"s_add_u32 s{sA1}, s{sA0}, 64"], vDTOK, R_XA, sA0),
                dma(a, m0set(sDM, b + 1024) + [f"s_add_u32 s{sA0}, s{sA0}, 128"], vDTOK, R_XA, sA1),
                dma(a, m0set(sDMW, b) + [f"s_add_u32 s{sA3}, s{sA2}, {32*3072}"], vDWA, R_WQKV, sA2),
                dma(a, m0set(sDMW, b + 8192) + [f"s_add_u32 s{sA2}, s{sA2}, {64*3072}"], vDWA, R_WQKV, sA3)]
    def dma_p2(slot):
        b = slot * SLOT
        return [dma(a, m0set(sDM, b) + ["s_nop 0"], vDTOK, R_XB, sB0),
                dma(a, m0set(sDM, b + 1024) + [f"s_add_u32 s{sB0}, s{sB0}, 64"], vDTOK, R_XB, sB1),
                dma(a, m0set(sDMW, b) + [f"s_add_u32 s{sB1}, s{sB1}, 64"], vDW, R_WQ, sB2) + f"\ns_add_u32 s{sB2}, s{sB2}, {32*8192}"]
    def dma_cv(slot):
        b = slot * SLOT
        t0, t1 = vT[5], vT[6]
        pre = f"""v_and_b32 v{t0}, 0xff, v{vDW}
        v_lshrrev_b32 v{t1}, 13, v{vDW}
        v_lshl_or_b32 v{t0}, v{t1}, 10, v{t0}
        s_lshr_b32 s{sT0}, s2, 1
        s_lshl_b32 s{sT0}, s{sT0}, 15
        s_and_b32 s{sT1}, s2, 1
        s_lshl_b32 s{sT1}, s{sT1}, 9
        s_add_u32 s{sT0}, s{sT0}, s{sT1}
        s_add_u32 s{sT1}, s{sT0}, 256
        v_lshrrev_b32 v{t1}, 2, v0
        v_lshlrev_b32 v{t1}, 10, v{t1}
        v_and_b32 v{vT[4]}, 3, v0
        v_lshl_or_b32 v{t1}, v{vT[4]}, 4, v{t1}
        s_lshr_b32 s{sT2}, s2, 4
        s_lshl_b32 s{sT2}, s{sT2}, 1
        s_add_u32 s{sT2}, s{sT2}, s{sW}
        s_lshl_b32 s{sT2}, s{sT2}, 14
        s_and_b32 s{sT3}, s2, 15
        s_lshl_b32 s{sT3}, s{sT3}, 6
        s_add_u32 s{sT2}, s{sT2}, s{sT3}
        s_cmp_lt_u32 s{sW}, 2
        s_cselect_b32 s{sT2}, s{sT2}, 0x40000000"""
        return [pre + "\n" + dma(a, m0set(sDMW, b) + ["s_nop 0"], t0, R_WOB, sT0),
                dma(a, m0set(sDMW, b + 8192) + ["s_nop 0"], t0, R_WOB, sT1),
                dma(a, m0set(sDM, b) + ["s_nop 0"], t1, R_WOA, sT2)]
    NP1, NA1, NCV, NP2 = 16, 8, 1, 16
    G_A1 = NP1; G_CV = G_A1 + NA1; G_P2 = G_CV + NCV; G_END = G_P2 + NP2
    def dma_stage(t):
        if t >= G_END: return []
        fn = dma_p1 if t < G_A1 else dma_a1 if t < G_CV else dma_cv if t < G_P2 else dma_p2
        out = fn(t % 4)
        for _ in out: vm.add(("dma", t))
        return out
    def sync(t):
        if t < G_END:
            a(f"s_waitcnt vmcnt({vm.n_after(('dma', t))}) lgkmcnt(0)")
        else:
            a("s_waitcnt lgkmcnt(0)")
        a("s_barrier")

    for t in range(3):
        for f in dma_stage(t): a(f)
    a(f"""s_lshl_b32 s{sA0}, s{sTBA}, 7
    s_lshl_b32 s{sT0}, s{sW}, 4
    s_add_u32 s{sA0}, s{sA0}, s{sT0}
    s_lshl_b32 s{sA0}, s{sA0}, 10
    s_lshl_b32 s{sA2}, s{sHP}, 6
    s_lshl_b32 s{sT0}, s{sTB}, 2
    s_add_u32 s{sT1}, s{sT0}, s{sW}
    s_sub_u32 s{sG}, 63, s{sT1}
    s_sub_u32 s{sT1}, s{sT1}, 4
    s_cmp_lt_u32 s{sW}, 4
    s_cselect_b32 s{sG}, s{sG}, s{sT1}
    s_lshl_b32 s{sB0}, s{sG}, 15
    s_add_u32 s{sB1}, s{sB0}, 16384
    s_lshl_b32 s{sB2}, s{sHEAD}, 8""")
    def w_base(out):
        a(f"""v_lshrrev_b32 v{t0}, 4, v0
        v_bfe_u32 v{t1}, v0, 2, 2
        v_lshl_add_u32 v{t2}, v{t0}, 3, v{t1}
        v_lshlrev_b32 v{out}, 8, v{t2}
        v_and_b32 v{t2}, 1, v{t0}
        v_lshl_or_b32 v{t2}, v{t2}, 2, v{t1}
        v_lshl_or_b32 v{out}, v{t2}, 5, v{out}
        v_and_b32 v{t2}, 3, v0
        v_lshl_or_b32 v{out}, v{t2}, 3, v{out}""")
    w_base(t3)
    a(f"""s_lshr_b32 s{sT0}, s{sW}, 2
    s_lshl_b32 s{sT0}, s{sT0}, 13
    s_add_u32 s{sT0}, s{sT0}, 16384
    s_and_b32 s{sT1}, s{sW}, 2
    s_lshl_b32 s{sT1}, s{sT1}, 6
    s_or_b32 s{sT0}, s{sT0}, s{sT1}""")
    a(f"v_xor_b32 v{vW[0]}, s{sT0}, v{t3}")
    for b in range(1, 4): a(f"v_xor_b32 v{vW[b]}, {b*32}, v{vW[0]}")
    a(f"s_and_b32 s{sT0}, s{sW}, 1\ns_lshl_b32 s{sT0}, s{sT0}, 13\nv_add_u32 v{vTOK}, s{sT0}, v{vTOK}")
    KW, VW_, ST_D = "p1_kw", "p1_vw", "p1_stdone"
    ACC = 128
    SETS = (32, 80)
    def p1_reads(t):
        s = SETS[t % 2]; o = (t & 1) * SLOT
        r = []
        for b in range(4):
            r.append(f"ds_read_b64_tr_b16 {vr(s+4*b,2)}, v{vW[b]} offset:{o}")
            r.append(f"ds_read_b64_tr_b16 {vr(s+4*b+2,2)}, v{vW[b]} offset:{o+1024}")
        for T in range(8):
            r.append(f"ds_read_b128 {vr(s+16+4*T,4)}, v{vTOK} offset:{o+T*1024}")
        return r
    def toggle(regs): return [f"v_xor_b32 v{r}, 0x10000, v{r}" for r in regs]
    def p1_acc(role, n, T):
        if role == 0: s = (T // 2) * 4 + (T & 1) + 2 * (n // 2); return ACC + 8 * s + 4 * (n & 1)
        else: s = (T // 2) * 4 + n; return ACC + 8 * s + 4 * (T & 1)
    def p1_mfmas(role, t, first=False):
        s = SETS[t % 2]; out = []
        for T in range(8):
            for n in range(4):
                w, k = s + 4 * n, s + 16 + 4 * T
                d = p1_acc(role, n, T)
                out.append(mfma16(d, w, k, "0" if first else None) if role == 0 else mfma16(d, k, w, "0" if first else None))
        return out
    saved_ops = None
    sync(0)
    for f in dma_stage(3): a(f)
    for f in p1_reads(0): a(f)
    a(f"s_cmp_ge_u32 s{sW}, 4\ns_cbranch_scc1 {VW_}")
    base_ops = list(vm.ops)
    for role in (0, 1):
        vm.ops = list(base_ops)
        if role == 1: a(f"{VW_}:")
        def stage(t, dyn=False):
            sync(t + 1)
            fill = []
            if t & 1: fill.append("\n".join(toggle([vTOK] + vW[:4])))
            d = dma_stage(t + 4)
            rd = p1_reads(t + 1) if t + 1 < NP1 else []
            fl = fill + rd[:4] + d[:1] + rd[4:8] + d[1:2] + rd[8:12] + d[2:3] + rd[12:] + d[3:]
            interleave(a, p1_mfmas(role, t, first=(t == 0)), fl)
        stage(0); stage(1)
        L = f"p1_loop{role}"
        a(f"s_mov_b32 s{sCNT}, 0\ns_xor_b32 s{sDM}, s{sDM}, 0x10000\ns_xor_b32 s{sDMW}, s{sDMW}, 0x10000")
        a(f"{L}:")
        mark = len(a.body)
        for t in (2, 3):
            sync(t + 1)
            fill = []
            if t & 1: fill.append("\n".join(toggle([vTOK] + vW[:4])))
            d = dma_p1(t % 2)
            for _ in d: vm.add(("dma", t + 4))
            rd = p1_reads(t + 1)
            fl = fill + rd[:4] + d[:1] + rd[4:8] + d[1:2] + rd[8:12] + d[2:3] + rd[12:] + d[3:]
            if t == 3: fl.append(f"s_xor_b32 s{sDM}, s{sDM}, 0x10000\ns_xor_b32 s{sDMW}, s{sDMW}, 0x10000\ns_add_u32 s{sCNT}, s{sCNT}, 1\ns_cmp_lt_u32 s{sCNT}, 5")
            interleave(a, p1_mfmas(role, t), fl)
        a(f"s_cbranch_scc1 {L}")
        for t in range(8, 16):
            for _ in range(4): vm.add(("dma", t))
        for t in range(12, 16): stage(t)
        a("s_nop 7")
        for m in range(63, -1, -1):
            a(f"v_cvt_pk_bf16_f32 v{192+m}, v{ACC+2*m}, v{ACC+2*m+1}")
        a(f"v_lshrrev_b32 v{t0}, 4, v0\nv_and_b32 v{t1}, 1, v{t0}\nv_lshrrev_b32 v{t0}, 1, v{t0}")
        if role == 0:
            a(f"""v_lshlrev_b32 v{vST0}, 10, v{t1}
            v_lshl_or_b32 v{vST0}, v{t0}, 9, v{vST0}
            v_bfe_u32 v{t2}, v0, 3, 1
            v_lshl_or_b32 v{vST0}, v{t2}, 8, v{vST0}
            v_and_b32 v{t2}, 7, v0
            v_lshl_or_b32 v{vST0}, v{t2}, 4, v{vST0}
            v_add_u32 v{vST1}, 128, v{vST0}
            s_mov_b32 s{sST}, {KF}""")
        else:
            a(f"""v_lshlrev_b32 v{vST0}, 10, v{t0}
            v_lshl_or_b32 v{vST0}, v{t1}, 9, v{vST0}
            v_and_b32 v{t2}, 15, v0
            v_lshl_or_b32 v{vST0}, v{t2}, 4, v{vST0}
            v_add_u32 v{vST1}, 256, v{vST0}
            s_mov_b32 s{sST}, {VF}""")
        if role == 0: a(f"s_branch {ST_D}")
    a(f"{ST_D}:")
    a(f"""s_lshl_b32 s{sT0}, s{sHEAD}, 6
    s_lshl_b32 s{sT1}, s{sTB}, 3
    s_add_u32 s{sT0}, s{sT0}, s{sT1}
    s_and_b32 s{sT1}, s{sW}, 1
    s_lshl_b32 s{sT1}, s{sT1}, 2
    s_add_u32 s{sT0}, s{sT0}, s{sT1}
    s_lshl_b32 s{sT0}, s{sT0}, 13
    s_add_u32 s{sST}, s{sST}, s{sT0}
    s_and_b32 s{sT1}, s{sW}, 2
    s_lshl_b32 s{sT1}, s{sT1}, 11
    s_add_u32 s{sST}, s{sST}, s{sT1}""")
    stamp(a, 1)
    st_next = [0]
    def kv_store():
        s = st_next[0]
        if s >= 16: return []
        st_next[0] += 1
        vm.add("kvst")
        x = f"buffer_store_dwordx4 {vr(192+4*s,4)}, v{vST1 if s & 1 else vST0}, {srd_s(R_WS)}, s{sST} offen offset:{(s>>1&1)*2048} {CFG['st_flags']}"
        if s % 4 == 3: x += f"\ns_add_u32 s{sST}, s{sST}, 8192"
        return [x]

    a(f"s_and_b32 s{sT0}, s{sW}, 1\ns_lshl_b32 s{sT0}, s{sT0}, 13\nv_subrev_u32 v{vTOK}, s{sT0}, v{vTOK}")
    a(f"s_and_b32 s{sT0}, s{sW}, 3\ns_lshl_b32 s{sT0}, s{sT0}, 12\nv_add_u32 v{vTOK}, s{sT0}, v{vTOK}")
    w_base(t3)
    a(f"s_lshr_b32 s{sT0}, s{sW}, 2\ns_lshl_b32 s{sT0}, s{sT0}, 5\ns_or_b32 s{sT0}, s{sT0}, 16384")
    a(f"v_xor_b32 v{vW[0]}, s{sT0}, v{t3}\nv_xor_b32 v{vW[1]}, 64, v{vW[0]}\nv_xor_b32 v{vW[2]}, 128, v{vW[0]}")
    def a1_reads(t):
        s = SETS[t % 2]; o = (t & 1) * SLOT; r = []
        for u in range(2):
            b = s + 20 * u
            for T in range(2):
                r.append(f"ds_read_b128 {vr(b+12+4*T,4)}, v{vTOK} offset:{o+T*2048+u*1024}")
            for m in range(3):
                r.append(f"ds_read_b64_tr_b16 {vr(b+4*m,2)}, v{vW[m]} offset:{o+u*8192}")
                r.append(f"ds_read_b64_tr_b16 {vr(b+4*m+2,2)}, v{vW[m]} offset:{o+u*8192+1024}")
        return r
    AQ, AK, AV = 128, 136, 144
    def a1_mfmas(t, first):
        s = SETS[t % 2]; out = []
        for u in range(2):
            b = s + 20 * u
            c = "0" if (first and u == 0) else None
            for T in range(2):
                x = b + 12 + 4 * T
                out += [mfma16(AQ + 4 * T, b, x, c), mfma16(AK + 4 * T, b + 4, x, c), mfma16(AV + 4 * T, x, b + 8, c)]
        return out
    for f in a1_reads(G_A1): a(f)
    vPH = 152
    a(f"""s_lshl_b32 s{sT0}, s{sHP}, 1
    s_lshr_b32 s{sT1}, s{sW}, 2
    s_add_u32 s{sT0}, s{sT0}, s{sT1}
    s_lshl_b32 s{sT0}, s{sT0}, 9
    v_lshrrev_b32 v{t0}, 4, v0
    v_and_b32 v{t1}, 15, v0
    v_lshlrev_b32 v{t1}, 1, v{t1}
    v_lshl_or_b32 v{t0}, v{t0}, 7, v{t1}
    buffer_load_ushort v{vPH}, v{t0}, {srd_s(R_PHI)}, s{sT0} offen
    buffer_load_ushort v{vPH+1}, v{t0}, {srd_s(R_PHI)}, s{sT0} offen offset:64
    buffer_load_ushort v{vPH+2}, v{t0}, {srd_s(R_PHI)}, s{sT0} offen offset:32
    buffer_load_ushort v{vPH+3}, v{t0}, {srd_s(R_PHI)}, s{sT0} offen offset:96""")
    for _ in range(4): vm.add("phi")
    for t in range(G_A1, G_A1 + NA1):
        sync(t + 1)
        fill = []
        if t & 1: fill.append("\n".join(toggle([vTOK] + vW[:3])))
        d = dma_stage(t + 4)
        rd = a1_reads(t + 1) if t + 1 < G_A1 + NA1 else []
        st = kv_store()
        fl = fill + rd[:8] + d[:2] + rd[8:] + d[2:] + st
        interleave(a, a1_mfmas(t, t == G_A1), fl)
    stamp(a, 2)
    L2E = f32(math.log2(math.e))
    a(f"s_mov_b32 s{sSCL}, {L2E}")
    a(f"s_waitcnt vmcnt({vm.n_after('phi')})")
    a(f"v_lshl_or_b32 v{vPH}, v{vPH+2}, 16, v{vPH}\nv_lshl_or_b32 v{vPH+1}, v{vPH+3}, 16, v{vPH+1}")
    a("s_nop 4")
    B = 32
    QB, KB_, VB = B, B + 4, B + 8
    for T in range(2):
        for j in range(2):
            a(f"v_cvt_pk_bf16_f32 v{QB+2*T+j}, v{AQ+4*T+2*j}, v{AQ+4*T+2*j+1}")
            a(f"v_cvt_pk_bf16_f32 v{KB_+2*T+j}, v{AK+4*T+2*j}, v{AK+4*T+2*j+1}")
            a(f"v_cvt_pk_bf16_f32 v{VB+2*T+j}, v{AV+4*T+2*j}, v{AV+4*T+2*j+1}")
    PP = B + 12
    a("s_nop 1")
    for i in range(4):
        a(f"v_mfma_f32_16x16x16_bf16 {vr(PP+4*i,4)}, {vr(vPH,2)}, {vr(QB+2*i,2)}, 0")
    SEL = B + 28
    ONES = B + 36
    a(f"v_lshrrev_b32 v{t0}, 4, v0\nv_lshlrev_b32 v{t0}, 2, v{t0}\nv_and_b32 v{t1}, 15, v0\nv_sub_u32 v{t0}, v{t1}, v{t0}")
    a(f"v_mov_b32 v{t1}, 0x3f80\nv_mov_b32 v{t2}, 0x3f800000")
    for j in range(2):
        a(f"v_cmp_eq_u32 vcc, {2*j}, v{t0}\ns_nop 1\nv_cndmask_b32 v{SEL+j}, 0, v{t1}, vcc")
        a(f"v_cmp_eq_u32 vcc, {2*j+1}, v{t0}\ns_nop 1\nv_cndmask_b32 v{SEL+j}, v{SEL+j}, v{t2}, vcc")
    a(f"v_mov_b32 v{SEL+2}, 0\nv_mov_b32 v{SEL+3}, 0\nv_mov_b32 v{SEL+4}, 0\nv_mov_b32 v{SEL+5}, 0\nv_mov_b32 v{SEL+6}, v{SEL}\nv_mov_b32 v{SEL+7}, v{SEL+1}")
    for j in range(4): a(f"v_mov_b32 v{ONES+j}, 0x3f803f80")
    MX = B + 40
    TM = B + 48
    EX = B + 56
    for i in range(4):
        p = PP + 4 * i
        a(f"v_max3_f32 v{MX+2*i}, v{p}, v{p+1}, v{p+2}\nv_min3_f32 v{MX+2*i+1}, v{p}, v{p+1}, v{p+2}")
        a(f"v_max_f32 v{MX+2*i}, v{MX+2*i}, v{p+3}\nv_min_f32 v{MX+2*i+1}, v{MX+2*i+1}, v{p+3}")
    def xreduce(base, n, ops):
        for sw in ("v_permlane32_swap_b32", "v_permlane16_swap_b32"):
            for i in range(n): a(f"v_mov_b32 v{TM+i}, v{base+i}")
            a("s_nop 1")
            for i in range(n): a(f"{sw} v{base+i}, v{TM+i}")
            a("s_nop 1")
            for i in range(n): a(f"{ops[i]} v{base+i}, v{base+i}, v{TM+i}")
    xreduce(MX, 8, ["v_max_f32", "v_min_f32"] * 4)
    for i in range(4):
        p = PP + 4 * i
        for r in range(4):
            a(f"v_sub_f32 v{EX+8*i+r}, v{p+r}, v{MX+2*i}\nv_sub_f32 v{EX+8*i+4+r}, v{MX+2*i+1}, v{p+r}")
    for r in range(32): a(f"v_mul_f32 v{EX+r}, s{sSCL}, v{EX+r}")
    for r in range(32): a(f"v_exp_f32 v{EX+r}, v{EX+r}")
    for i in range(8):
        e = EX + 4 * i
        a(f"v_add_f32 v{MX+i}, v{e}, v{e+1}\nv_add_f32 v{TM+i}, v{e+2}, v{e+3}")
    for i in range(8): a(f"v_add_f32 v{MX+i}, v{MX+i}, v{TM+i}")
    xreduce(MX, 8, ["v_add_f32"] * 8)
    for i in range(8): a(f"v_rcp_f32 v{MX+i}, v{MX+i}")
    for i in range(8):
        for r in range(4): a(f"v_mul_f32 v{EX+4*i+r}, v{EX+4*i+r}, v{MX+i}")
    PHK = B + 12
    for T in range(2):
        for j in range(4):
            a(f"v_cvt_pk_bf16_f32 v{vPHIQ+4*T+j}, v{EX+8*T+2*j}, v{EX+8*T+2*j+1}")
            a(f"v_cvt_pk_bf16_f32 v{PHK+4*T+j}, v{EX+16+8*T+2*j}, v{EX+16+8*T+2*j+1}")
    a("s_nop 1")
    TR = EX
    for sg in range(2):
        for T in range(2):
            a(mfma16(TR + 8 * sg + 4 * T, PHK + 4 * T, SEL + 4 * sg, "0"))
    a("s_nop 7")
    PKT = EX + 16
    for sg in range(2):
        for j in range(4):
            a(f"v_cvt_pk_bf16_f32 v{PKT+4*sg+j}, v{TR+8*sg+2*j}, v{TR+8*sg+2*j+1}")
    a("s_nop 1")
    KVZ = 128
    for sg in range(2):
        a(mfma16(KVZ + 4 * sg, PKT + 4 * sg, VB, "0"))
        a(mfma16(KVZ + 8 + 4 * sg, PKT + 4 * sg, ONES, "0"))
    a(f"s_lshl_b32 s{sT0}, s{sW}, 12\ns_add_u32 s{sT0}, s{sT0}, {SCR}\nv_lshlrev_b32 v{t0}, 4, v0\nv_add_u32 v{t1}, s{sT0}, v{t0}")
    a("s_nop 7")
    for qd in range(4): a(f"ds_write_b128 v{t1}, {vr(KVZ+4*qd,4)} offset:{qd*1024}")
    o = (G_CV & 1) * SLOT + ((G_CV >> 1) & 1) * 0x10000
    CA = 144
    a(f"""v_lshrrev_b32 v{t2}, 5, v0
    v_lshlrev_b32 v{t2}, 4, v{t2}
    v_bfe_u32 v{t3}, v0, 4, 1
    v_lshl_or_b32 v{t2}, v{t3}, 2, v{t2}
    v_bfe_u32 v{t3}, v0, 2, 2
    v_or_b32 v{t2}, v{t2}, v{t3}
    v_lshlrev_b32 v{t2}, 8, v{t2}
    v_lshlrev_b32 v{t3}, 1, v{t3}
    v_and_b32 v{t4}, 3, v0
    v_xor_b32 v{t3}, v{t3}, v{t4}
    s_and_b32 s{sT0}, s{sW}, 3
    s_lshl_b32 s{sT0}, s{sT0}, 2
    v_xor_b32 v{t3}, s{sT0}, v{t3}
    v_lshl_or_b32 v{t2}, v{t3}, 4, v{t2}
    s_lshr_b32 s{sT0}, s{sW}, 2
    s_lshl_b32 s{sT0}, s{sT0}, 13
    s_add_u32 s{sT0}, s{sT0}, {o + 16384}
    v_add_u32 v{t2}, s{sT0}, v{t2}
    v_xor_b32 v{t3}, 128, v{t2}""")
    for e in range(2):
        a(f"ds_read_b64_tr_b16 {vr(CA+4*e,2)}, v{t2} offset:{8*e}")
        a(f"ds_read_b64_tr_b16 {vr(CA+4*e+2,2)}, v{t3} offset:{2048+8*e}")
    a(f"""v_lshrrev_b32 v{t2}, 2, v0
    v_lshlrev_b32 v{t2}, 6, v{t2}
    v_lshl_or_b32 v{t2}, v{t4}, 4, v{t2}
    s_and_b32 s{sT0}, s{sW}, 1
    s_lshl_b32 s{sT0}, s{sT0}, 3
    s_add_u32 s{sT0}, s{sT0}, {o}
    v_add_u32 v{t2}, s{sT0}, v{t2}
    ds_read_b64_tr_b16 {vr(CA+8,2)}, v{t2}
    ds_read_b64_tr_b16 {vr(CA+10,2)}, v{t2} offset:2048""")
    a(f"""s_and_b32 s{sT0}, s2, 1
    s_lshl_b32 s{sT0}, s{sT0}, 3
    s_add_u32 s{sT0}, s{sT0}, s{sW}
    s_lshl_b32 s{sT0}, s{sT0}, 8
    s_lshr_b32 s{sT1}, s2, 1
    s_add_u32 s{sT0}, s{sT0}, s{sT1}
    s_lshl_b32 s{sT0}, s{sT0}, 10
    s_add_u32 s{sT0}, s{sT0}, {WOF}
    s_add_u32 s{sT1}, s{sT0}, {128*1024}
    s_and_b32 s{sT2}, s2, 15
    s_lshl_b32 s{sT2}, s{sT2}, 1
    s_add_u32 s{sT2}, s{sT2}, s{sW}
    s_lshl_b32 s{sT2}, s{sT2}, 4
    s_lshr_b32 s{sT3}, s2, 4
    s_add_u32 s{sT2}, s{sT2}, s{sT3}
    s_lshl_b32 s{sT2}, s{sT2}, 10
    s_add_u32 s{sT2}, s{sT2}, {WOAF}
    s_cmp_lt_u32 s{sW}, 2
    s_cselect_b32 s{sT2}, s{sT2}, 0x40000000""")
    a("s_waitcnt lgkmcnt(0)")
    a(f"buffer_store_dwordx4 {vr(CA,4)}, v{t0}, {srd_s(R_WS)}, s{sT0} offen")
    a(f"buffer_store_dwordx4 {vr(CA+4,4)}, v{t0}, {srd_s(R_WS)}, s{sT1} offen")
    a(f"buffer_store_dwordx4 {vr(CA+8,4)}, v{t0}, {srd_s(R_WS)}, s{sT2} offen")
    for _ in range(3): vm.add("cvst")
    sync(G_CV + 1)
    for f in dma_stage(G_CV + 4): a(f)
    a(f"""s_lshr_b32 s{sT0}, s{sW}, 2
    s_lshl_b32 s{sT0}, s{sT0}, 14
    s_and_b32 s{sT1}, s{sW}, 3
    s_lshl_b32 s{sT1}, s{sT1}, 10
    s_add_u32 s{sT0}, s{sT0}, s{sT1}
    s_add_u32 s{sT0}, s{sT0}, {SCR}
    v_add_u32 v{t1}, s{sT0}, v{t0}""")
    for i in range(4): a(f"ds_read_b128 {vr(KVZ+4*i,4)}, v{t1} offset:{i*4096}")
    a(f"""s_lshl_b32 s{sT0}, s{sHP}, 1
    s_lshr_b32 s{sT2}, s{sW}, 2
    s_add_u32 s{sT0}, s{sT0}, s{sT2}
    s_lshl_b32 s{sT0}, s{sT0}, 4
    s_add_u32 s{sT0}, s{sT0}, s{sTBA}
    s_lshl_b32 s{sT0}, s{sT0}, 12
    s_add_u32 s{sT0}, s{sT0}, s{sT1}
    s_add_u32 s{sT0}, s{sT0}, {KVP}""")
    a("s_waitcnt lgkmcnt(0)")
    for r in range(4):
        a(f"v_add_f32 v{KVZ+r}, v{KVZ+r}, v{KVZ+4+r}\nv_add_f32 v{KVZ+8+r}, v{KVZ+8+r}, v{KVZ+12+r}")
    for r in range(4): a(f"v_add_f32 v{CA+12+r}, v{KVZ+r}, v{KVZ+8+r}")
    a(f"buffer_store_dwordx4 {vr(CA+12,4)}, v{t0}, {srd_s(R_WS)}, s{sT0} offen sc1")
    vm.add("kvst")
    stamp(a, 3)

    b16 = ((G_P2 >> 1) & 1) * 0x10000
    a(f"v_and_b32 v{vTOK}, 0x3ff, v{vTOK}\ns_lshl_b32 s{sT0}, s{sW}, 11\ns_add_u32 s{sT0}, s{sT0}, {b16}\nv_add_u32 v{vTOK}, s{sT0}, v{vTOK}")
    w_base(t3)
    a(f"v_add_u32 v{vW[0]}, {16384 + b16}, v{t3}")
    for b in range(1, 8): a(f"v_xor_b32 v{vW[b]}, {b*32}, v{vW[0]}")
    def p2_reads(t):
        s = SETS[t % 2]; o = (t & 1) * SLOT; r = []
        for T in range(2): r.append(f"ds_read_b128 {vr(s+32+4*T,4)}, v{vTOK} offset:{o+T*1024}")
        for n in range(8):
            r.append(f"ds_read_b64_tr_b16 {vr(s+4*n,2)}, v{vW[n]} offset:{o}")
            r.append(f"ds_read_b64_tr_b16 {vr(s+4*n+2,2)}, v{vW[n]} offset:{o+1024}")
        return r
    def p2_acc(n, T): return 128 + 16 * (n // 2) + 8 * T + 4 * (n & 1)
    def p2_mfmas(t, first):
        s = SETS[t % 2]
        return [mfma16(p2_acc(n, T), s + 4 * n, s + 32 + 4 * T, "0" if first else None) for n in range(8) for T in range(2)]
    a("s_nop 1")
    for f in p2_reads(G_P2): a(f)
    published = False
    for t in range(G_P2, G_END):
        if st_next[0] >= 16 and not published and (t + 1 >= G_END or vm.n_after(("dma", t + 1)) <= vm.n_after("kvst")):
            pub_now = True
        else: pub_now = False
        if pub_now and t + 1 >= G_END: a(f"s_waitcnt vmcnt({vm.n_after('kvst')})")
        sync(t + 1)
        if pub_now:
            published = True
            sk = a.lab("nopub")
            a(f"s_cmp_lg_u32 s{sW}, 0\ns_cbranch_scc1 {sk}")
            a(f"""v_mov_b32 v{t1}, 1
            s_lshl_b32 s{sT0}, s{sHEAD}, 2
            s_lshl_b32 s{sT1}, s{sHP}, 2
            s_add_u32 s{sT1}, s{sT1}, 128
            v_mov_b32 v{t2}, s{sT0}
            v_mov_b32 v{t3}, s{sT1}
            v_cmp_eq_u32 vcc, 0, v0
            s_nop 1
            v_cndmask_b32 v{t2}, v{t3}, v{t2}, vcc
            v_cmp_gt_u32 vcc, 2, v0
            s_and_saveexec_b64 s[{sEX}:{sEX+1}], vcc
            buffer_atomic_add v{t1}, v{t2}, {srd_s(R_DBG)}, 0 offen sc1
            s_mov_b64 exec, s[{sEX}:{sEX+1}]""")
            a(f"{sk}:")
        fill = []
        if t & 1: fill.append("\n".join(toggle([vTOK] + vW)))
        d = dma_stage(t + 4)
        rd = p2_reads(t + 1) if t + 1 < G_END else []
        st = kv_store()
        fl = fill + rd[:6] + d[:1] + rd[6:12] + d[1:2] + rd[12:] + d[2:] + st
        interleave(a, p2_mfmas(t, t == G_P2), fl)
    assert published
    stamp(a, 4)
    sk = a.lab("nopoll"); lp = a.lab("poll"); ok = a.lab("pollok")
    a(f"s_cmp_lg_u32 s{sW}, 0\ns_cbranch_scc1 {sk}")
    a(f"s_mov_b32 s{sCNT}, 0\ns_lshl_b32 s{sT0}, s{sHEAD}, 2\ns_lshl_b32 s{sT1}, s{sHP}, 2\ns_add_u32 s{sT1}, s{sT1}, 128\nv_mov_b32 v{t3}, 0")
    a(f"{lp}:")
    a(f"""buffer_load_dword v{t1}, v{t3}, {srd_s(R_DBG)}, s{sT0} offen sc1
    buffer_load_dword v{t2}, v{t3}, {srd_s(R_DBG)}, s{sT1} offen sc1
    s_waitcnt vmcnt(0)
    v_readfirstlane_b32 s{sT2}, v{t1}
    v_readfirstlane_b32 s{sT3}, v{t2}
    s_nop 0
    s_lshl_b32 s{sT2}, s{sT2}, 1
    s_min_u32 s{sT2}, s{sT2}, s{sT3}
    s_cmp_ge_u32 s{sT2}, 16
    s_cbranch_scc1 {ok}
    s_sleep 2
    s_add_u32 s{sCNT}, s{sCNT}, 1
    s_cmp_lt_u32 s{sCNT}, {CFG['spin']}
    s_cbranch_scc1 {lp}""")
    a(f"{ok}:\nbuffer_inv sc1\ns_waitcnt vmcnt(0)")
    a(f"{sk}:")
    Q = 32
    a(f"s_mov_b32 s{sSCL}, {f32(math.log2(math.e) / math.sqrt(128.0))}")
    a("s_nop 7")
    for r in range(64): a(f"v_mul_f32 v{128+r}, s{sSCL}, v{128+r}")
    for m in range(32): a(f"v_cvt_pk_bf16_f32 v{Q+m}, v{128+2*m}, v{128+2*m+1}")
    a("s_nop 1")
    for i in range(4):
        for r in range(4): a(f"v_permlane16_swap_b32 v{Q+8*i+r}, v{Q+8*i+4+r}")
    a("s_barrier")
    stamp(a, 5)

    vL16, vKV = 1, 2
    vLs = (3, 4)
    vE = [5, 6, 7, 8]
    vM, vM2, vD = 9, 10, 11
    O, S, NEG, P, KR, VR = 64, (128, 144), 160, (176, 184), 192, 224
    a(f"v_lshlrev_b32 v{vL16}, 4, v0")
    a(f"""s_lshl_b32 s{sKO}, s{sHEAD}, 19
    s_and_b32 s{sT0}, s{sW}, 3
    s_lshl_b32 s{sLD}, s{sT0}, 12
    s_add_u32 s{sKO}, s{sKO}, s{sLD}
    s_add_u32 s{sVO}, s{sKO}, {VF - 3*8192}
    s_add_u32 s{sKO}, s{sKO}, {KF}
    s_mov_b32 s{sDST}, 0
    s_lshl_b32 s{sT0}, s{sTB}, 1
    s_sub_u32 s{sTMAX}, 33, s{sT0}
    s_mov_b32 s{sTHR}, {f32(2.0 ** (CFG['thr'] - CFG['bias']))}""")
    def att_dma():
        a(f"""s_and_b32 s{sT0}, s{sDST}, 3
        s_lshl_b32 s{sT0}, s{sT0}, 15
        s_add_u32 s{sT0}, s{sT0}, s{sLD}
        s_cmp_le_u32 s{sDST}, s{sTMAX}
        s_cselect_b32 s{sT1}, s{sKO}, 0x40000000
        s_cselect_b32 s{sT2}, s{sVO}, 0x40000000
        s_mov_b32 m0, s{sT0}
        s_add_u32 s{sKO}, s{sKO}, 16384""")
        for i in range(4): a(f"buffer_load_dwordx4 v{vL16}, {srd_s(R_WS)}, s{sT1} offen offset:{i*1024} lds")
        a(f"s_add_u32 m0, s{sT0}, 16384\ns_add_u32 s{sVO}, s{sVO}, 16384")
        for i in range(4): a(f"buffer_load_dwordx4 v{vL16}, {srd_s(R_WS)}, s{sT2} offen offset:{i*1024} lds")
        a(f"s_add_u32 s{sDST}, s{sDST}, 1")
    a(f"""s_lshl_b32 s{sT0}, s{sHP}, 1
    s_lshr_b32 s{sT2}, s{sW}, 2
    s_add_u32 s{sT0}, s{sT0}, s{sT2}
    s_lshl_b32 s{sT0}, s{sT0}, 16
    s_and_b32 s{sT1}, s{sW}, 3
    s_lshl_b32 s{sT3}, s{sT1}, 10
    s_add_u32 s{sT0}, s{sT0}, s{sT3}
    s_add_u32 s{sT0}, s{sT0}, {KVP}
    s_cmp_lt_u32 s{sT1}, 2
    s_cselect_b32 s{sT1}, -1, 0x300
    v_and_b32 v{vKV}, s{sT1}, v{vL16}""")
    for i in range(16):
        a(f"buffer_load_dwordx4 {vr(O+4*i,4)}, v{vKV}, {srd_s(R_WS)}, s{sT0} offen\ns_add_u32 s{sT0}, s{sT0}, 4096")
    nl = a.lab("noload")
    a(f"s_cmp_lt_u32 s{sW}, 4\ns_cbranch_scc1 {nl}")
    for i in range(3): att_dma()
    a("s_waitcnt vmcnt(24)")
    a(f"{nl}:")
    a("s_waitcnt vmcnt(24)")
    nl2 = a.lab("noload2")
    a(f"s_cmp_ge_u32 s{sW}, 4\ns_cbranch_scc1 {nl2}\ns_waitcnt vmcnt(0)\n{nl2}:")
    for st in (8, 4, 2, 1):
        for i in range(st):
            for r in range(4): a(f"v_add_f32 v{O+4*i+r}, v{O+4*i+r}, v{O+4*(i+st)+r}")
    a(f"v_cvt_pk_bf16_f32 v{O+4}, v{O}, v{O+1}\nv_cvt_pk_bf16_f32 v{O+5}, v{O+2}, v{O+3}")
    a(f"""s_lshr_b32 s{sT0}, s{sW}, 1
    s_lshl_b32 s{sT0}, s{sT0}, 10
    s_and_b32 s{sT1}, s{sW}, 1
    s_lshl_b32 s{sT1}, s{sT1}, 3
    s_add_u32 s{sT0}, s{sT0}, s{sT1}
    s_add_u32 s{sT0}, s{sT0}, {SCR}
    v_add_u32 v{vKV}, s{sT0}, v{vL16}
    ds_write_b64 v{vKV}, {vr(O+4,2)}
    s_lshr_b32 s{sT0}, s{sW}, 2
    s_lshl_b32 s{sT0}, s{sT0}, 11
    s_add_u32 s{sT0}, s{sT0}, {SCR}
    v_add_u32 v{vKV}, s{sT0}, v{vL16}""")
    a("s_waitcnt vmcnt(16) lgkmcnt(0)\ns_barrier")
    a(f"ds_read_b128 {vr(O+8,4)}, v{vKV}\nds_read_b128 {vr(O+12,4)}, v{vKV} offset:1024")
    for c in range(8): a(f"ds_read_b128 {vr(KR+4*c,4)}, v{vL16} offset:{c*1024}")
    nl3 = a.lab("noload3")
    a(f"s_cmp_lt_u32 s{sW}, 4\ns_cbranch_scc1 {nl3}")
    att_dma()
    a(f"{nl3}:")
    a("s_waitcnt lgkmcnt(8)")
    for T in range(2):
        a(mfma16(O + 16 + 8 * T, O + 8, vPHIQ + 4 * T, "0"))
        a(mfma16(O + 20 + 8 * T, O + 12, vPHIQ + 4 * T, "0"))
    a("s_waitcnt lgkmcnt(0)")
    for c in range(8): a(mfma32(S[0], KR + 4 * c, Q + 4 * c, "0" if c == 0 else None))
    for c in range(8): a(f"ds_read_b128 {vr(KR+4*c,4)}, v{vL16} offset:{8192+c*1024}")
    a(f"""s_lshl_b32 s{sT0}, s{sTBA}, 3
    s_and_b32 s{sT1}, s{sW}, 3
    s_lshl_b32 s{sT1}, s{sT1}, 1
    s_add_u32 s{sT0}, s{sT0}, s{sT1}
    s_lshl_b32 s{sT0}, s{sT0}, 4
    s_add_u32 s{sT0}, s{sT0}, s{sHP}
    s_lshl_b32 s{sT0}, s{sT0}, 10
    s_lshr_b32 s{sT1}, s{sW}, 2
    s_lshl_b32 s{sT1}, s{sT1}, 3
    s_add_u32 s{sT0}, s{sT0}, s{sT1}
    s_add_u32 s{sT0}, s{sT0}, {OAF}
    s_add_u32 s{sT1}, s{sT0}, 16384""")
    for T in range(2):
        n, d = O + 16 + 8 * T, O + 20 + 8 * T
        a(f"v_add_f32 v{d}, {f32(1e-6)}, v{d}\nv_rcp_f32 v{d}, v{d}\ns_nop 0")
        for r in range(4): a(f"v_mul_f32 v{n+r}, v{n+r}, v{d}")
        a(f"v_cvt_pk_bf16_f32 v{d+2}, v{n}, v{n+1}\nv_cvt_pk_bf16_f32 v{d+3}, v{n+2}, v{n+3}")
        a(f"buffer_store_dwordx2 {vr(d+2,2)}, v{vL16}, {srd_s(R_WS)}, s{sT0+T} offen")
    stamp(a, 6)

    def mask(s):
        a(f"v_lshrrev_b32 v{vM}, 5, v0\nv_lshlrev_b32 v{vM}, 2, v{vM}\nv_and_b32 v{vM2}, 31, v0\nv_sub_u32 v{vM}, v{vM2}, v{vM}\nv_mov_b32 v{vM2}, 0xff800000")
        for r in range(16):
            c = 16 * ((r // 4) % 2) + 8 * (r // 8) + r % 4
            a(f"v_cmp_gt_i32 vcc, {c}, v{vM}\ns_nop 1\nv_cndmask_b32 v{s+r}, v{s+r}, v{vM2}, vcc")
    def rowmax(s):
        a(f"v_max3_f32 v{vM}, v{s}, v{s+1}, v{s+2}")
        for r in range(3, 15, 2): a(f"v_max3_f32 v{vM}, v{vM}, v{s+r}, v{s+r+1}")
        a(f"v_max_f32 v{vM}, v{vM}, v{s+15}\nv_mov_b32 v{vM2}, v{vM}\ns_nop 1\nv_permlane32_swap_b32 v{vM}, v{vM2}\ns_nop 1\nv_max_f32 v{vM}, v{vM}, v{vM2}")
    nm = a.lab("nomask0")
    a("s_nop 7")
    a(f"s_cmp_lg_u32 s{sG}, 0\ns_cbranch_scc1 {nm}")
    mask(S[0])
    a(f"{nm}:")
    rowmax(S[0])
    a(f"v_sub_f32 v{NEG}, {f32(-CFG['bias'])}, v{vM}")
    for r in range(1, 16): a(f"v_mov_b32 v{NEG+r}, v{NEG}")
    for r in range(16): a(f"v_add_f32 v{S[0]+r}, v{S[0]+r}, v{NEG}")
    for r in range(64): a(f"v_mov_b32 v{O+r}, 0")
    a(f"v_mov_b32 v{vLs[1]}, 0\ns_mov_b32 s{sSLOT}, 0\ns_mov_b32 s{sREM}, s{sG}")

    def att_sync():
        a("s_waitcnt vmcnt(16) lgkmcnt(0)\ns_barrier")
        a(f"s_add_u32 s{sSLOT}, s{sSLOT}, {SLOT}\ns_and_b32 s{sSLOT}, s{sSLOT}, 0x1ffff\nv_add_u32 v{vKV}, s{sSLOT}, v{vL16}")
        nl = a.lab("nold")
        a(f"s_cmp_lt_u32 s{sW}, 4\ns_cbranch_scc1 {nl}")
        att_dma()
        a(f"{nl}:")
    def sm_ops(p):
        s = S[p]; g = [[] for _ in range(17)]
        for m in range(16):
            g[m].append(f"v_exp_f32 v{vE[m%4]}, v{s+m}")
        for m in range(16):
            src = vLs[1 - p] if m == 0 else vLs[p]
            g[m + 1].append(f"v_add_f32 v{vLs[p]}, v{src}, v{vE[m%4]}")
        for k in range(8):
            g[2 * k + 2].append(f"v_cvt_pk_bf16_f32 v{P[p]+k}, v{vE[(2*k)%4]}, v{vE[(2*k+1)%4]}")
        return g
    rets = []
    def check(p):
        r = a.lab("ret"); rets.append((p, r))
        a(f"v_cmp_nge_f32 vcc, s{sTHR}, v{vLs[p]}\ns_mov_b32 s{sRET}, {len(rets)-1}\ns_cbranch_vccnz rare{p}\n{r}:")
    def body(p, qk=True, pv=True, sm=True, lead_wait=True):
        g = sm_ops(p) if sm else [[] for _ in range(17)]
        vrd = [f"ds_read_b128 {vr(VR+4*c,4)}, v{vKV} offset:{16384+p*8192+c*1024}" for c in range(8)] if pv else []
        krd = [f"ds_read_b128 {vr(KR+4*c,4)}, v{vKV} offset:{p*8192+c*1024}" for c in range(8)] if qk else []
        if lead_wait: a("s_waitcnt lgkmcnt(0)")
        for m in range(8):
            if qk: a(mfma32(S[1 - p], KR + 4 * m, Q + 4 * m, vr(NEG, 16) if m == 0 else None))
            for x in vrd[2 * m:2 * m + 2]: a(x)
            for x in g[m]: a(x)
        if pv: a("s_waitcnt lgkmcnt(0)")
        for m in range(8):
            t, u = m % 4, m // 4
            if pv: a(mfma32(O + 16 * t, VR + 4 * (2 * t + u), P[1 - p] + 4 * u))
            for x in krd[2 * m:2 * m + 2]: a(x)
            for x in g[8 + m]: a(x)
        if sm:
            for x in g[16]: a(x)
            check(p)
    att_sync()
    a(f"s_cmp_eq_u32 s{sG}, 0\ns_cbranch_scc1 att_g0")
    body(0, pv=False, lead_wait=False)
    a("s_branch att_odd")
    a("att_even:")
    att_sync()
    a(f"s_cmp_eq_u32 s{sREM}, 0\ns_cbranch_scc1 att_last_even")
    body(0, lead_wait=False)
    a("att_odd:")
    a(f"s_cmp_eq_u32 s{sREM}, 1\ns_cbranch_scc1 att_last_odd")
    a(f"s_sub_u32 s{sREM}, s{sREM}, 2")
    body(1)
    a("s_branch att_even")
    a("att_g0:")
    body(0, qk=False, pv=False, lead_wait=False)
    a("s_branch att_fin_odd")
    a("att_last_even:")
    mask(S[0])
    body(0, qk=False, lead_wait=False)
    a("att_fin_odd:")
    a(f"v_mov_b32 v{vD}, v{vLs[0]}")
    body(1, qk=False, sm=False, lead_wait=False)
    a("s_branch att_done")
    a("att_last_odd:")
    mask(S[1])
    body(1, qk=False, lead_wait=False)
    att_sync()
    a(f"v_mov_b32 v{vD}, v{vLs[1]}")
    body(0, qk=False, sm=False, lead_wait=False)
    a("att_done:")
    stamp(a, 7)
    a(f"v_mov_b32 v{vM}, v{vD}\ns_nop 1\nv_permlane32_swap_b32 v{vM}, v{vD}\ns_nop 1\nv_add_f32 v{vD}, v{vD}, v{vM}\nv_rcp_f32 v{vD}, v{vD}")
    a(f"""v_bfe_u32 v{vM}, v0, 4, 1
    v_lshlrev_b32 v{vM}, 17, v{vM}
    v_lshrrev_b32 v{vM2}, 5, v0
    v_lshl_or_b32 v{vM}, v{vM2}, 8, v{vM}
    v_and_b32 v{vM2}, 15, v0
    v_lshl_or_b32 v{vM}, v{vM2}, 4, v{vM}
    s_lshl_b32 s{sT0}, s{sG}, 18
    s_lshl_b32 s{sT1}, s{sHEAD}, 12
    s_add_u32 s{sT0}, s{sT0}, s{sT1}
    s_add_u32 s{sT0}, s{sT0}, {CTX}
    s_nop 4""")
    for t in range(4):
        for c in range(2):
            b = O + 16 * t + 8 * c; d = KR + 4 * (2 * t + c)
            for r in range(8): a(f"v_mul_f32 v{b+r}, v{b+r}, v{vD}")
            for j in range(4): a(f"v_cvt_pk_bf16_f32 v{d+j}, v{b+2*j}, v{b+2*j+1}")
            a(f"buffer_store_dwordx4 {vr(d,4)}, v{vM}, {srd_s(R_WS)}, s{sT0} offen offset:{t*1024+c*512} {CFG['ctx_flags']}")
    a(f"s_cmp_lt_u32 s{sW}, 4\ns_cbranch_scc1 ka_fin")
    a("ld_loop:")
    a(f"s_cmp_gt_u32 s{sDST}, s{sTMAX}\ns_cbranch_scc1 ka_fin")
    a("s_waitcnt vmcnt(16)\ns_barrier")
    att_dma()
    a("s_branch ld_loop")
    a("ka_fin:")
    a("s_waitcnt vmcnt(0)")
    stamp(a, 8)
    a(f"{END}:\ns_endpgm")
    for p in range(2):
        a(f"rare{p}:")
        a("s_nop 11")
        rowmax(S[p])
        a(f"v_add_f32 v{vD}, {f32(CFG['bias'])}, v{vM}\nv_max_f32 v{vD}, 0, v{vD}\nv_sub_f32 v{vM}, 0, v{vD}\nv_exp_f32 v{vM}, v{vM}")
        for r in range(16):
            a(f"v_sub_f32 v{S[0]+r}, v{S[0]+r}, v{vD}\nv_sub_f32 v{S[1]+r}, v{S[1]+r}, v{vD}\nv_sub_f32 v{NEG+r}, v{NEG+r}, v{vD}")
        for r in range(64): a(f"v_mul_f32 v{O+r}, v{O+r}, v{vM}")
        a(f"v_mul_f32 v{vLs[1-p]}, v{vLs[1-p]}, v{vM}")
        for grp in sm_ops(p):
            for x in grp: a(x)
            a("s_nop 0")
        a("s_nop 1")
        mine = [(i, r) for i, (pp, r) in enumerate(rets) if pp == p]
        for i, r in mine[:-1]:
            a(f"s_cmp_eq_u32 s{sRET}, {i}\ns_cbranch_scc1 {r}")
        a(f"s_branch {mine[-1][1]}")
    a.kernel_end(K)
    del a.vm

def gen_KB(a):
    K = "kb_kernel"
    a.kernel_begin(K, 256, 256, 128 * 1024)
    END = "kb_end"
    R_OUT = 12
    a(f"s_cmp_ge_u32 s2, 256\ns_cbranch_scc1 {END}")
    a(f"s_load_dwordx2 s[{R_WS}:{R_WS+1}], s[0:1], 96\ns_load_dwordx2 s[{R_OUT}:{R_OUT+1}], s[0:1], 80")
    a(f"v_lshrrev_b32 v1, 6, v0\nv_and_b32 v0, 63, v0\nv_readfirstlane_b32 s{sW}, v1\nv_lshlrev_b32 v1, 4, v0")
    a(f"s_mov_b32 s{R_WS+2}, {WS_BYTES}\ns_mov_b32 s{R_WS+3}, 0x20000\ns_mov_b32 s{R_OUT+2}, {4<<20}\ns_mov_b32 s{R_OUT+3}, 0x20000")
    sRB, sCB = 4, 5
    sX = [30 + i for i in range(4)]; sY = [34 + i for i in range(4)]
    sXB = [38 + i for i in range(4)]; sYB = [42 + i for i in range(4)]
    a(f"""s_and_b32 s{sT0}, s2, 7
    s_lshr_b32 s{sT1}, s2, 3
    s_lshl_b32 s{sRB}, s{sT0}, 2
    s_and_b32 s{sT2}, s{sT1}, 3
    s_add_u32 s{sRB}, s{sRB}, s{sT2}
    s_lshr_b32 s{sCB}, s{sT1}, 2""")
    a(f"s_lshl_b32 s{sT0}, s{sW}, 12\ns_lshl_b32 s{sT1}, s{sW}, 15")
    a(f"s_lshl_b32 s{sX[0]}, s{sRB}, 16\ns_add_u32 s{sX[0]}, s{sX[0]}, s{sT0}\ns_add_u32 s{sX[0]}, s{sX[0]}, {OAF}")
    a(f"s_lshl_b32 s{sY[0]}, s{sCB}, 16\ns_add_u32 s{sY[0]}, s{sY[0]}, s{sT0}\ns_add_u32 s{sY[0]}, s{sY[0]}, {WOAF}")
    a(f"s_lshl_b32 s{sXB[0]}, s{sRB}, 19\ns_add_u32 s{sXB[0]}, s{sXB[0]}, s{sT1}\ns_add_u32 s{sXB[0]}, s{sXB[0]}, {CTX}")
    a(f"s_lshl_b32 s{sYB[0]}, s{sCB}, 19\ns_add_u32 s{sYB[0]}, s{sYB[0]}, s{sT1}\ns_add_u32 s{sYB[0]}, s{sYB[0]}, {WOF}")
    for i in range(1, 4):
        a(f"s_add_u32 s{sX[i]}, s{sX[0]}, {i*16384}\ns_add_u32 s{sY[i]}, s{sY[0]}, {i*16384}")
        a(f"s_add_u32 s{sXB[i]}, s{sXB[0]}, {i*131072}\ns_add_u32 s{sYB[i]}, s{sYB[0]}, {i*131072}")
    a("s_waitcnt lgkmcnt(0)")
    stamp(a, 10)
    ACA, ACB = 128, 192
    BUF = [0 + 0] * 4
    BUF = [24 + 0, 56, 88]
    NB = 3
    base = 32
    def loads(step):
        b = base + 32 * (step % NB); out = []
        if step >= 36: return out
        X, Y, k = (sX, sY, step) if step < 4 else (sXB, sYB, (step - 4) % 4)
        for i in range(4):
            out.append(f"buffer_load_dwordx4 {vr(b+4*i,4)}, v1, {srd_s(R_WS)}, s{X[i]} offen offset:{k*1024}")
            out.append(f"buffer_load_dwordx4 {vr(b+16+4*i,4)}, v1, {srd_s(R_WS)}, s{Y[i]} offen offset:{k*1024}")
        if step >= 4 and k == 3:
            out.append("\n".join(f"s_add_u32 s{r}, s{r}, 4096" for r in sXB + sYB))
        return out
    for s in range(NB):
        for x in loads(s): a(x)
    for step in range(36):
        b = base + 32 * (step % NB)
        acc = ACA if step < 4 else ACB
        first = step in (0, 4)
        left = min(NB - 1, 35 - step)
        a(f"s_waitcnt vmcnt({8*left})")
        mf = [mfma16(acc + 16 * x + 4 * y, b + 16 + 4 * y, b + 4 * x, "0" if first else None) for x in range(4) for y in range(4)]
        for m in mf: a(m)
        for x in loads(step + NB): a(x)
    stamp(a, 11)
    a(f"s_lshl_b32 s{sT0}, s{sW}, 12\nv_add_u32 v2, s{sT0}, v1\nv_add_u32 v3, 0x10000, v2")
    a(f"s_lshl_b32 s{sT0}, s{sW}, 14\nv_add_u32 v4, s{sT0}, v1\nv_add_u32 v5, 0x10000, v4")
    a("s_nop 7")
    for part, acc in enumerate((ACA, ACB)):
        for x in range(4):
            for y in range(4):
                a(f"ds_write_b128 v{2+part}, {vr(acc+16*x+4*y,4)} offset:{x*16384+y*1024}")
    a("s_waitcnt lgkmcnt(0)\ns_barrier")
    a(f"""v_and_b32 v6, 15, v0
    v_lshlrev_b32 v6, 11, v6
    v_lshrrev_b32 v7, 4, v0
    v_lshl_or_b32 v6, v7, 4, v6
    s_lshl_b32 s{sT0}, s{sRB}, 2
    s_add_u32 s{sT0}, s{sT0}, s{sW}
    s_lshl_b32 s{sT0}, s{sT0}, 15
    s_lshl_b32 s{sT1}, s{sCB}, 7
    s_add_u32 s{sT0}, s{sT0}, s{sT1}""")
    for part in range(2):
        r0 = 32 + 64 * part
        for sw in range(4):
            for y in range(4):
                a(f"ds_read_b128 {vr(r0+16*sw+4*y,4)}, v{4+part} offset:{sw*4096+y*1024}")
        a("s_waitcnt lgkmcnt(0)")
        for r in range(16):
            a(f"v_add_f32 v{r0+r}, v{r0+r}, v{r0+16+r}\nv_add_f32 v{r0+32+r}, v{r0+32+r}, v{r0+48+r}")
        for r in range(16): a(f"v_add_f32 v{r0+r}, v{r0+r}, v{r0+32+r}")
        for m in range(8): a(f"v_cvt_pk_bf16_f32 v{r0+16+m}, v{r0+2*m}, v{r0+2*m+1}")
        for be in range(2):
            a(f"buffer_store_dwordx4 {vr(r0+16+4*be,4)}, v6, {srd_s(R_OUT)}, s{sT0} offen offset:{part*1024+be*64}")
    stamp(a, 12)
    a(f"{END}:\ns_endpgm")
    a.kernel_end(K)

HEADER = """; Fused hedgehog linear attention + MLA causal prefill attention for gfx950 (generated by own script).
; ka: K/V projection, hedgehog features, Q projection, flash attention ; kb: output projections."""

def build(path, **cfg):
    CFG.update(cfg)
    a = Asm()
    gen_KA(a)
    gen_KB(a)
    txt = a.text(HEADER)
    errs, n = hazard.check(txt)
    for e in errs: print("HAZARD", e)
    print(f"{path}: {n} instructions, {len(errs)} hazards, {len(txt)} bytes")
    open(path, "w").write(txt)

if __name__ == "__main__":
    build("k_dbg.s", stamps=True)
    build("cdna_kernels/" + NAME + ".s", stamps=False)
```

```python
import sys, struct, math
from agen import Asm
import hazard

NAME = "concat_heads__linear_kernel_hedgehog__compressed_kv_cla__prompt"
KF   = 0x0100000
VF   = 0x1200000
CTX  = 0x2400000
OAF  = 0x3500000
WOF  = 0x3800000
WOAF = 0x3D00000
KVP  = 0x3E00000
FLG  = 0x4100000
STAMP = 0xF000000
WS_BYTES = 0x10000000
SLOT = 32768
SCR = 4 * SLOT
OOB = 0x40000000

def f32(x): return struct.unpack("<I", struct.pack("<f", x))[0]

DEF = dict(stamps=False, bias=60.0, thr=120.0, st_flags="sc1", ctx_flags="sc1", spin=200000, prefetch=False, denorm=0,
           s_pf=6, s_ps=15, s_pl=9, s_chk=11, s_go=12, kb_nb=5, rot=True, rot1=False, lvlA=2, pf_t0=1, pf_t1=15, n_init=3, p1_nt=False, lin={}, stag=(["xa", "wa", "xb", "wq"], [3, 4, 5, 6, 7, 8, 9, 10]), lin0=["c"],
           fast=[[8, 9, 10, 11, 12, 13, 14, 15, 16, 16, 16, 17, 17, 17, 18, 18], list(range(16))],
           slow=[[8, 10, 12, 14, 16, 17, 18, 19, 20, 21, 22, 23, 24, 25, 26, 27], list(range(16))])
CFG = dict(DEF)

sW, sHEAD, sTB, sTBA, sHP = 3, 4, 5, 6, 7
R_WS, R_DBG, R_C, R_WUK, R_WUV, R_XA, R_WQKV, R_XB, R_WQ, R_WOB, R_WOA, R_PHI = [8 + 4 * i for i in range(12)]
sMASK = 24
sT0, sT1, sT2, sT3 = 56, 57, 58, 59
sDM, sDMW = 60, 61
sO0, sO2 = 62, 63
sTD = 64
sW3 = 65
sST, sCNT, sG, sREM, sSLOT, sRET, sTHR = 66, 67, 68, 69, 70, 71, 72
sKO, sVO, sDST, sTMAX, sLD = 73, 74, 75, 76, 77
sA0, sA2 = 78, 79
sBL, sBS, sB2 = 80, 81, 82
sSTG = 83
sDK, sDV = 84, 85
sEX = 86
sSTAMP = 88
sSCL, sDSL = 90, 91
sPQ, sPX = 100, 101
sRT, sCT, sCT2, sCW = 94, 95, 96, 97
sTD2 = 99
vTOK = 1
vW = [2 + i for i in range(8)]
vDTOK, vDW, vDWA, vST0, vST1 = 10, 11, 12, 13, 14
vT = [15 + i for i in range(9)]
vSP = 126
vPHIQ = 24
vSNAP = 20
vP1, vP2, vP3 = 9, 20, 23
vP0, vPD, vWB, vTKB = 24, 25, 22, 21

def srd_s(r): return f"s[{r}:{r+3}]"
def vr(a, n): return f"v[{a}:{a+n-1}]" if n > 1 else f"v{a}"

class VM:
    def __init__(s): s.ops = []
    def add(s, tag, n=1): s.ops += [tag] * n
    def has(s, tag): return tag in s.ops
    def n_after(s, tag):
        idx = max(i for i, t in enumerate(s.ops) if t == tag)
        return min(63, len(s.ops) - 1 - idx)

def interleave(a, mf, fill):
    n = len(mf); m = len(fill)
    slots = [[] for _ in range(n)]
    for k, f in enumerate(fill):
        slots[min((k * n) // max(m, 1), n - 1)].append(f)
    for x, s in zip(mf, slots):
        a(x)
        for f in s: a(f)

def merge(x, y):
    if not y: return list(x)
    if not x: return list(y)
    out = []; j = 0
    for i, e in enumerate(x):
        out.append(e)
        while j < len(y) and (j + 1) * len(x) <= (i + 1) * len(y):
            out.append(y[j]); j += 1
    return out + y[j:]

def mfma16(d, x, y, c=None):
    c = vr(d, 4) if c is None else c
    return f"v_mfma_f32_16x16x32_bf16 {vr(d,4)}, {vr(x,4)}, {vr(y,4)}, {c}"
def mfma32(d, x, y, c=None):
    c = vr(d, 16) if c is None else c
    return f"v_mfma_f32_32x32x16_bf16 {vr(d,16)}, {vr(x,4)}, {vr(y,4)}, {c}"

def stamp(a, idx, vms=()):
    if not CFG["stamps"]: return
    a(f"s_memrealtime s[{sSTAMP}:{sSTAMP+1}]\ns_memtime s[92:93]")
    a("s_waitcnt lgkmcnt(0)")
    a(f"v_mov_b32 v{vSP}, s{sSTAMP}\nv_mov_b32 v{vSP+1}, s92")
    a(f"s_lshl_b32 s{sSTAMP}, s2, 3\ns_add_u32 s{sSTAMP}, s{sSTAMP}, s{sW}\ns_lshl_b32 s{sSTAMP}, s{sSTAMP}, 7\ns_add_u32 s{sSTAMP}, s{sSTAMP}, {STAMP + idx*8}")
    a(f"buffer_store_dwordx2 v[{vSP}:{vSP+1}], off, {srd_s(R_WS)}, s{sSTAMP}")
    for v in vms: v.add("stamp")

def dma_unit(m0s, m0c, voff, srd, bs, bc):
    nt = " nt" if (CFG["p1_nt"] and srd in (R_C, R_WUK, R_WUV, R_WOB)) else ""
    return f"s_add_u32 m0, s{m0s}, {m0c}\ns_add_u32 s{sTD}, s{bs}, {bc}\nbuffer_load_dwordx4 v{voff}, {srd_s(srd)}, s{sTD} offen{nt} lds"

def gen_KA(a):
    global vSP
    K = "ka_kernel"
    a.kernel_begin(K, 256, 512, 160 * 1024)
    marks = [{}, {}]
    VMS = [VM(), VM()]
    END = "ka_end"
    vSP = 30
    a(f"s_cmp_ge_u32 s2, 256\ns_cbranch_scc1 {END}")
    for r, off in ((R_C, 40), (R_WUK, 56), (R_WUV, 64), (R_XA, 0), (R_WQKV, 8), (R_PHI, 16), (R_WOA, 24), (R_XB, 32), (R_WQ, 48),
                   (R_WOB, 72), (R_DBG, 88), (R_WS, 96)):
        a(f"s_load_dwordx2 s[{r}:{r+1}], s[0:1], {off}")
    a(f"v_lshrrev_b32 v1, 6, v0\nv_and_b32 v0, 63, v0\nv_readfirstlane_b32 s{sW}, v1")
    for r, n in ((R_XA, 2 << 20), (R_WQKV, 512 * 3072), (R_PHI, 16384), (R_WOA, 512 * 1024), (R_XB, 2 << 20), (R_C, 2 << 20),
                 (R_WQ, 4 << 20), (R_WUK, 4 << 20), (R_WUV, 4 << 20), (R_WOB, 4 << 20), (R_DBG, 256), (R_WS, WS_BYTES)):
        a(f"s_mov_b32 s{r+2}, {n}\ns_mov_b32 s{r+3}, 0x20000")
    a(f"""s_and_b32 s{sT0}, s2, 7
    s_lshr_b32 s{sT1}, s2, 3
    s_and_b32 s{sT2}, s{sT1}, 3
    s_lshl_b32 s{sHEAD}, s{sT0}, 2
    s_add_u32 s{sHEAD}, s{sHEAD}, s{sT2}
    s_lshr_b32 s{sTB}, s2, 5
    s_lshr_b32 s{sTBA}, s{sT0}, 1
    s_lshl_b32 s{sTBA}, s{sTBA}, 2
    s_add_u32 s{sTBA}, s{sTBA}, s{sT2}
    s_and_b32 s{sHP}, s{sT0}, 1
    s_lshl_b32 s{sHP}, s{sHP}, 3
    s_add_u32 s{sHP}, s{sHP}, s{sTB}
    s_and_b32 s{sW3}, s{sW}, 3
    s_lshl_b32 s{sDM}, s{sW3}, 11
    s_lshl_b32 s{sDMW}, s{sW3}, 10""")
    t0, t1, t2, t3, t4 = vT[0], vT[1], vT[2], vT[3], vT[4]
    def emit_f(x, out, tmp):
        a(f"v_lshrrev_b32 v{tmp}, 1, v{x}\nv_xor_b32 v{out}, v{x}, v{tmp}\nv_and_b32 v{out}, 1, v{out}\nv_lshl_or_b32 v{out}, v{out}, 1, v{tmp}")
    a(f"v_lshrrev_b32 v{t0}, 4, v0")
    emit_f(t0, t1, t2)
    a(f"v_and_b32 v{t2}, 3, v0\nv_xor_b32 v{t1}, v{t1}, v{t2}\nv_lshlrev_b32 v{t1}, 4, v{t1}")
    a(f"v_lshrrev_b32 v{t2}, 2, v0\nv_lshl_or_b32 v{vDTOK}, v{t2}, 10, v{t1}")
    a(f"s_and_b32 s{sT0}, s{sW}, 2\ns_lshl_b32 s{sT0}, s{sT0}, 1\ns_lshl_b32 s{sT1}, s{sW3}, 2\nv_and_b32 v{t2}, 15, v0")
    a(f"v_or_b32 v{t1}, s{sT0}, v{t0}\nv_lshlrev_b32 v{t1}, 1, v{t1}\nv_xor_b32 v{t1}, v{t1}, v{t2}")
    a(f"v_add_u32 v{t4}, s{sT1}, v{t0}")
    a(f"v_lshlrev_b32 v{vDW}, 13, v{t4}\nv_lshl_or_b32 v{vDW}, v{t1}, 4, v{vDW}")
    a(f"""s_lshl_b32 s{sO0}, s{sTB}, 8
    s_lshl_b32 s{sT0}, s{sW3}, 5
    s_add_u32 s{sO0}, s{sO0}, s{sT0}
    s_lshl_b32 s{sO0}, s{sO0}, 10
    s_lshl_b32 s{sO2}, s{sHEAD}, 8""")

    NP1, NA1, NP2 = 16, 8, 16
    G_A1 = NP1; G_P2 = G_A1 + NA1; G_END = G_P2 + NP2
    WB = 65536
    def tko(t): return (t % 4) * 16384
    def rot_init(t):
        if not CFG["rot"] or (t == 0 and not CFG["rot1"]): return f"s_mov_b32 s{sRT}, -1"
        if t == G_A1: return f"s_lshl_b32 s{sRT}, s{sTBA}, 1\ns_add_u32 s{sRT}, s{sRT}, s{sHP}"
        return f"s_lshl_b32 s{sRT}, s{sHEAD}, 1\ns_add_u32 s{sRT}, s{sRT}, s{sTB}\ns_lshl_b32 s{sRT}, s{sRT}, 1\ns_add_u32 s{sRT}, s{sRT}, 15"
    def rot_step(t):
        x = rot_init(t) + "\n" if t in (0, G_A1, G_P2) else ""
        if t == G_P2 + 4: x = rot_init(G_P2) + f"\ns_add_u32 s{sRT}, s{sRT}, 4\n"
        n, tsh, wmul = (8, 7, 64 * 3072) if G_A1 <= t < G_P2 else (16, 6, 32 * 8192)
        bt, bw = (sO0, sO2) if t < G_A1 else (sA0, sA2) if t < G_P2 else (sBL, sB2)
        x += f"s_add_u32 s{sRT}, s{sRT}, 1\ns_and_b32 s{sRT}, s{sRT}, {n-1}\ns_lshl_b32 s{sCT2}, s{sRT}, {tsh}\ns_add_u32 s{sCT}, s{sCT2}, s{bt}\n"
        if t >= G_P2: x += f"s_add_u32 s{sCT2}, s{sCT2}, s{sBS}\n"
        x += f"s_mul_i32 s{sCW}, s{sRT}, {wmul}\ns_add_u32 s{sCW}, s{sCW}, s{bw}"
        return x
    def units(t, hv):
        b = tko(t)
        if t < G_A1:
            return [dma_unit(sDM, b + hv * 8192 + d * 1024, vDTOK, R_C, sCT, (128 * hv + 16 * d) * 1024) for d in range(2)] + \
                   [dma_unit(sDMW, WB + b + m * 8192 + hv * 4096, vDW, (R_WUK, R_WUV)[m], sCW, 16 * hv * 8192) for m in range(2)]
        if t < G_P2:
            return [dma_unit(sDM, b + hv * 8192 + d * 1024, vDTOK, R_XA, sCT, hv * 65536 + d * 64) for d in range(2)] + \
                   [dma_unit(sDMW, WB + b + m * 8192 + hv * 4096, vDWA, R_WQKV, sCW, (16 * hv + 32 * m) * 3072) for m in range(2)]
        return [dma_unit(sDM, b + hv * 8192 + d * 1024, vDTOK, R_XB, (sCT, sCT2)[hv], d * 16384) for d in range(2)] + \
               [dma_unit(sDMW, WB + b + hv * 4096, vDW, R_WQ, sCW, 16 * hv * 8192)]
    def loader(t):
        return 2 if t < CFG['n_init'] else 0 if t < G_P2 + 4 else 1
    def loads(role, t): return t < G_END and loader(t) in (role, 2)
    def dma_stage(role, t):
        if not loads(role, t): return []
        out = units(t, role) if loader(t) == 2 else units(t, 0) + units(t, 1)
        VMS[role].add(("dma", t), len(out))
        out[0] = rot_step(t) + "\n" + out[0]
        return out
    def sync(role, t, cover=None):
        vm = VMS[role]
        tr = CFG.get("trace") and t > G_A1
        if tr: a(f"s_memtime s[92:93]\ns_waitcnt lgkmcnt(0)\nv_writelane_b32 v23, s92, {32 + t - G_A1}\nv_writelane_b32 v23, s86, {t - G_A1 - 1}")
        n = vm.n_after(("dma", t)) if loads(role, t) else 63
        if cover is not None: n = min(n, len(vm.ops) - cover)
        a(f"s_waitcnt vmcnt({n}) lgkmcnt(0)" if n < 63 else "s_waitcnt lgkmcnt(0)")
        a("s_barrier")
        if tr: a("s_memtime s[86:87]")

    a("s_waitcnt lgkmcnt(0)")
    stamp(a, 0, VMS)
    a(f"s_cmp_ge_u32 s{sW}, 4\ns_cbranch_scc1 init_s")
    for t in range(CFG['n_init']):
        for f in dma_stage(0, t): a(f)
    a("s_branch init_done\ninit_s:")
    for t in range(CFG['n_init']):
        for f in dma_stage(1, t): a(f)
    a("init_done:")
    a(f"""s_lshr_b32 s{sPQ}, s2, 3
    s_lshl_b32 s{sPQ}, s{sPQ}, 2
    s_add_u32 s{sPQ}, s{sPQ}, s{sW3}
    s_and_b32 s{sPX}, s2, 7
    v_lshlrev_b32 v{vP0}, 7, v0
    v_lshrrev_b32 v{vP1}, 2, v0
    v_mul_u32_u24 v{vP1}, 3072, v{vP1}
    v_and_b32 v{vP2}, 3, v0
    v_lshl_add_u32 v{vP1}, v{vP2}, 7, v{vP1}
    v_lshlrev_b32 v{vP2}, 10, v0
    v_lshrrev_b32 v{vP3}, 3, v0
    v_lshlrev_b32 v{vP3}, 13, v{vP3}
    v_and_b32 v{vPD}, 7, v0
    v_lshl_or_b32 v{vP3}, v{vPD}, 7, v{vP3}""")
    a(f"v_mul_u32_u24 v{vDWA}, 3072, v{t4}\nv_lshrrev_b32 v{t3}, 2, v{t1}\nv_lshl_add_u32 v{vDWA}, v{t3}, 10, v{vDWA}")
    a(f"v_and_b32 v{t4}, 3, v{t1}\nv_lshl_add_u32 v{vDWA}, v{t4}, 4, v{vDWA}")
    a(f"v_cmp_eq_u32 vcc, 3, v{t3}\nv_mov_b32 v{t4}, {OOB}\ns_nop 0\nv_cndmask_b32 v{vDWA}, v{vDWA}, v{t4}, vcc")
    a(f"v_bfe_u32 v{t3}, v0, 2, 2")
    emit_f(t3, t1, t2)
    a(f"v_xor_b32 v{t1}, v{t1}, v{t0}\nv_lshlrev_b32 v{t1}, 4, v{t1}\nv_and_b32 v{t2}, 15, v0\nv_lshl_or_b32 v{vTKB}, v{t2}, 6, v{t1}")
    a(f"""s_lshl_b32 s{sA0}, s{sTBA}, 7
    s_lshl_b32 s{sT0}, s{sW3}, 4
    s_add_u32 s{sA0}, s{sA0}, s{sT0}
    s_lshl_b32 s{sA0}, s{sA0}, 10
    s_lshl_b32 s{sA2}, s{sHP}, 6
    s_lshl_b32 s{sT0}, s{sTB}, 2
    s_add_u32 s{sBS}, s{sT0}, s{sW3}
    s_sub_u32 s{sBL}, 63, s{sBS}
    s_cmp_lt_u32 s{sW}, 4
    s_cselect_b32 s{sG}, s{sBL}, s{sBS}
    s_lshl_b32 s{sBL}, s{sBL}, 15
    s_lshl_b32 s{sBS}, s{sBS}, 15
    s_lshl_b32 s{sB2}, s{sHEAD}, 8""")
    a(f"""v_lshl_add_u32 v{t2}, v{t0}, 3, v{t3}
    v_lshlrev_b32 v{vWB}, 8, v{t2}
    v_and_b32 v{t2}, 1, v{t0}
    v_lshl_or_b32 v{t2}, v{t2}, 2, v{t3}
    v_lshl_or_b32 v{vWB}, v{t2}, 5, v{vWB}
    v_and_b32 v{t2}, 3, v0
    v_lshl_or_b32 v{vWB}, v{t2}, 3, v{vWB}
    v_or_b32 v{vWB}, {WB}, v{vWB}
    s_lshr_b32 s{sT0}, s{sW}, 2
    s_lshl_b32 s{sT0}, s{sT0}, 13
    s_and_b32 s{sT1}, s{sW}, 2
    s_lshl_b32 s{sT1}, s{sT1}, 6
    s_or_b32 s{sT0}, s{sT0}, s{sT1}
    v_xor_b32 v{vW[0]}, s{sT0}, v{vWB}""")
    for b in range(1, 4): a(f"v_xor_b32 v{vW[b]}, {b*32}, v{vW[0]}")
    a(f"s_and_b32 s{sT0}, s{sW}, 1\ns_lshl_b32 s{sT0}, s{sT0}, 13\nv_add_u32 v{vTOK}, s{sT0}, v{vTKB}")
    a(f"""s_lshl_b32 s{sT0}, s{sHEAD}, 6
    s_lshl_b32 s{sT1}, s{sTB}, 3
    s_add_u32 s{sT0}, s{sT0}, s{sT1}
    s_and_b32 s{sT1}, s{sW}, 1
    s_lshl_b32 s{sT1}, s{sT1}, 2
    s_add_u32 s{sT0}, s{sT0}, s{sT1}
    s_lshl_b32 s{sST}, s{sT0}, 13
    s_and_b32 s{sT1}, s{sW}, 2
    s_lshl_b32 s{sT1}, s{sT1}, 11
    s_add_u32 s{sST}, s{sST}, s{sT1}""")
    vL16, vKV = vT[0], 2
    a(f"""s_lshl_b32 s{sKO}, s{sHEAD}, 19
    s_lshl_b32 s{sLD}, s{sW3}, 12
    s_add_u32 s{sKO}, s{sKO}, s{sLD}
    s_add_u32 s{sVO}, s{sKO}, {VF - 2*8192}
    s_add_u32 s{sKO}, s{sKO}, {KF}
    s_mov_b32 s{sDST}, 0
    s_lshl_b32 s{sT1}, s{sTB}, 1
    s_sub_u32 s{sTMAX}, 32, s{sT1}
    s_add_u32 s{sDSL}, s{sLD}, {4*SLOT}
    s_mov_b32 s{sTHR}, {f32(2.0 ** (CFG['thr'] - CFG['bias']))}""")
    vCV = vW[4:7]
    a(f"""v_and_b32 v{t1}, 1, v{t0}
    v_lshrrev_b32 v{t2}, 1, v{t0}
    v_lshlrev_b32 v{vCV[0]}, 4, v{t2}
    v_lshl_or_b32 v{vCV[0]}, v{t1}, 2, v{vCV[0]}
    v_or_b32 v{vCV[0]}, v{vCV[0]}, v{t3}
    v_lshlrev_b32 v{vCV[0]}, 8, v{vCV[0]}
    v_lshlrev_b32 v{t3}, 1, v{t3}
    v_and_b32 v{t4}, 3, v0
    v_xor_b32 v{t3}, v{t3}, v{t4}
    s_lshl_b32 s{sT0}, s{sW3}, 2
    v_xor_b32 v{t3}, s{sT0}, v{t3}
    v_lshl_or_b32 v{vCV[0]}, v{t3}, 4, v{vCV[0]}
    v_add_u32 v{vCV[0]}, {SCR}, v{vCV[0]}
    v_xor_b32 v{vCV[1]}, 128, v{vCV[0]}
    v_lshrrev_b32 v{vCV[2]}, 2, v0
    v_lshlrev_b32 v{vCV[2]}, 6, v{vCV[2]}
    v_lshl_or_b32 v{vCV[2]}, v{t4}, 4, v{vCV[2]}
    s_and_b32 s{sT0}, s{sW}, 1
    s_lshl_b32 s{sT0}, s{sT0}, 3
    s_add_u32 s{sT0}, s{sT0}, {SCR + 16384}
    v_add_u32 v{vCV[2]}, s{sT0}, v{vCV[2]}
    v_lshlrev_b32 v{vL16}, 4, v0""")
    a(f"s_cmp_ge_u32 s{sW}, 4\ns_cbranch_scc1 stream_s")

    ACC = 128
    SETS = (32, 80)
    def p1_reads(t):
        s = SETS[t % 2]; o = tko(t); r = []
        for b in range(4):
            r.append(f"ds_read_b64_tr_b16 {vr(s+4*b,2)}, v{vW[b]} offset:{o}")
            r.append(f"ds_read_b64_tr_b16 {vr(s+4*b+2,2)}, v{vW[b]} offset:{o+1024}")
        for T in range(8):
            r.append(f"ds_read_b128 {vr(s+16+4*T,4)}, v{vTOK} offset:{o+T*1024}")
        return r
    def p1_acc(role, n, T):
        if role == 0: s = (T // 2) * 4 + (T & 1) + 2 * (n // 2); return ACC + 8 * s + 4 * (n & 1)
        else: s = (T // 2) * 4 + n; return ACC + 8 * s + 4 * (T & 1)
    def p1_mfmas(role, t, first=False):
        s = SETS[t % 2]; out = []
        for T in range(8):
            for n in range(4):
                w, k = s + 4 * n, s + 16 + 4 * T
                d = p1_acc(role, n, T)
                out.append(mfma16(d, w, k, "0" if first else None) if role == 0 else mfma16(d, k, w, "0" if first else None))
        return out
    def a1_reads(t):
        s = SETS[t % 2]; o = tko(t); r = []
        for u in range(2):
            b = s + 20 * u
            for T in range(2):
                r.append(f"ds_read_b128 {vr(b+12+4*T,4)}, v{vTOK} offset:{o+T*2048+u*1024}")
            for m in range(3):
                r.append(f"ds_read_b64_tr_b16 {vr(b+4*m,2)}, v{vW[m]} offset:{o+u*8192}")
                r.append(f"ds_read_b64_tr_b16 {vr(b+4*m+2,2)}, v{vW[m]} offset:{o+u*8192+1024}")
        return r
    AQ, AK, AV = 128, 136, 144
    vPH = 152
    CA = 160
    SEL, ONES = 176, 184
    def a1_mfmas(t, first):
        s = SETS[t % 2]; out = []
        for u in range(2):
            b = s + 20 * u
            c = "0" if (first and u == 0) else None
            for T in range(2):
                x = b + 12 + 4 * T
                out += [mfma16(AQ + 4 * T, b, x, c), mfma16(AK + 4 * T, b + 4, x, c), mfma16(AV + 4 * T, x, b + 8, c)]
        return out
    def p2_reads(t):
        s = SETS[t % 2]; o = tko(t); r = []
        for T in range(2): r.append(f"ds_read_b128 {vr(s+32+4*T,4)}, v{vTOK} offset:{o+T*1024}")
        for n in range(8):
            r.append(f"ds_read_b64_tr_b16 {vr(s+4*n,2)}, v{vW[n]} offset:{o}")
            r.append(f"ds_read_b64_tr_b16 {vr(s+4*n+2,2)}, v{vW[n]} offset:{o+1024}")
        return r
    def p2_acc(n, T): return 128 + 16 * (n // 2) + 8 * T + 4 * (n & 1)
    def p2_mfmas(t, first):
        s = SETS[t % 2]
        return [mfma16(p2_acc(n, T), s + 4 * n, s + 32 + 4 * T, "0" if first else None) for n in range(8) for T in range(2)]
    def pf_list():
        xa = [("xa", i) for i in range(2)]; wa = [("wa", i) for i in range(3)]
        xb = [("xb", i) for i in range(8)]; wq = [("wq", i) for i in range(2)]
        return xa + wa + wq + xb if CFG.get("pf_order", 0) == 0 else wq + xb + xa + wa
    def pf_ins(kind, i):
        if kind == "xa":
            so = f"s_lshr_b32 s{sT0}, s{sPX}, 1\ns_lshl_b32 s{sT0}, s{sT0}, 19\ns_lshl_b32 s{sT1}, s{sPQ}, 12\ns_add_u32 s{sT0}, s{sT0}, s{sT1}\ns_add_u32 s{sT0}, s{sT0}, {i*2048}"
            srd, v = R_XA, vP0
        elif kind == "wa":
            so = f"s_mul_i32 s{sT0}, s{sPQ}, {4*3072}\ns_and_b32 s{sT1}, s{sPX}, 1\ns_lshl_b32 s{sT1}, s{sT1}, 9\ns_add_u32 s{sT0}, s{sT0}, s{sT1}\ns_add_u32 s{sT0}, s{sT0}, {i*1024}"
            srd, v = R_WQKV, vP1
        elif kind == "xb":
            so = f"s_lshl_b32 s{sT0}, s{sPQ}, 14\ns_add_u32 s{sT0}, s{sT0}, {i*128}"
            srd, v = R_XB, vP2
        else:
            so = f"s_lshl_b32 s{sT0}, s{sPQ}, 14\ns_lshl_b32 s{sT1}, s{sPX}, 10\ns_add_u32 s{sT0}, s{sT0}, s{sT1}\ns_add_u32 s{sT0}, s{sT0}, {i*256*8192}"
            srd, v = R_WQ, vP3
        return so + f"\ns_mov_b64 exec, 0xffff\nbuffer_load_dword v{vPD}, v{v}, {srd_s(srd)}, s{sT0} offen\ns_mov_b64 exec, -1"
    SRDN = dict(c=(R_C, 11), wuk=(R_WUK, 12), wuv=(R_WUV, 12), xa=(R_XA, 11), wa=(R_WQKV, 11), xb=(R_XB, 11), wq=(R_WQ, 12), wob=(R_WOB, 12))
    def lin_pf(names):
        x = f"s_lshl_b32 s{sT0}, s2, 2\ns_add_u32 s{sT0}, s{sT0}, s{sW3}\ns_lshl_b32 s{sT1}, s{sT0}, 12\ns_lshl_b32 s{sT0}, s{sT0}, 11\ns_mov_b32 exec_hi, 0\n"
        for n in names:
            srd, sh = SRDN[n]
            x += f"s_mov_b32 exec_lo, {'0xffff' if sh == 11 else '-1'}\nbuffer_load_dword v{vPD}, v{vP0}, {srd_s(srd)}, s{sT0 if sh == 11 else sT1} offen\n"
        return x + "s_mov_b64 exec, -1"
    def pf_at(role, t):
        if role != 1: return []
        out = []
        if t in CFG["lin"]:
            VMS[1].add("pf", len(CFG["lin"][t])); out.append(lin_pf(CFG["lin"][t]))
        if CFG["stag"] and t in CFG["stag"][1]:
            tbs = [i for i, x in enumerate(CFG["stag"][1]) if x == t]
            l = a.lab("stg")
            cond = f"s_cmp_lg_u32 s{sTB}, {tbs[0]}\n" if len(tbs) == 1 else f"s_lshr_b32 s{sT0}, s{sTB}, 1\ns_cmp_lg_u32 s{sT0}, {tbs[0] // 2}\n"
            out.append(cond + f"s_cbranch_scc1 {l}\n" + lin_pf(CFG["stag"][0]) + f"\n{l}:")
            VMS[1].add("pf", 0); marks[1]["pf"] = len(VMS[1].ops)
        if not CFG["prefetch"]: return out
        t0_, t1_ = CFG["pf_t0"], CFG["pf_t1"]
        L = pf_list()
        for k, (kind, i) in enumerate(L):
            if t0_ + (k * (t1_ - t0_ + 1)) // len(L) == t:
                VMS[1].add("pf"); out.append(pf_ins(kind, i))
        return out
    def conv_dma():
        vCB, vCA = t1, t2
        pre = f"""v_and_b32 v{vCB}, 0xff, v{vDW}
        v_lshrrev_b32 v{vCA}, 13, v{vDW}
        v_lshl_or_b32 v{vCB}, v{vCA}, 10, v{vCB}
        s_lshr_b32 s{sT1}, s2, 1
        s_lshl_b32 s{sT1}, s{sT1}, 15
        s_and_b32 s{sT2}, s2, 1
        s_lshl_b32 s{sT2}, s{sT2}, 9
        s_add_u32 s{sT1}, s{sT1}, s{sT2}
        v_lshrrev_b32 v{vCA}, 2, v0
        v_lshlrev_b32 v{vCA}, 10, v{vCA}
        v_and_b32 v{t4}, 3, v0
        v_lshl_or_b32 v{vCA}, v{t4}, 4, v{vCA}
        s_lshr_b32 s{sT2}, s2, 4
        s_lshl_b32 s{sT2}, s{sT2}, 1
        s_add_u32 s{sT2}, s{sT2}, s{sW3}
        s_lshl_b32 s{sT2}, s{sT2}, 14
        s_and_b32 s{sT3}, s2, 15
        s_lshl_b32 s{sT3}, s{sT3}, 6
        s_add_u32 s{sT2}, s{sT2}, s{sT3}
        s_cmp_lt_u32 s{sW3}, 2
        s_cselect_b32 s{sT2}, s{sT2}, {OOB}"""
        u = [dma_unit(sDMW, SCR + m * 8192 + hv * 4096, vCB, R_WOB, sT1, hv * 16384 + m * 256) for hv in range(2) for m in range(2)]
        u.append(dma_unit(sDM, SCR + 16384, vCA, R_WOA, sT2, 0))
        VMS[1].add("cv", 5)
        return [pre] + u
    def flag_voff(v):
        return f"""s_lshl_b32 s{sT2}, s{sHEAD}, 3
        s_lshl_b32 s{sT3}, s{sHP}, 4
        s_add_u32 s{sT3}, s{sT3}, 248
        v_mov_b32 v{v}, s{sT3}
        s_mov_b64 exec, 0xff
        v_mov_b32 v{v}, s{sT2}
        s_mov_b64 exec, 0xffffff
        v_add_u32 v{v}, v{v}, v0
        v_lshlrev_b32 v{v}, 7, v{v}
        s_mov_b32 s{sT2}, {FLG}"""
    def flag_load(dst, v):
        return flag_voff(v) + f"\nbuffer_load_dword v{dst}, v{v}, {srd_s(R_WS)}, s{sT2} offen sc1\ns_mov_b64 exec, -1"
    def poll_code(l, r, need, first_wait, new, v):
        lp, ok, tst, nf = a.lab("poll"), a.lab("pollok"), a.lab("polltst"), a.lab("pollnf")
        return f"""{l}:
        s_mov_b32 s{sCNT}, 0
        s_waitcnt vmcnt({first_wait})
        s_branch {tst}
        {lp}:
        s_sleep 2
        {flag_load(new, v)}
        s_waitcnt vmcnt(0)
        {tst}:
        v_cmp_ne_u32 vcc, v{new}, v{vSNAP}
        s_add_u32 s{sCNT}, s{sCNT}, 1
        s_and_b32 s{sT1}, vcc_lo, {need}
        s_cmp_eq_u32 s{sT1}, {need}
        s_cbranch_scc1 {ok}
        s_and_b32 s{sT2}, s{sCNT}, 63
        s_cmp_lg_u32 s{sT2}, 0
        s_cbranch_scc1 {nf}
        s_lshl_b32 s{sT2}, s{sHEAD}, 2
        s_lshl_b32 s{sT3}, s{sHP}, 2
        s_add_u32 s{sT3}, s{sT3}, 128
        s_mov_b64 exec, 1
        buffer_load_dword v{new}, off, {srd_s(R_DBG)}, s{sT2} sc1
        buffer_load_dword v{v}, off, {srd_s(R_DBG)}, s{sT3} sc1
        s_mov_b64 exec, -1
        s_waitcnt vmcnt(0)
        v_readfirstlane_b32 s{sT2}, v{new}
        v_readfirstlane_b32 s{sT3}, v{v}
        s_nop 0
        s_lshl_b32 s{sT3}, s{sT3}, 8
        s_or_b32 s{sT1}, s{sT1}, s{sT2}
        s_or_b32 s{sT1}, s{sT1}, s{sT3}
        s_and_b32 s{sT1}, s{sT1}, {need}
        s_cmp_eq_u32 s{sT1}, {need}
        s_cbranch_scc1 {ok}
        {nf}:
        s_cmp_lt_u32 s{sCNT}, {CFG['spin']}
        s_cbranch_scc1 {lp}
        {ok}:
        buffer_inv sc1
        s_branch {r}"""
    ool = []
    def st_ins(k):
        return f"s_add_u32 s{sTD2}, s{sST}, {(k // 4) * 8192}\nbuffer_store_dwordx4 {vr(192+4*k,4)}, v{vST1 if k & 1 else vST0}, {srd_s(R_WS)}, s{sTD2} offen offset:{(k>>1&1)*2048} {CFG['st_flags']}"
    def st_slot1(r, n):
        kf = [k for k, x in enumerate(CFG["fast"][r]) if x == n]; ks = [k for k, x in enumerate(CFG["slow"][r]) if x == n]
        if not kf and not ks: return None
        VMS[r].add("kvst", min(len(kf), len(ks)))
        if kf: marks[r]["fast"] = len(VMS[r].ops)
        if ks: marks[r]["slow"] = len(VMS[r].ops)
        marks[r]["nslow"] = max(ks) + 1 if ks else marks[r].get("nslow", 0)
        f = "\n".join(st_ins(k) for k in kf); s = "\n".join(st_ins(k) for k in ks)
        if kf == ks: return f
        l1, l2 = a.lab("ss"), a.lab("se")
        c = f"s_cmp_lt_u32 s{sTB}, {CFG['lvlA']}\n"
        if not ks: return c + f"s_cbranch_scc0 {l2}\n{f}\n{l2}:"
        if not kf: return c + f"s_cbranch_scc1 {l2}\n{s}\n{l2}:"
        return c + f"s_cbranch_scc1 {l1}\n{s}\ns_branch {l2}\n{l1}:\n{f}\n{l2}:"
    def st_slot(roles, n):
        x = [st_slot1(r, n) for r in roles]
        if len(roles) == 1: return [x[0]] if x[0] else []
        l1, l2 = a.lab("rs"), a.lab("re")
        return [f"s_cmp_ge_u32 s{sW}, 4\ns_cbranch_scc1 {l1}\n{x[0] or ''}\ns_branch {l2}\n{l1}:\n{x[1] or ''}\n{l2}:"]

    def part1(role):
        vm = VMS[role]
        if role == 0:
            a(f"""v_lshlrev_b32 v{vST0}, 10, v{t1}
            v_lshl_or_b32 v{vST0}, v{t2}, 9, v{vST0}
            v_bfe_u32 v{t3}, v0, 3, 1
            v_lshl_or_b32 v{vST0}, v{t3}, 8, v{vST0}
            v_and_b32 v{t3}, 7, v0
            v_lshl_or_b32 v{vST0}, v{t3}, 4, v{vST0}
            v_add_u32 v{vST1}, 128, v{vST0}
            s_add_u32 s{sST}, s{sST}, {KF}""")
        else:
            a(f"""v_lshlrev_b32 v{vST0}, 10, v{t2}
            v_lshl_or_b32 v{vST0}, v{t1}, 9, v{vST0}
            v_and_b32 v{t3}, 15, v0
            v_lshl_or_b32 v{vST0}, v{t3}, 4, v{vST0}
            v_add_u32 v{vST1}, 256, v{vST0}
            s_add_u32 s{sST}, s{sST}, {VF}""")
        if role == 0:
            l, r = a.lab("snap"), a.lab("snapr")
            a(f"s_cmp_eq_u32 s{sW}, 0\ns_cbranch_scc1 {l}\n{r}:")
            ool.append(f"{l}:\n{flag_load(vSNAP, t3)}\ns_branch {r}")
        if role == 1 and CFG["lin0"]:
            a(lin_pf(CFG["lin0"])); vm.add("pf", len(CFG["lin0"]))
        sync(role, 0)
        stamp(a, 13, [vm])
        for f in p1_reads(0): a(f)
        for t in range(CFG['n_init'], 4):
            for f in dma_stage(role, t): a(f)
        CVR = 26
        cv_t = CFG.get("cv_t", 1)
        def cv_read(k):
            if k == 4: return f"ds_read_b64_tr_b16 {vr(CVR,2)}, v{vCV[2]}\nds_read_b64_tr_b16 {vr(CVR+2,2)}, v{vCV[2]} offset:2048"
            o = (k >> 1) * 8192 + (k & 1) * 8
            return f"ds_read_b64_tr_b16 {vr(CVR,2)}, v{vCV[0]} offset:{o}\nds_read_b64_tr_b16 {vr(CVR+2,2)}, v{vCV[1]} offset:{2048+o}"
        def cv_store(k):
            vm.add("cvst")
            if k == 4:
                x = f"""s_and_b32 s{sT2}, s2, 15
                s_lshl_b32 s{sT2}, s{sT2}, 1
                s_add_u32 s{sT2}, s{sT2}, s{sW3}
                s_lshl_b32 s{sT2}, s{sT2}, 4
                s_lshr_b32 s{sT3}, s2, 4
                s_add_u32 s{sT2}, s{sT2}, s{sT3}
                s_lshl_b32 s{sT2}, s{sT2}, 10
                s_add_u32 s{sT2}, s{sT2}, {WOAF}
                s_cmp_lt_u32 s{sW3}, 2
                s_cselect_b32 s{sT2}, s{sT2}, {OOB}"""
            else:
                x = f"""s_and_b32 s{sT2}, s2, 1
                s_lshl_b32 s{sT2}, s{sT2}, 3
                s_add_u32 s{sT2}, s{sT2}, s{sW3}
                s_lshl_b32 s{sT2}, s{sT2}, 8
                s_lshr_b32 s{sT3}, s2, 1
                s_add_u32 s{sT2}, s{sT2}, s{sT3}
                s_lshl_b32 s{sT2}, s{sT2}, 10
                s_add_u32 s{sT2}, s{sT2}, {WOF + ((k >> 1) * 8 + (k & 1)) * 128 * 1024}"""
            return x + f"\nbuffer_store_dwordx4 {vr(CVR,4)}, v{vL16}, {srd_s(R_WS)}, s{sT2} offen"
        for t in range(NP1):
            if role == 1 and t == 2: stamp(a, 14, [vm])
            if role == 1 and t == 12: stamp(a, 15, [vm])
            sync(role, t + 1, marks[1]["cv"] if (role == 1 and t == cv_t + 4) else None)
            d = dma_stage(role, t + 4)
            pre = []; post = []
            if role == 1:
                if t == cv_t: d = d + conv_dma(); marks[1]["cv"] = len(vm.ops)
                k = t - (cv_t + 4)
                if k >= 0 and k % 2 == 1 and k // 2 < 5: pre = [cv_store(k // 2)]
                if k >= 0 and k % 2 == 0 and k // 2 < 5: post = [cv_read(k // 2)]
            if t + 1 < NP1: rd = p1_reads(t + 1)
            else:
                rd = [f"s_lshl_b32 s{sT0}, s{sW3}, 12\nv_add_u32 v{vTOK}, s{sT0}, v{vTKB}\nv_xor_b32 v{vW[0]}, {role*32}, v{vWB}\nv_xor_b32 v{vW[1]}, {64 + role*32}, v{vWB}\nv_xor_b32 v{vW[2]}, {128 + role*32}, v{vWB}"] + a1_reads(G_A1)
            interleave(a, p1_mfmas(role, t, first=(t == 0)), merge(rd, d + pre + pf_at(role, t)) + post)
        a("s_nop 7")
        for m in range(63, -1, -1):
            a(f"v_cvt_pk_bf16_f32 v{192+m}, v{ACC+2*m}, v{ACC+2*m+1}")
        stamp(a, 1, [vm])
        a(f"""s_lshl_b32 s{sT2}, s{sHP}, 10
        v_lshrrev_b32 v{t1}, 4, v0
        v_and_b32 v{t2}, 15, v0
        v_lshlrev_b32 v{t3}, 1, v{t2}
        v_lshl_or_b32 v{t3}, v{t1}, 7, v{t3}
        buffer_load_ushort v{vPH}, v{t3}, {srd_s(R_PHI)}, s{sT2} offen offset:{role*512}
        buffer_load_ushort v{vPH+1}, v{t3}, {srd_s(R_PHI)}, s{sT2} offen offset:{role*512+64}
        buffer_load_ushort v{vPH+2}, v{t3}, {srd_s(R_PHI)}, s{sT2} offen offset:{role*512+32}
        buffer_load_ushort v{vPH+3}, v{t3}, {srd_s(R_PHI)}, s{sT2} offen offset:{role*512+96}""")
        vm.add("phi", 4)
        cst = [f"v_lshlrev_b32 v{t1}, 2, v{t1}\nv_sub_u32 v{t1}, v{t2}, v{t1}\nv_mov_b32 v{t2}, 0x3f80\nv_mov_b32 v{t3}, 0x3f800000"]
        for j in range(2):
            cst.append(f"v_cmp_eq_u32 vcc, {2*j}, v{t1}\nv_mov_b32 v{SEL+2+j}, 0\nv_mov_b32 v{SEL+4+j}, 0\nv_cndmask_b32 v{SEL+j}, 0, v{t2}, vcc")
            cst.append(f"v_cmp_eq_u32 vcc, {2*j+1}, v{t1}\nv_mov_b32 v{ONES+2*j}, 0x3f803f80\nv_mov_b32 v{ONES+2*j+1}, 0x3f803f80\nv_cndmask_b32 v{SEL+j}, v{SEL+j}, v{t3}, vcc")
        cst.append(f"v_mov_b32 v{SEL+6}, v{SEL}\nv_mov_b32 v{SEL+7}, v{SEL+1}")
        for t in range(G_A1, G_P2):
            s = t - G_A1
            sync(role, t + 1)
            d = dma_stage(role, t + 4)
            ex = []
            ex += st_slot([role], s)
            if 1 <= s <= 6: ex.append(cst[s - 1])
            rd = a1_reads(t + 1) if t + 1 < G_P2 else []
            interleave(a, a1_mfmas(t, t == G_A1), merge(rd, d + ex + pf_at(role, t)))
        stamp(a, 2, [vm])
        a(f"s_waitcnt vmcnt({min(vm.n_after('phi'), vm.n_after('pf') if vm.has('pf') else 63)})")
        assert role == 0 or "pf" not in marks[1] or len(vm.ops) - marks[1]["pf"] >= vm.n_after('phi')
    part1(0)
    a("s_branch a1_epi\nstream_s:")
    part1(1)
    a("a1_epi:")
    vSP = 124
    stn = [8]
    def epi_store():
        for x in st_slot([0, 1], stn[0]): a(x)
        stn[0] += 1
    L2E = f32(math.log2(math.e))
    a(f"s_mov_b32 s{sSCL}, {L2E}")
    a(f"v_lshl_or_b32 v{vPH}, v{vPH+2}, 16, v{vPH}\nv_lshl_or_b32 v{vPH+1}, v{vPH+3}, 16, v{vPH+1}")
    epi_store()
    a("s_nop 2")
    B = 32
    QB, KB_, VB = B, B + 4, B + 8
    for T in range(2):
        for j in range(2):
            a(f"v_cvt_pk_bf16_f32 v{QB+2*T+j}, v{AQ+4*T+2*j}, v{AQ+4*T+2*j+1}")
            a(f"v_cvt_pk_bf16_f32 v{KB_+2*T+j}, v{AK+4*T+2*j}, v{AK+4*T+2*j+1}")
    PP = B + 12
    a("s_nop 1")
    for i in range(4):
        a(f"v_mfma_f32_16x16x16_bf16 {vr(PP+4*i,4)}, {vr(vPH,2)}, {vr(QB+2*i,2)}, 0")
    for T in range(2):
        for j in range(2):
            a(f"v_cvt_pk_bf16_f32 v{VB+2*T+j}, v{AV+4*T+2*j}, v{AV+4*T+2*j+1}")
    a(f"s_lshl_b32 s{sT0}, s{sW}, 11\nv_add_u32 v{vTOK}, s{sT0}, v{vTKB}\nv_mov_b32 v{vW[0]}, v{vWB}")
    for b in range(1, 8): a(f"v_xor_b32 v{vW[b]}, {b*32}, v{vWB}")
    MX = B + 40; EX = B + 56
    for i in range(4):
        p = PP + 4 * i
        a(f"v_max3_f32 v{MX+2*i}, v{p}, v{p+1}, v{p+2}\nv_max3_f32 v{MX+2*i+1}, -v{p}, -v{p+1}, -v{p+2}")
    for i in range(4):
        p = PP + 4 * i
        a(f"v_max_f32 v{MX+2*i}, v{MX+2*i}, v{p+3}\nv_max_f32_e64 v{MX+2*i+1}, v{MX+2*i+1}, -v{p+3}")
    def xreduce(op, mid):
        a("s_nop 1")
        for i in range(4): a(f"v_permlane32_swap_b32 v{MX+2*i}, v{MX+2*i+1}")
        for i in range(4): a(f"{op} v{MX+2*i}, v{MX+2*i}, v{MX+2*i+1}")
        a("s_nop 1")
        for i in range(2): a(f"v_permlane16_swap_b32 v{MX+4*i}, v{MX+4*i+2}")
        a("s_nop 0")
        for i in range(2): a(f"{op} v{MX+4*i}, v{MX+4*i}, v{MX+4*i+2}")
        for i in range(2): a(mid(MX + 4 * i))
        a("s_nop 0")
        for i in range(2): a(f"v_mov_b32 v{MX+4*i+2}, v{MX+4*i}")
        a("s_nop 1")
        for i in range(2): a(f"v_permlane16_swap_b32 v{MX+4*i}, v{MX+4*i+2}")
        a("s_nop 0")
        for i in range(4): a(f"v_mov_b32 v{MX+2*i+1}, v{MX+2*i}")
        a("s_nop 1")
        for i in range(4): a(f"v_permlane32_swap_b32 v{MX+2*i}, v{MX+2*i+1}")
        a("s_nop 0")
    epi_store()
    xreduce("v_max_f32", lambda r: f"v_mul_f32 v{r}, s{sSCL}, v{r}")
    epi_store()
    for i in range(4):
        p = PP + 4 * i
        for r in range(4):
            a(f"v_fma_f32 v{EX+8*i+r}, v{p+r}, s{sSCL}, -v{MX+2*i}\nv_fma_f32 v{EX+8*i+4+r}, -v{p+r}, s{sSCL}, -v{MX+2*i+1}")
    epi_store()
    for r in range(32): a(f"v_exp_f32 v{EX+r}, v{EX+r}")
    epi_store()
    for i in range(8):
        e = EX + 4 * i
        a(f"v_add_f32 v{MX+i}, v{e}, v{e+1}\nv_add_f32 v{PP+i}, v{e+2}, v{e+3}")
    for i in range(8): a(f"v_add_f32 v{MX+i}, v{MX+i}, v{PP+i}")
    xreduce("v_add_f32", lambda r: f"v_rcp_f32 v{r}, v{r}")
    epi_store()
    for i in (4, 5, 6, 7):
        for r in range(4): a(f"v_mul_f32 v{EX+4*i+r}, v{EX+4*i+r}, v{MX+i}")
    PHK = B + 12
    for T in range(2):
        for j in range(4):
            a(f"v_cvt_pk_bf16_f32 v{PHK+4*T+j}, v{EX+16+8*T+2*j}, v{EX+16+8*T+2*j+1}")
    a("s_nop 1")
    TR = EX + 16
    for sg in range(2):
        for T in range(2):
            a(mfma16(TR + 8 * sg + 4 * T, PHK + 4 * T, SEL + 4 * sg, "0"))
    for i in (0, 1, 2, 3):
        for r in range(4): a(f"v_mul_f32 v{EX+4*i+r}, v{EX+4*i+r}, v{MX+i}")
    PKT = B + 20
    for sg in range(2):
        for j in range(4):
            a(f"v_cvt_pk_bf16_f32 v{PKT+4*sg+j}, v{TR+8*sg+2*j}, v{TR+8*sg+2*j+1}")
    a("s_nop 1")
    KVZ = 128
    for sg in range(2):
        a(mfma16(KVZ + 4 * sg, PKT + 4 * sg, VB, "0"))
        a(mfma16(KVZ + 8 + 4 * sg, PKT + 4 * sg, ONES, "0"))
    for T in range(2):
        for j in range(4):
            a(f"v_cvt_pk_bf16_f32 v{vPHIQ+4*T+j}, v{EX+8*T+2*j}, v{EX+8*T+2*j+1}")
    epi_store()
    a(f"s_lshl_b32 s{sT0}, s{sW}, 12\ns_add_u32 s{sT0}, s{sT0}, {SCR}\nv_add_u32 v{t1}, s{sT0}, v{vL16}")
    for qd in range(4): a(f"ds_write_b128 v{t1}, {vr(KVZ+4*qd,4)} offset:{qd*1024}")
    for f in p2_reads(G_P2): a(f)
    a(f"""s_lshr_b32 s{sT0}, s{sW}, 2
    s_lshl_b32 s{sT0}, s{sT0}, 14
    s_lshl_b32 s{sT1}, s{sW3}, 10
    s_add_u32 s{sT0}, s{sT0}, s{sT1}
    s_add_u32 s{sT0}, s{sT0}, {SCR}
    v_add_u32 v{t1}, s{sT0}, v{vL16}
    s_lshl_b32 s{sT0}, s{sHP}, 1
    s_lshr_b32 s{sT2}, s{sW}, 2
    s_add_u32 s{sT0}, s{sT0}, s{sT2}
    s_lshl_b32 s{sT0}, s{sT0}, 4
    s_add_u32 s{sT0}, s{sT0}, s{sTBA}
    s_lshl_b32 s{sT0}, s{sT0}, 12
    s_add_u32 s{sT0}, s{sT0}, s{sT1}
    s_add_u32 s{sT0}, s{sT0}, {KVP}""")
    epi_store()
    assert stn[0] == 16
    stamp(a, 3, VMS)
    a(f"s_cmp_ge_u32 s{sW}, 4\ns_cbranch_scc1 p2_s")

    def att_dma_parts():
        pre = f"""s_cmp_le_u32 s{sDST}, s{sTMAX}
        s_cselect_b32 s{sDK}, s{sKO}, {OOB}
        s_cselect_b32 s{sDV}, s{sVO}, {OOB}
        s_mov_b32 m0, s{sDSL}
        s_add_u32 s{sKO}, s{sKO}, 16384"""
        ld = [f"buffer_load_dwordx4 v{vL16}, {srd_s(R_WS)}, s{sDK} offen offset:{i*1024} lds" for i in range(4)] + \
             [f"buffer_load_dwordx4 v{vL16}, {srd_s(R_WS)}, s{sDV} offen offset:{i*1024} lds" for i in range(4)]
        ld[4] = f"s_add_u32 m0, s{sDSL}, 16384\ns_add_u32 s{sVO}, s{sVO}, 16384\n" + ld[4]
        post = f"""s_add_u32 s{sDST}, s{sDST}, 1
        s_add_u32 s{sDSL}, s{sDSL}, {SLOT}
        s_cmp_ge_u32 s{sDSL}, {5*SLOT}
        s_cselect_b32 s{sDSL}, s{sLD}, s{sDSL}"""
        if CFG.get("nodma"): ld = ["s_nop 0"] * 8
        return pre, ld, post
    def att_dma():
        pre, ld, post = att_dma_parts()
        a(pre)
        for x in ld: a(x)
        a(post)
    PL = 192
    KR_ = 112
    def part2(role):
        vm = VMS[role]
        npl = [0]
        for t in range(G_P2, G_END):
            s = t - G_P2
            cover = None
            if s == CFG["s_pf"]: cover = max(marks[role]["fast"], marks[role]["pst"])
            if s == CFG["s_ps"]: cover = marks[role]["slow"]; assert max(CFG["slow"][role]) - 16 < s
            if role == 0 and s == CFG["s_go"] and not CFG.get("nopoll"): cover = marks[0]["inv"]
            if role == 0 and s == CFG["s_chk"] and not CFG.get("nopoll"):
                l, r = a.lab("chk"), a.lab("chkr")
                a(f"s_cmp_eq_u32 s{sW}, 0\ns_cbranch_scc1 {l}\n{r}:")
                ool.append(poll_code(l, r, 0xffff00 | ((1 << CFG["lvlA"]) - 1), len(vm.ops) - marks[0]["fl"], t3, t4))
                marks[0]["inv"] = len(vm.ops)
            sync(role, t + 1, cover)
            if role == 0 and s in (CFG["s_pf"], CFG["s_ps"]):
                l, r = a.lab("pub"), a.lab("pubr")
                a(f"s_cmp_eq_u32 s{sW}, 0\ns_cbranch_scc1 {l}\n{r}:")
                x = f"{l}:\n{flag_voff(t4)}\nv_add_u32 v{t2}, 1, v{vSNAP}\ns_lshl_b32 s{sT3}, 1, s{sTB}\ns_cmp_lt_u32 s{sTB}, {CFG['lvlA']}\n"
                if s == CFG["s_pf"]:
                    x += f"s_cselect_b32 s{sT3}, s{sT3}, 0\ns_lshl_b32 s{sTD}, 0x100, s{sTBA}\ns_or_b32 exec_lo, s{sT3}, s{sTD}\n"
                    x += f"buffer_store_dword v{t2}, v{t4}, {srd_s(R_WS)}, s{sT2} offen sc1\ns_mov_b64 exec, -1\ns_branch {r}"
                else:
                    sk = a.lab("pubs")
                    x += f"s_cbranch_scc1 {sk}\ns_mov_b32 exec_lo, s{sT3}\nbuffer_store_dword v{t2}, v{t4}, {srd_s(R_WS)}, s{sT2} offen sc1\n{sk}:\ns_mov_b64 exec, -1\ns_branch {r}"
                ool.append(x)
            if role == 0 and s == CFG["s_pl"] and not CFG.get("nopoll"):
                l, r = a.lab("fl"), a.lab("flr")
                a(f"s_cmp_eq_u32 s{sW}, 0\ns_cbranch_scc1 {l}\n{r}:")
                ool.append(f"{l}:\n{flag_load(t3, t4)}\ns_branch {r}")
                marks[0]["fl"] = len(vm.ops)
            pre = []
            if s == 0: pre = [f"ds_read_b128 {vr((72, 76, 120, 124)[i],4)}, v{t1} offset:{i*4096}" for i in range(4)]
            d = dma_stage(role, t + 4)
            rd = p2_reads(t + 1) if t + 1 < G_END else []
            ex = st_slot([role], 16 + s)
            if s == 1:
                c2 = 120
                x = "\n".join(f"v_add_f32 v{72+r}, v{72+r}, v{76+r}\nv_add_f32 v{c2+r}, v{c2+r}, v{124+r}" for r in range(4))
                x += "\n" + "\n".join(f"v_add_f32 v{72+r}, v{72+r}, v{c2+r}" for r in range(4))
                x += f"\nbuffer_store_dwordx4 {vr(72,4)}, v{vL16}, {srd_s(R_WS)}, s{sT0} offen sc1"
                ex.append(x); vm.add("pst"); marks[role]["pst"] = len(vm.ops)
            if s == CFG["s_go"]:
                ex.append(f"""s_lshl_b32 s{sT0}, s{sHP}, 17
                s_lshl_b32 s{sT1}, s{sW3}, 10
                s_add_u32 s{sT0}, s{sT0}, s{sT1}
                s_add_u32 s{sT0}, s{sT0}, {KVP + role * 65536}
                s_cmp_lt_u32 s{sW3}, 2
                s_cselect_b32 s{sT1}, -1, 0x300
                v_and_b32 v{t1}, s{sT1}, v{vL16}""")
            nd = {CFG["s_go"]: 1, 13: 1, 15: 2}.get(s, 0) if role == 1 else 0
            assert CFG["s_go"] < 13
            if s >= CFG["s_go"]:
                left = 15 - s
                k = 16 - npl[0] if left <= 1 else min(16 - npl[0], 6 if role == 0 else 3)
                k = min(k, marks[role]["nslow"] - npl[0])
                for i in range(npl[0], npl[0] + k):
                    ex.append(f"buffer_load_dwordx4 {vr(PL+4*i,4)}, v{t1}, {srd_s(R_WS)}, s{sT0} offen\ns_add_u32 s{sT0}, s{sT0}, 4096")
                    vm.add("pl")
                npl[0] += k
            for i in range(nd):
                p_, ld, post = att_dma_parts()
                ex += [p_] + ld + [post]; vm.add("adma", 8)
            interleave(a, p2_mfmas(t, t == G_P2), pre + merge(rd, d + ex))
        assert npl[0] == 16
        stamp(a, 4, [vm])
    part2(0)
    a("s_branch q_epi\np2_s:")
    part2(1)
    a("q_epi:")
    if CFG.get("trace"):
        a(f"s_waitcnt lgkmcnt(0)\nv_writelane_b32 v23, s86, {G_END - G_A1}\ns_lshl_b32 s94, s2, 3\ns_add_u32 s94, s94, s{sW}\ns_lshl_b32 s94, s94, 9\ns_add_u32 s94, s94, {STAMP + 0x100000}\nv_lshlrev_b32 v21, 2, v0")
        a(f"buffer_store_dword v23, v21, {srd_s(R_WS)}, s94 offen offset:256\ns_nop 2")
    vSP = 22
    Q = 32
    vLs = (3, 4)
    vE = [5, 6, 7, 8, 9, 10]
    vM, vM2, vD, vNINF = 11, 12, 13, 14
    O, S, NEG, P, KR, VR = 64, (128, 144), 160, (176, 184), 192, 224
    a(f"s_mov_b32 s{sSCL}, {f32(math.log2(math.e) / math.sqrt(128.0))}")
    for r in range(16):
        c = 16 * ((r // 4) % 2) + 8 * (r // 8) + r % 4
        m = sum(1 << l for l in range(64) if c > (l % 32) - 4 * (l // 32))
        a(f"s_mov_b32 s{sMASK+2*r}, {hex(m & 0xffffffff)}\ns_mov_b32 s{sMASK+2*r+1}, {hex(m >> 32)}")
    nl2 = a.lab("w_s"); nl3 = a.lab("w_d")
    a(f"s_cmp_ge_u32 s{sW}, 4\ns_cbranch_scc1 {nl2}\ns_waitcnt vmcnt({VMS[0].n_after('pl')})\n{nl2}:\ns_waitcnt vmcnt({VMS[1].n_after('pl')})")
    for st in (8, 4, 2, 1):
        for i in range(st):
            for r in range(4): a(f"v_add_f32 v{PL+4*i+r}, v{PL+4*i+r}, v{PL+4*(i+st)+r}")
    a(f"v_cvt_pk_bf16_f32 v{O+4}, v{PL}, v{PL+1}\nv_cvt_pk_bf16_f32 v{O+5}, v{PL+2}, v{PL+3}")
    a(f"""s_lshr_b32 s{sT0}, s{sW}, 1
    s_lshl_b32 s{sT0}, s{sT0}, 10
    s_and_b32 s{sT1}, s{sW}, 1
    s_lshl_b32 s{sT1}, s{sT1}, 3
    s_add_u32 s{sT0}, s{sT0}, s{sT1}
    s_add_u32 s{sT0}, s{sT0}, {3*SLOT}
    v_add_u32 v{vKV}, s{sT0}, v{vL16}
    ds_write_b64 v{vKV}, {vr(O+4,2)}
    s_lshr_b32 s{sT0}, s{sW}, 2
    s_lshl_b32 s{sT0}, s{sT0}, 11
    s_add_u32 s{sT0}, s{sT0}, {3*SLOT}
    v_add_u32 v{vKV}, s{sT0}, v{vL16}
    v_add_u32 v{vM}, {4*SLOT}, v{vL16}""")
    a("s_waitcnt vmcnt(24) lgkmcnt(0)\ns_barrier")
    a(f"ds_read_b128 {vr(O+8,4)}, v{vKV}\nds_read_b128 {vr(O+12,4)}, v{vKV} offset:1024")
    for c in range(8): a(f"ds_read_b128 {vr(KR+4*c,4)}, v{vM} offset:{c*1024}")
    for r in range(64): a(f"v_mul_f32 v{128+r}, s{sSCL}, v{128+r}")
    a("s_waitcnt lgkmcnt(8)")
    for T in range(2):
        a(mfma16(O + 16 + 8 * T, O + 8, vPHIQ + 4 * T, "0"))
        a(mfma16(O + 20 + 8 * T, O + 12, vPHIQ + 4 * T, "0"))
    for m in range(32): a(f"v_cvt_pk_bf16_f32 v{Q+m}, v{128+2*m}, v{128+2*m+1}")
    a(f"v_mov_b32 v{vNINF}, 0xff800000\ns_nop 0")
    for i in range(4):
        for r in range(4): a(f"v_permlane16_swap_b32 v{Q+8*i+r}, v{Q+8*i+4+r}")
    stamp(a, 5)
    a(f"""s_lshl_b32 s{sT0}, s{sTBA}, 3
    s_lshl_b32 s{sT1}, s{sW3}, 1
    s_add_u32 s{sT0}, s{sT0}, s{sT1}
    s_lshl_b32 s{sT0}, s{sT0}, 4
    s_add_u32 s{sT0}, s{sT0}, s{sHP}
    s_lshl_b32 s{sT0}, s{sT0}, 10
    s_lshr_b32 s{sT1}, s{sW}, 2
    s_lshl_b32 s{sT1}, s{sT1}, 3
    s_add_u32 s{sT0}, s{sT0}, s{sT1}
    s_add_u32 s{sT0}, s{sT0}, {OAF}
    s_add_u32 s{sT1}, s{sT0}, 16384""")
    a("s_waitcnt lgkmcnt(0)")
    fill = []
    for T in range(2):
        n, d = O + 16 + 8 * T, O + 20 + 8 * T
        fill.append(f"v_add_f32 v{d}, {f32(1e-6)}, v{d}\nv_rcp_f32 v{d}, v{d}")
        fill.append("\n".join(f"v_mul_f32 v{n+r}, v{n+r}, v{d}" for r in range(4)))
        fill.append(f"v_cvt_pk_bf16_f32 v{vPHIQ+2*T}, v{n}, v{n+1}\nv_cvt_pk_bf16_f32 v{vPHIQ+2*T+1}, v{n+2}, v{n+3}\nbuffer_store_dwordx2 {vr(vPHIQ+2*T,2)}, v{vL16}, {srd_s(R_WS)}, s{sT0+T} offen")
    fill += ["\n".join(f"v_mov_b32 v{O+32+r}, 0" for r in range(6)), "\n".join(f"v_mov_b32 v{O+38+r}, 0" for r in range(6))]
    for c in range(8):
        a(mfma32(S[0], KR + 4 * c, Q + 4 * c, "0" if c == 0 else None))
        a(f"ds_read_b128 {vr(KR+4*c,4)}, v{vM} offset:{8192+c*1024}")
        a(fill[c])
    for r in list(range(32)) + list(range(44, 64)): a(f"v_mov_b32 v{O+r}, 0")
    stamp(a, 6)
    def mask_op(s, r): return f"v_cndmask_b32 v{s+r}, v{s+r}, v{vNINF}, s[{sMASK+2*r}:{sMASK+2*r+1}]"
    def rowmax(s):
        a(f"v_max3_f32 v{vM}, v{s}, v{s+1}, v{s+2}")
        for r in range(3, 15, 2): a(f"v_max3_f32 v{vM}, v{vM}, v{s+r}, v{s+r+1}")
        a(f"v_max_f32 v{vM}, v{vM}, v{s+15}\nv_mov_b32 v{vM2}, v{vM}\ns_nop 1\nv_permlane32_swap_b32 v{vM}, v{vM2}\ns_nop 1\nv_max_f32 v{vM}, v{vM}, v{vM2}")
    nm = a.lab("nomask0")
    a(f"s_cmp_lg_u32 s{sG}, 0\ns_cbranch_scc1 {nm}")
    for r in range(16): a(mask_op(S[0], r))
    a(f"{nm}:")
    rowmax(S[0])
    a(f"v_sub_f32 v{NEG}, {f32(-CFG['bias'])}, v{vM}")
    for r in range(1, 16): a(f"v_mov_b32 v{NEG+r}, v{NEG}")
    for r in range(16): a(f"v_add_f32 v{S[0]+r}, v{S[0]+r}, v{NEG}")
    a(f"v_mov_b32 v{vLs[1]}, 0\ns_mov_b32 s{sSLOT}, {4*SLOT}\ns_mov_b32 s{sREM}, s{sG}\ns_mov_b32 s{sSTG}, 0\ns_mov_b32 s98, 0")

    slot_adv = f"s_add_u32 s{sSLOT}, s{sSLOT}, {SLOT}\ns_cmp_ge_u32 s{sSLOT}, {5*SLOT}\ns_cselect_b32 s{sSLOT}, 0, s{sSLOT}\ns_add_u32 s{sSTG}, s{sSTG}, 1"
    kv_adv = f"v_add_u32 v{vKV}, s{sSLOT}, v{vL16}"
    def bar(vmn):
        w = f"s_waitcnt vmcnt({vmn})\n" if vmn is not None else ""
        if CFG.get("bartime"):
            a(f"s_waitcnt lgkmcnt(0)\ns_memtime s[94:95]\ns_waitcnt lgkmcnt(0)\n{w}s_barrier\ns_memtime s[96:97]\ns_waitcnt lgkmcnt(0)\ns_sub_u32 s96, s96, s94\ns_add_u32 s98, s98, s96")
        elif CFG.get("nobar"): pass
        else: a(w + "s_barrier")
    def gen_sync(vmn=16):
        a(slot_adv); a(kv_adv)
        bar(vmn)
        nl = a.lab("nold")
        a(f"s_cmp_lt_u32 s{sW}, 4\ns_cbranch_scc1 {nl}")
        att_dma()
        a(f"{nl}:")
    def cond_sync(vmn=16):
        sk = a.lab("nosync")
        a(f"s_cmp_ge_u32 s{sSTG}, s{sTMAX}\ns_cbranch_scc1 {sk}")
        gen_sync(vmn)
        a(f"{sk}:")
    EG = [0, 0, 1, 2, 3, 4, 5, 6, 6, 7, 8, 9, 10, 11, 12, 13]
    def sm_ops(p, masked=False):
        s = S[p]; g = [[] for _ in range(16)]; pre = []
        NE = len(vE)
        for m in range(16):
            g[EG[m]].append(f"v_exp_f32 v{vE[m%NE]}, v{s+m}")
        for m in range(16):
            src = vLs[1 - p] if m == 0 else vLs[p]
            g[EG[m] + 1].append(f"v_add_f32 v{vLs[p]}, v{src}, v{vE[m%NE]}")
        for k in range(8):
            g[EG[2 * k + 1] + 1].append(f"v_cvt_pk_bf16_f32 v{P[p]+k}, v{vE[(2*k)%NE]}, v{vE[(2*k+1)%NE]}")
        if masked:
            for m in range(16):
                if EG[m] == 0: pre.append(mask_op(s, m))
                else: g[EG[m] - 1].append(mask_op(s, m))
        return pre, g
    rets = []
    def body(p, qk=True, pv=True, sm=True, vrd=True, w0=8, w1=8, masked=False, extra=None):
        pre, g = sm_ops(p, masked) if sm else ([], [[] for _ in range(16)])
        chk = sm and not CFG.get("nochk")
        if chk:
            r = a.lab("ret"); rets.append((p, r))
            g[14].insert(len(g[14]) - 1, f"v_cmp_nge_f32 vcc, s{sTHR}, v{vLs[p]}")
            g[14].append(f"s_mov_b32 s{sRET}, {len(rets)-1}")
        for k, x in (extra or {}).items(): g[k] += x
        for x in pre: a(x)
        for m in range(8):
            if m == 0: a(f"s_waitcnt lgkmcnt({w0})")
            if m == 4: a(f"s_waitcnt lgkmcnt({w1})")
            t, u = m % 4, m // 4
            f = 2 * t + u
            if qk:
                a(mfma32(S[1 - p], KR + 4 * m, Q + 4 * m, vr(NEG, 16) if m == 0 else None))
                a(f"ds_read_b128 {vr(KR+4*m,4)}, v{vKV} offset:{p*8192+m*1024}")
            for x in g[2 * m]: a(x)
            if pv: a(mfma32(O + 16 * t, VR + 4 * f, P[1 - p] + 4 * u))
            if vrd: a(f"ds_read_b128 {vr(VR+4*f,4)}, v{vKV} offset:{16384+p*8192+f*1024}")
            for x in g[2 * m + 1]: a(x)
        if chk: a(f"s_cbranch_vccnz rare{p}\n{r}:")
    l, r = a.lab("fb"), a.lab("fbr")
    a(f"s_cmp_eq_u32 s{sW}, 1\ns_cbranch_scc1 {l}\n{r}:")
    ool.append(f"""{l}:
    s_lshl_b32 s{sT0}, 1, s{sTB}
    s_lshl_b32 s{sT1}, 1, s{sTBA}
    v_mov_b32 v{t1}, s{sT0}
    v_mov_b32 v{t2}, s{sT1}
    s_lshl_b32 s{sT2}, s{sHEAD}, 2
    s_lshl_b32 s{sT3}, s{sHP}, 2
    s_add_u32 s{sT3}, s{sT3}, 128
    s_mov_b64 exec, 1
    buffer_atomic_or v{t1}, off, {srd_s(R_DBG)}, s{sT2} sc1
    buffer_atomic_or v{t2}, off, {srd_s(R_DBG)}, s{sT3} sc1
    s_mov_b64 exec, -1
    s_branch {r}""")
    a("s_waitcnt lgkmcnt(0)")
    gen_sync()
    a(f"s_cmp_eq_u32 s{sG}, 0\ns_cbranch_scc1 att_g0")
    body(0, pv=False)
    a(f"s_cmp_eq_u32 s{sREM}, 1\ns_cbranch_scc1 att_last_odd")
    a(f"s_cmp_ge_u32 s{sW}, 4\ns_cbranch_scc1 att_loop1")
    HB = 4 * CFG["lvlA"] - 5
    for role in range(2):
        a(f"att_loop{role}:")
        body(1, extra={13: [f"s_sub_u32 s{sREM}, s{sREM}, 2"], 14: [slot_adv], 15: [kv_adv]})
        if role == 0: a(f"s_cmp_le_u32 s{sSTG}, {HB+2 if not CFG.get('nopoll') else 0}\ns_cbranch_scc1 lvlb\nlvlb_ret:")
        bar(16 if role else None)
        a(f"s_cmp_eq_u32 s{sREM}, 0\ns_cbranch_scc1 att_last_even{role}")
        ex = {}
        if role:
            pre, ld, post = att_dma_parts()
            ex = {k: [] for k in range(16)}
            ex[0].append(pre)
            for i in range(8): ex[[2, 3, 4, 5, 8, 9, 10, 11][i]].append(ld[i])
            ex[15].append(post)
        body(0, extra=ex)
        a(f"s_cmp_lg_u32 s{sREM}, 1\ns_cbranch_scc1 att_loop{role}\ns_branch att_last_odd")
    a("att_g0:")
    body(0, qk=False, pv=False)
    a("s_branch att_fin_odd")
    a("att_last_even1:")
    att_dma()
    a("att_last_even0:")
    a("s_nop 3")
    body(0, qk=False, w1=4, masked=True)
    a("att_fin_odd:")
    a(f"v_mov_b32 v{vD}, v{vLs[0]}")
    body(1, qk=False, sm=False, vrd=False, w0=0, w1=0)
    cond_sync()
    a("s_branch att_done")
    a("att_last_odd:")
    a("s_nop 3")
    body(1, qk=False, w1=4, masked=True)
    a("s_waitcnt lgkmcnt(0)")
    cond_sync()
    a(f"v_mov_b32 v{vD}, v{vLs[1]}")
    body(0, qk=False, sm=False, vrd=False, w0=0, w1=0)
    a("att_done:")
    stamp(a, 7)
    if CFG.get("bartime"):
        a(f"s_getreg_b32 s99, hwreg(HW_REG_HW_ID)\nv_mov_b32 v{vSP}, s98\nv_mov_b32 v{vSP+1}, s99\nbuffer_store_dwordx2 v[{vSP}:{vSP+1}], off, {srd_s(R_WS)}, s{sSTAMP} offset:16")
    a(f"v_mov_b32 v{vM}, v{vD}\ns_nop 1\nv_permlane32_swap_b32 v{vM}, v{vD}\ns_nop 1\nv_add_f32 v{vD}, v{vD}, v{vM}\nv_rcp_f32 v{vD}, v{vD}")
    a(f"""v_bfe_u32 v{vM}, v0, 4, 1
    v_lshlrev_b32 v{vM}, 17, v{vM}
    v_lshrrev_b32 v{vM2}, 5, v0
    v_lshl_or_b32 v{vM}, v{vM2}, 8, v{vM}
    v_and_b32 v{vM2}, 15, v0
    v_lshl_or_b32 v{vM}, v{vM2}, 4, v{vM}
    s_lshl_b32 s{sT0}, s{sG}, 18
    s_lshl_b32 s{sT1}, s{sHEAD}, 12
    s_add_u32 s{sT0}, s{sT0}, s{sT1}
    s_add_u32 s{sT0}, s{sT0}, {CTX}""")
    for t in range(4):
        for c in range(2):
            b = O + 16 * t + 8 * c; d = KR + 4 * (2 * t + c)
            for r in range(8): a(f"v_mul_f32 v{b+r}, v{b+r}, v{vD}")
            for j in range(4): a(f"v_cvt_pk_bf16_f32 v{d+j}, v{b+2*j}, v{b+2*j+1}")
            a(f"buffer_store_dwordx4 {vr(d,4)}, v{vM}, {srd_s(R_WS)}, s{sT0} offen offset:{t*1024+c*512} {CFG['ctx_flags']}")
    a(f"s_mov_b32 s{sCNT}, 0\nidle24:")
    a(f"s_cmp_ge_u32 s{sSTG}, s{sTMAX}\ns_cbranch_scc1 ka_fin")
    gen_sync(24)
    a(f"s_add_u32 s{sCNT}, s{sCNT}, 1\ns_cmp_lt_u32 s{sCNT}, 3\ns_cbranch_scc1 idle24")
    a("idle16:")
    a(f"s_cmp_ge_u32 s{sSTG}, s{sTMAX}\ns_cbranch_scc1 ka_fin")
    gen_sync(16)
    a("s_branch idle16")
    a("ka_fin:")
    if CFG["stamps"]: a("s_waitcnt vmcnt(0)")
    stamp(a, 8)
    a(f"{END}:\ns_endpgm")
    a(f"""lvlb:
    s_cmp_lg_u32 s{sW}, 0
    s_cbranch_scc1 lvlb_ret
    s_cmp_eq_u32 s{sSTG}, {HB+1}
    s_cbranch_scc1 lvlb_chk
    s_cmp_eq_u32 s{sSTG}, {HB+2}
    s_cbranch_scc1 lvlb_wait
    s_cmp_lg_u32 s{sSTG}, {HB}
    s_cbranch_scc1 lvlb_ret
    {flag_load(t3, t4)}
    s_branch lvlb_ret
    lvlb_wait:
    s_waitcnt vmcnt(0)
    s_branch lvlb_ret""")
    a(poll_code("lvlb_chk", "lvlb_ret", 0xff, 0, t3, t4))
    for x in ool: a(x)
    for p in range(2):
        mine = [(i, r) for i, (pp, r) in enumerate(rets) if pp == p]
        if not mine: continue
        a(f"rare{p}:")
        a("s_nop 11")
        rowmax(S[p])
        a(f"v_add_f32 v{vD}, {f32(CFG['bias'])}, v{vM}\nv_max_f32 v{vD}, 0, v{vD}\nv_sub_f32 v{vM}, 0, v{vD}\nv_exp_f32 v{vM}, v{vM}")
        for r in range(16):
            a(f"v_sub_f32 v{S[0]+r}, v{S[0]+r}, v{vD}\nv_sub_f32 v{S[1]+r}, v{S[1]+r}, v{vD}\nv_sub_f32 v{NEG+r}, v{NEG+r}, v{vD}")
        for r in range(64): a(f"v_mul_f32 v{O+r}, v{O+r}, v{vM}")
        a(f"v_mul_f32 v{vLs[1-p]}, v{vLs[1-p]}, v{vM}")
        for grp in sm_ops(p)[1]:
            for x in grp: a(x)
            a("s_nop 0")
        a("s_nop 1")
        for i, r in mine[:-1]:
            a(f"s_cmp_eq_u32 s{sRET}, {i}\ns_cbranch_scc1 {r}")
        a(f"s_branch {mine[-1][1]}")
    a.kernel_end(K, denorm=CFG["denorm"])

def gen_KB(a):
    global vSP
    vSP = 22
    K = "kb_kernel"
    a.kernel_begin(K, 256, 256, 128 * 1024)
    END = "kb_end"
    R_OUT = 12
    a(f"s_cmp_ge_u32 s2, 256\ns_cbranch_scc1 {END}")
    a(f"s_load_dwordx2 s[{R_WS}:{R_WS+1}], s[0:1], 96\ns_load_dwordx2 s[{R_OUT}:{R_OUT+1}], s[0:1], 80")
    a(f"v_lshrrev_b32 v1, 6, v0\nv_and_b32 v0, 63, v0\nv_readfirstlane_b32 s{sW}, v1\nv_lshlrev_b32 v1, 4, v0")
    a(f"s_mov_b32 s{R_WS+2}, {WS_BYTES}\ns_mov_b32 s{R_WS+3}, 0x20000\ns_mov_b32 s{R_OUT+2}, {4<<20}\ns_mov_b32 s{R_OUT+3}, 0x20000")
    sRB, sCB = 4, 5
    sX = [30 + i for i in range(4)]; sY = [34 + i for i in range(4)]
    sXB = [38 + i for i in range(4)]; sYB = [42 + i for i in range(4)]
    a(f"""s_and_b32 s{sT0}, s2, 7
    s_lshr_b32 s{sT1}, s2, 3
    s_lshl_b32 s{sRB}, s{sT0}, 2
    s_and_b32 s{sT2}, s{sT1}, 3
    s_add_u32 s{sRB}, s{sRB}, s{sT2}
    s_lshr_b32 s{sCB}, s{sT1}, 2""")
    a(f"s_lshl_b32 s{sT0}, s{sW}, 12\ns_lshl_b32 s{sT1}, s{sW}, 15")
    a(f"s_lshl_b32 s{sX[0]}, s{sRB}, 16\ns_add_u32 s{sX[0]}, s{sX[0]}, s{sT0}\ns_add_u32 s{sX[0]}, s{sX[0]}, {OAF}")
    a(f"s_lshl_b32 s{sY[0]}, s{sCB}, 16\ns_add_u32 s{sY[0]}, s{sY[0]}, s{sT0}\ns_add_u32 s{sY[0]}, s{sY[0]}, {WOAF}")
    a(f"s_lshl_b32 s{sXB[0]}, s{sRB}, 19\ns_add_u32 s{sXB[0]}, s{sXB[0]}, s{sT1}\ns_add_u32 s{sXB[0]}, s{sXB[0]}, {CTX}")
    a(f"s_lshl_b32 s{sYB[0]}, s{sCB}, 19\ns_add_u32 s{sYB[0]}, s{sYB[0]}, s{sT1}\ns_add_u32 s{sYB[0]}, s{sYB[0]}, {WOF}")
    for i in range(1, 4):
        a(f"s_add_u32 s{sX[i]}, s{sX[0]}, {i*16384}\ns_add_u32 s{sY[i]}, s{sY[0]}, {i*16384}")
        a(f"s_add_u32 s{sXB[i]}, s{sXB[0]}, {i*131072}\ns_add_u32 s{sYB[i]}, s{sYB[0]}, {i*131072}")
    a("s_waitcnt lgkmcnt(0)")
    stamp(a, 10)
    NB = CFG["kb_nb"]
    base = 32
    def am(d, x, y, first):
        c = "0" if first else f"a[{d}:{d+3}]"
        return f"v_mfma_f32_16x16x32_bf16 a[{d}:{d+3}], {vr(x,4)}, {vr(y,4)}, {c}"
    def loads(step):
        b = base + 32 * (step % NB); out = []
        if step >= 36: return out
        X, Y, k = (sX, sY, step) if step < 4 else (sXB, sYB, (step - 4) % 4)
        for i in range(4):
            out.append(f"buffer_load_dwordx4 {vr(b+4*i,4)}, v1, {srd_s(R_WS)}, s{X[i]} offen offset:{k*1024}")
            out.append(f"buffer_load_dwordx4 {vr(b+16+4*i,4)}, v1, {srd_s(R_WS)}, s{Y[i]} offen offset:{k*1024}")
        if step >= 4 and k == 3:
            out.append("\n".join(f"s_add_u32 s{r}, s{r}, 4096" for r in sXB + sYB))
        return out
    for s in range(NB - 1):
        for x in loads(s): a(x)
    for step in range(36):
        b = base + 32 * (step % NB)
        acc = 0 if step < 4 else 64
        first = step in (0, 4)
        left = min(NB - 2, 35 - step)
        a(f"s_waitcnt vmcnt({8*left})")
        mf = [am(acc + 16 * x + 4 * y, b + 16 + 4 * y, b + 4 * x, first) for x in range(4) for y in range(4)]
        interleave(a, mf, loads(step + NB - 1))
    stamp(a, 11)
    a(f"s_lshl_b32 s{sT0}, s{sW}, 12\nv_add_u32 v2, s{sT0}, v1\nv_add_u32 v3, 0x10000, v2")
    a(f"s_lshl_b32 s{sT0}, s{sW}, 14\nv_add_u32 v4, s{sT0}, v1\nv_add_u32 v5, 0x10000, v4")
    a("s_nop 7")
    for part in range(2):
        for x in range(4):
            for y in range(4):
                d = 64 * part + 16 * x + 4 * y
                a(f"ds_write_b128 v{2+part}, a[{d}:{d+3}] offset:{x*16384+y*1024}")
    a("s_waitcnt lgkmcnt(0)\ns_barrier")
    a(f"""v_and_b32 v6, 15, v0
    v_lshlrev_b32 v6, 11, v6
    v_lshrrev_b32 v7, 4, v0
    v_lshl_or_b32 v6, v7, 4, v6
    s_lshl_b32 s{sT0}, s{sRB}, 2
    s_add_u32 s{sT0}, s{sT0}, s{sW}
    s_lshl_b32 s{sT0}, s{sT0}, 15
    s_lshl_b32 s{sT1}, s{sCB}, 7
    s_add_u32 s{sT0}, s{sT0}, s{sT1}""")
    for part in range(2):
        r0 = 32 + 64 * part
        for sw in range(4):
            for y in range(4):
                a(f"ds_read_b128 {vr(r0+16*sw+4*y,4)}, v{4+part} offset:{sw*4096+y*1024}")
        a("s_waitcnt lgkmcnt(0)")
        for r in range(16):
            a(f"v_add_f32 v{r0+r}, v{r0+r}, v{r0+16+r}\nv_add_f32 v{r0+32+r}, v{r0+32+r}, v{r0+48+r}")
        for r in range(16): a(f"v_add_f32 v{r0+r}, v{r0+r}, v{r0+32+r}")
        for m in range(8): a(f"v_cvt_pk_bf16_f32 v{r0+16+m}, v{r0+2*m}, v{r0+2*m+1}")
        for be in range(2):
            a(f"buffer_store_dwordx4 {vr(r0+16+4*be,4)}, v6, {srd_s(R_OUT)}, s{sT0} offen offset:{part*1024+be*64}")
    stamp(a, 12)
    a(f"{END}:\ns_endpgm")
    a.kernel_end(K, vgpr=384, accum=256)

HEADER = """; Fused hedgehog linear attention + MLA causal prefill attention for gfx950 (generated by own script).
; ka: K/V projection, hedgehog features, Q projection, flash attention ; kb: output projections."""

def build(path, **cfg):
    CFG.clear(); CFG.update(DEF); CFG.update(cfg)
    a = Asm()
    gen_KA(a)
    gen_KB(a)
    txt = a.text(HEADER)
    errs, n = hazard.check(txt)
    for e in errs: print("HAZARD", e)
    print(f"{path}: {n} instructions, {len(errs)} hazards, {len(txt)} bytes")
    open(path, "w").write(txt)

if __name__ == "__main__":
    build("k_dbg.s", stamps=True)
    build("k_dbg_bt.s", stamps=True, bartime=True)
    build("cdna_kernels/" + NAME + ".s")
```

```python
import sys, struct, math
from agen import Asm
import hazard

NAME = "concat_heads__linear_kernel_hedgehog__compressed_kv_cla__prompt"
KF   = 0x0100000
VF   = 0x1200000
CTX  = 0x2400000
OAF  = 0x3500000
WOF  = 0x3800000
WOAF = 0x3D00000
KVP  = 0x3E00000
FLG  = 0x4100000
FLB  = 0x4180000
EXB  = 0x4200000
STAMP = 0xF000000
WS_BYTES = 0x10000000
SLOT = 32768
SCR = 4 * SLOT
OOB = 0x40000000

def f32(x): return struct.unpack("<I", struct.pack("<f", x))[0]

DEF = dict(stamps=False, bias=60.0, thr=120.0, st_flags="sc1", ctx_flags="sc1", spin=200000, prefetch=False, denorm=0,
           s_pf=2, s_ps=13, s_pl=9, s_chk=10, s_go=12, kb_nb=5, rotm=(2, 2, 2), lvlA=2, pf_t0=1, pf_t1=15, n_init=3, cpf=[-1, 11], p2prio=1, nt=(20, 24, 44), lin={}, stag=(["xa", "wa", "xb", "wq"], [3, 4, 5, 6, 7, 8, 9, 10]), lin0=[],
           fast=[[8, 8, 9, 9, 10, 10, 11, 11, 12, 12, 13, 13, 14, 14, 15, 15], list(range(16))],
           slow=[[9, 11, 13, 15, 18, 18, 19, 19, 20, 20, 21, 21, 22, 22, 23, 24], list(range(16))])
CFG = dict(DEF)

sW, sHEAD, sTB, sTBA, sHP = 3, 4, 5, 6, 7
R_WS, R_DBG, R_C, R_WUK, R_WUV, R_XA, R_WQKV, R_XB, R_WQ, R_WOB, R_WOA, R_PHI = [8 + 4 * i for i in range(12)]
sMASK = 24
sT0, sT1, sT2, sT3 = 56, 57, 58, 59
sDM, sDMW = 60, 61
sO0, sO2 = 62, 63
sTD = 64
sW3 = 65
sST, sCNT, sG, sREM, sSLOT, sRET, sTHR = 66, 67, 68, 69, 70, 71, 72
sKO, sVO, sDST, sTMAX, sLD = 73, 74, 75, 76, 77
sA0, sA2 = 78, 79
sBL, sBS, sB2 = 80, 81, 82
sSTG = 83
sDK, sDV = 84, 85
sEX = 86
sSTAMP = 88
sSCL, sDSL = 90, 91
sPQ, sPX = 100, 101
sRT, sCT, sCT2, sCW = 94, 95, 96, 97
sTD2 = 99
sTH = 62
vTOK = 1
vW = [2 + i for i in range(8)]
vDTOK, vDW, vDWA, vST0, vST1 = 10, 11, 12, 13, 14
vT = [15 + i for i in range(9)]
vSP = 126
vPHIQ = 24
vSNAP = 20
vDTK2 = 23
vP0, vPD, vWB, vTKB = 24, 25, 22, 21

def srd_s(r): return f"s[{r}:{r+3}]"
def vr(a, n): return f"v[{a}:{a+n-1}]" if n > 1 else f"v{a}"

class VM:
    def __init__(s): s.ops = []
    def add(s, tag, n=1): s.ops += [tag] * n
    def has(s, tag): return tag in s.ops
    def n_after(s, tag):
        idx = max(i for i, t in enumerate(s.ops) if t == tag)
        return min(63, len(s.ops) - 1 - idx)

def interleave(a, mf, fill):
    n = len(mf); m = len(fill)
    slots = [[] for _ in range(n)]
    for k, f in enumerate(fill):
        slots[min((k * n) // max(m, 1), n - 1)].append(f)
    for x, s in zip(mf, slots):
        a(x)
        for f in s: a(f)

def merge(x, y):
    if not y: return list(x)
    if not x: return list(y)
    out = []; j = 0
    for i, e in enumerate(x):
        out.append(e)
        while j < len(y) and (j + 1) * len(x) <= (i + 1) * len(y):
            out.append(y[j]); j += 1
    return out + y[j:]

def mfma16(d, x, y, c=None):
    c = vr(d, 4) if c is None else c
    return f"v_mfma_f32_16x16x32_bf16 {vr(d,4)}, {vr(x,4)}, {vr(y,4)}, {c}"
def mfma32(d, x, y, c=None):
    c = vr(d, 16) if c is None else c
    return f"v_mfma_f32_32x32x16_bf16 {vr(d,16)}, {vr(x,4)}, {vr(y,4)}, {c}"

def stamp(a, idx, vms=()):
    if not CFG["stamps"]: return
    a(f"s_memrealtime s[{sSTAMP}:{sSTAMP+1}]\ns_memtime s[92:93]")
    a("s_waitcnt lgkmcnt(0)")
    a(f"v_mov_b32 v{vSP}, s{sSTAMP}\nv_mov_b32 v{vSP+1}, s92")
    a(f"s_lshl_b32 s{sSTAMP}, s2, 3\ns_add_u32 s{sSTAMP}, s{sSTAMP}, s{sW}\ns_lshl_b32 s{sSTAMP}, s{sSTAMP}, 7\ns_add_u32 s{sSTAMP}, s{sSTAMP}, {STAMP + idx*8}")
    a(f"buffer_store_dwordx2 v[{vSP}:{vSP+1}], off, {srd_s(R_WS)}, s{sSTAMP}")
    for v in vms: v.add("stamp")

def dma_unit(m0s, m0c, voff, srd, bs, bc):
    nt = " nt" if srd in CFG["nt"] else ""
    return f"s_add_u32 m0, s{m0s}, {m0c}\ns_add_u32 s{sTD}, s{bs}, {bc}\nbuffer_load_dwordx4 v{voff}, {srd_s(srd)}, s{sTD} offen{nt} lds"

def gen_KA(a):
    global vSP
    K = "ka_kernel"
    a.kernel_begin(K, 256, 512, 160 * 1024)
    marks = [{}, {}]
    VMS = [VM(), VM()]
    END = "ka_end"
    vSP = 30
    a(f"s_cmp_ge_u32 s2, 256\ns_cbranch_scc1 {END}")
    for r, off in ((R_C, 40), (R_WUK, 56), (R_WUV, 64), (R_XA, 0), (R_WQKV, 8), (R_PHI, 16), (R_WOA, 24), (R_XB, 32), (R_WQ, 48),
                   (R_WOB, 72), (R_DBG, 88), (R_WS, 96)):
        a(f"s_load_dwordx2 s[{r}:{r+1}], s[0:1], {off}")
    a(f"v_lshrrev_b32 v1, 6, v0\nv_and_b32 v0, 63, v0\nv_readfirstlane_b32 s{sW}, v1")
    for r, n in ((R_XA, 2 << 20), (R_WQKV, 512 * 3072), (R_PHI, 16384), (R_WOA, 512 * 1024), (R_XB, 2 << 20), (R_C, 2 << 20),
                 (R_WQ, 4 << 20), (R_WUK, 4 << 20), (R_WUV, 4 << 20), (R_WOB, 4 << 20), (R_DBG, 256), (R_WS, WS_BYTES)):
        a(f"s_mov_b32 s{r+2}, {n}\ns_mov_b32 s{r+3}, 0x20000")
    a(f"""s_and_b32 s{sT0}, s2, 7
    s_lshr_b32 s{sT1}, s2, 3
    s_add_u32 s{sT1}, s{sT1}, {CFG.get("hshift", 0)}
    s_and_b32 s{sT2}, s{sT1}, 3
    s_lshl_b32 s{sHEAD}, s{sT0}, 2
    s_add_u32 s{sHEAD}, s{sHEAD}, s{sT2}
    s_lshr_b32 s{sTB}, s2, 5
    s_lshr_b32 s{sTBA}, s{sT0}, 1
    s_lshl_b32 s{sTBA}, s{sTBA}, 2
    s_add_u32 s{sTBA}, s{sTBA}, s{sT2}
    s_and_b32 s{sHP}, s{sT0}, 1
    s_lshl_b32 s{sHP}, s{sHP}, 3
    s_add_u32 s{sHP}, s{sHP}, s{sTB}
    s_and_b32 s{sW3}, s{sW}, 3
    s_lshl_b32 s{sDM}, s{sW3}, 11
    s_lshl_b32 s{sDMW}, s{sW3}, 10""")
    t0, t1, t2, t3, t4 = vT[0], vT[1], vT[2], vT[3], vT[4]
    def emit_f(x, out, tmp):
        a(f"v_lshrrev_b32 v{tmp}, 1, v{x}\nv_xor_b32 v{out}, v{x}, v{tmp}\nv_and_b32 v{out}, 1, v{out}\nv_lshl_or_b32 v{out}, v{out}, 1, v{tmp}")
    a(f"v_lshrrev_b32 v{t0}, 4, v0")
    emit_f(t0, t1, t2)
    a(f"v_and_b32 v{t2}, 3, v0\nv_xor_b32 v{t1}, v{t1}, v{t2}\nv_lshlrev_b32 v{t1}, 4, v{t1}")
    a(f"v_lshrrev_b32 v{t2}, 2, v0\nv_lshl_or_b32 v{vDTOK}, v{t2}, 10, v{t1}")
    a(f"s_and_b32 s{sT0}, s{sW}, 2\ns_lshl_b32 s{sT0}, s{sT0}, 1\ns_lshl_b32 s{sT1}, s{sW3}, 2\nv_and_b32 v{t2}, 15, v0")
    a(f"v_or_b32 v{t1}, s{sT0}, v{t0}\nv_lshlrev_b32 v{t1}, 1, v{t1}\nv_xor_b32 v{t1}, v{t1}, v{t2}")
    a(f"v_add_u32 v{t4}, s{sT1}, v{t0}")
    a(f"v_lshlrev_b32 v{vDW}, 13, v{t4}\nv_lshl_or_b32 v{vDW}, v{t1}, 4, v{vDW}")
    a(f"""s_lshl_b32 s{sO0}, s{sTB}, 8
    s_lshl_b32 s{sT0}, s{sW3}, 5
    s_add_u32 s{sO0}, s{sO0}, s{sT0}
    s_lshl_b32 s{sO0}, s{sO0}, 10
    s_lshl_b32 s{sO2}, s{sHEAD}, 8""")

    NP1, NA1, NP2 = 16, 8, 16
    G_A1 = NP1; G_P2 = G_A1 + NA1; G_END = G_P2 + NP2
    WB = 65536
    def tko(t): return (t % 4) * 16384
    def rot_base(ph):
        mode = CFG["rotm"][ph]
        if mode == 0: return f"s_mov_b32 s{sRT}, 0"
        if mode == 2: return f"s_and_b32 s{sRT}, s2, 7" + (f"\ns_lshl_b32 s{sRT}, s{sRT}, 1" if ph != 1 else "")
        if ph == 1: return f"s_lshl_b32 s{sRT}, s{sTBA}, 1\ns_add_u32 s{sRT}, s{sRT}, s{sHP}"
        return f"s_lshl_b32 s{sRT}, s{sHEAD}, 1\ns_add_u32 s{sRT}, s{sRT}, s{sTB}\ns_lshl_b32 s{sRT}, s{sRT}, 1"
    def rk(dst, idx, mask, mul, base):
        return f"s_add_u32 s{dst}, s{sRT}, {idx}\ns_and_b32 s{dst}, s{dst}, {mask}\ns_mul_i32 s{dst}, s{dst}, {mul}\ns_add_u32 s{dst}, s{dst}, s{base}\n"
    TP = (0, 32768, 98304)
    def loader(t):
        return 2 if t < CFG['n_init'] else 0 if t < G_P2 + 2 else 1
    def loads(role, t): return t < G_END and loader(t) in (role, 2)
    rb_done = [set(), set()]
    def dma_stage(role, t):
        if not loads(role, t): return []
        hvs = [role] if loader(t) == 2 else [0, 1]
        ph = 0 if t < G_A1 else 1 if t < G_P2 else 2
        b = tko(t); out = []
        vd = (vDTOK, vDTK2)
        if ph == 0:
            pre = rk(sCT, t, 15, 64, sO0) + rk(sCW, t, 15, 32 * 8192, sO2)
            for hv in hvs:
                out += [dma_unit(sDM, b + hv * 8192 + d * 1024, vDTOK, R_C, sCT, (128 * hv + 16 * d) * 1024) for d in range(2)]
                out += [dma_unit(sDMW, WB + b + m * 8192 + hv * 4096, vDW, (R_WUK, R_WUV)[m], sCW, 16 * hv * 8192) for m in range(2)]
        elif ph == 1:
            pre = rk(sCT, t - G_A1, 7, 128, sA0) + rk(sCW, t - G_A1, 7, 64 * 3072, sA2)
            for hv in hvs:
                out += [dma_unit(sDM, b + hv * 8192 + d * 1024, vd[d], R_XA, sCT, hv * 65536 + d * 8192) for d in range(2)]
                out += [dma_unit(sDMW, WB + b + m * 8192 + hv * 4096, vDWA, R_WQKV, sCW, (16 * hv + 32 * m) * 3072) for m in range(2)]
        else:
            s_ = t - G_P2; p_, hv = s_ // 2, s_ % 2
            pre = rk(sCT, 2 * p_, 14, 64, (sBL, sBS)[hv]) + rk(sCW, s_, 15, 32 * 8192, sB2)
            out += [dma_unit(sLD, TP[p_ % 3] + hv * 16384 + d * 1024, vd[d & 1], R_XB, sCT, d * 8192) for d in range(4)]
            out += [dma_unit(sDMW, WB + (s_ % 4) * 8192 + h * 4096, vDW, R_WQ, sCW, 16 * h * 8192) for h in range(2)]
        VMS[role].add(("dma", t), len(out))
        if ph not in rb_done[role]:
            rb_done[role].add(ph); pre = rot_base(ph) + "\n" + pre
            if ph > 0 and "v128" not in rb_done[role]:
                rb_done[role].add("v128")
                pre = f"""v_lshrrev_b32 v{vDTK2}, 4, v0
                v_and_b32 v{vDTOK}, 7, v0
                v_xor_b32 v{vDTOK}, v{vDTOK}, v{vDTK2}
                v_lshlrev_b32 v{vDTOK}, 4, v{vDTOK}
                v_lshrrev_b32 v{vDTK2}, 3, v0
                v_lshl_or_b32 v{vDTOK}, v{vDTK2}, 10, v{vDTOK}
                v_xor_b32 v{vDTK2}, 64, v{vDTOK}
                """ + pre
        out[0] = pre + out[0]
        return out
    landed = [-1, -1]
    def sync(role, t, cover=None):
        vm = VMS[role]
        tr = CFG.get("trace") and t > G_A1
        if tr: a(f"s_memtime s[92:93]\ns_waitcnt lgkmcnt(0)\nv_writelane_b32 v19, s92, {32 + t - G_A1}\nv_writelane_b32 v19, s100, {t - G_A1 - 1}")
        need = [t] + ([t + 1] if (t >= G_P2 and (t - G_P2) % 2 == 0) else [])
        if t == G_P2: need = []
        n = min([vm.n_after(("dma", x)) for x in need if loads(role, x) and x > landed[role]] + [63])
        if cover is not None: n = min(n, len(vm.ops) - cover)
        a(f"s_waitcnt vmcnt({n}) lgkmcnt(0)" if n < 63 else "s_waitcnt lgkmcnt(0)")
        a("s_barrier")
        if tr: a("s_memtime s[100:101]")

    a("s_waitcnt lgkmcnt(0)")
    stamp(a, 0, VMS)
    a(f"s_cmp_ge_u32 s{sW}, 4\ns_cbranch_scc1 init_s")
    for t in range(CFG['n_init']):
        for f in dma_stage(0, t): a(f)
    a("s_branch init_done\ninit_s:")
    for t in range(CFG['n_init']):
        for f in dma_stage(1, t): a(f)
    a("init_done:")
    a(f"v_lshlrev_b32 v{vP0}, 7, v0")
    a(f"v_mul_u32_u24 v{vDWA}, 3072, v{t4}\nv_lshrrev_b32 v{t3}, 2, v{t1}\nv_lshl_add_u32 v{vDWA}, v{t3}, 10, v{vDWA}")
    a(f"v_and_b32 v{t4}, 3, v{t1}\nv_lshl_add_u32 v{vDWA}, v{t4}, 4, v{vDWA}")
    a(f"v_cmp_eq_u32 vcc, 3, v{t3}\nv_mov_b32 v{t4}, {OOB}\ns_nop 0\nv_cndmask_b32 v{vDWA}, v{vDWA}, v{t4}, vcc")
    a(f"v_bfe_u32 v{t3}, v0, 2, 2")
    emit_f(t3, t1, t2)
    a(f"v_xor_b32 v{t1}, v{t1}, v{t0}\nv_lshlrev_b32 v{t1}, 4, v{t1}\nv_and_b32 v{t2}, 15, v0\nv_lshl_or_b32 v{vTKB}, v{t2}, 6, v{t1}")
    a(f"""s_lshl_b32 s{sA0}, s{sTBA}, 7
    s_lshl_b32 s{sT0}, s{sW3}, 4
    s_add_u32 s{sA0}, s{sA0}, s{sT0}
    s_lshl_b32 s{sA0}, s{sA0}, 10
    s_lshl_b32 s{sA2}, s{sHP}, 6
    s_lshl_b32 s{sT0}, s{sTB}, 2
    s_add_u32 s{sBS}, s{sT0}, s{sW3}
    s_sub_u32 s{sBL}, 63, s{sBS}
    s_cmp_lt_u32 s{sW}, 4
    s_cselect_b32 s{sG}, s{sBL}, s{sBS}
    s_lshl_b32 s{sBL}, s{sBL}, 15
    s_lshl_b32 s{sBS}, s{sBS}, 15
    s_lshl_b32 s{sB2}, s{sHEAD}, 8""")
    a(f"""v_lshl_add_u32 v{t2}, v{t0}, 3, v{t3}
    v_lshlrev_b32 v{vWB}, 8, v{t2}
    v_and_b32 v{t2}, 1, v{t0}
    v_lshl_or_b32 v{t2}, v{t2}, 2, v{t3}
    v_lshl_or_b32 v{vWB}, v{t2}, 5, v{vWB}
    v_and_b32 v{t2}, 3, v0
    v_lshl_or_b32 v{vWB}, v{t2}, 3, v{vWB}
    v_or_b32 v{vWB}, {WB}, v{vWB}
    s_lshr_b32 s{sT0}, s{sW}, 2
    s_lshl_b32 s{sT0}, s{sT0}, 13
    s_and_b32 s{sT1}, s{sW}, 2
    s_lshl_b32 s{sT1}, s{sT1}, 6
    s_or_b32 s{sT0}, s{sT0}, s{sT1}
    v_xor_b32 v{vW[0]}, s{sT0}, v{vWB}""")
    for b in range(1, 4): a(f"v_xor_b32 v{vW[b]}, {b*32}, v{vW[0]}")
    a(f"s_and_b32 s{sT0}, s{sW}, 1\ns_lshl_b32 s{sT0}, s{sT0}, 13\nv_add_u32 v{vTOK}, s{sT0}, v{vTKB}")
    a(f"""s_lshl_b32 s{sT0}, s{sHEAD}, 6
    s_lshl_b32 s{sT1}, s{sTB}, 3
    s_add_u32 s{sT0}, s{sT0}, s{sT1}
    s_and_b32 s{sT1}, s{sW}, 1
    s_lshl_b32 s{sT1}, s{sT1}, 2
    s_add_u32 s{sT0}, s{sT0}, s{sT1}
    s_lshl_b32 s{sST}, s{sT0}, 13
    s_and_b32 s{sT1}, s{sW}, 2
    s_lshl_b32 s{sT1}, s{sT1}, 11
    s_add_u32 s{sST}, s{sST}, s{sT1}""")
    vL16, vKV = vT[0], 2
    a(f"""s_lshl_b32 s{sKO}, s{sHEAD}, 19
    s_lshl_b32 s{sLD}, s{sW3}, 12
    s_add_u32 s{sKO}, s{sKO}, s{sLD}
    s_add_u32 s{sVO}, s{sKO}, {VF - 2*8192}
    s_add_u32 s{sKO}, s{sKO}, {KF}
    s_mov_b32 s{sDST}, 0
    s_lshl_b32 s{sT1}, s{sTB}, 1
    s_sub_u32 s{sTMAX}, 32, s{sT1}
    s_add_u32 s{sDSL}, s{sLD}, {4*SLOT}
    s_mov_b32 s{sTHR}, {f32(2.0 ** (CFG['thr'] - CFG['bias']))}""")
    vCV = vW[4:7]
    a(f"""v_and_b32 v{t1}, 1, v{t0}
    v_lshrrev_b32 v{t2}, 1, v{t0}
    v_lshlrev_b32 v{vCV[0]}, 4, v{t2}
    v_lshl_or_b32 v{vCV[0]}, v{t1}, 2, v{vCV[0]}
    v_or_b32 v{vCV[0]}, v{vCV[0]}, v{t3}
    v_lshlrev_b32 v{vCV[0]}, 8, v{vCV[0]}
    v_lshlrev_b32 v{t3}, 1, v{t3}
    v_and_b32 v{t4}, 3, v0
    v_xor_b32 v{t3}, v{t3}, v{t4}
    s_lshl_b32 s{sT0}, s{sW3}, 2
    v_xor_b32 v{t3}, s{sT0}, v{t3}
    v_lshl_or_b32 v{vCV[0]}, v{t3}, 4, v{vCV[0]}
    v_add_u32 v{vCV[0]}, {SCR}, v{vCV[0]}
    v_xor_b32 v{vCV[1]}, 128, v{vCV[0]}
    v_lshrrev_b32 v{vCV[2]}, 2, v0
    v_lshlrev_b32 v{vCV[2]}, 6, v{vCV[2]}
    v_lshl_or_b32 v{vCV[2]}, v{t4}, 4, v{vCV[2]}
    s_and_b32 s{sT0}, s{sW}, 1
    s_lshl_b32 s{sT0}, s{sT0}, 3
    s_add_u32 s{sT0}, s{sT0}, {SCR + 16384}
    v_add_u32 v{vCV[2]}, s{sT0}, v{vCV[2]}
    v_lshlrev_b32 v{vL16}, 4, v0""")
    a(f"s_cmp_ge_u32 s{sW}, 4\ns_cbranch_scc1 stream_s")

    ACC = 128
    SETS = (32, 80)
    def p1_reads(t):
        s = SETS[t % 2]; o = tko(t); r = []
        for b in range(4):
            r.append(f"ds_read_b64_tr_b16 {vr(s+4*b,2)}, v{vW[b]} offset:{o}")
            r.append(f"ds_read_b64_tr_b16 {vr(s+4*b+2,2)}, v{vW[b]} offset:{o+1024}")
        for T in range(8):
            r.append(f"ds_read_b128 {vr(s+16+4*T,4)}, v{vTOK} offset:{o+T*1024}")
        return r
    def p1_acc(role, n, T):
        if role == 0: s = (T // 2) * 4 + (T & 1) + 2 * (n // 2); return ACC + 8 * s + 4 * (n & 1)
        else: s = (T // 2) * 4 + n; return ACC + 8 * s + 4 * (T & 1)
    def p1_mfmas(role, t, first=False):
        s = SETS[t % 2]; out = []
        for T in range(8):
            for n in range(4):
                w, k = s + 4 * n, s + 16 + 4 * T
                d = p1_acc(role, n, T)
                out.append(mfma16(d, w, k, "0" if first else None) if role == 0 else mfma16(d, k, w, "0" if first else None))
        return out
    def a1_reads(t):
        s = SETS[t % 2]; o = tko(t); r = []
        for u in range(2):
            b = s + 20 * u
            for T in range(2):
                r.append(f"ds_read_b128 {vr(b+12+4*T,4)}, v{(vTOK, vW[3])[u]} offset:{o+T*2048}")
            for m in range(3):
                r.append(f"ds_read_b64_tr_b16 {vr(b+4*m,2)}, v{vW[m]} offset:{o+u*8192}")
                r.append(f"ds_read_b64_tr_b16 {vr(b+4*m+2,2)}, v{vW[m]} offset:{o+u*8192+1024}")
        return r
    AQ, AK, AV = 128, 136, 144
    vPH = 152
    CA = 160
    SEL, ONES = 176, 184
    def a1_mfmas(t, first):
        s = SETS[t % 2]; out = []
        for u in range(2):
            b = s + 20 * u
            c = "0" if (first and u == 0) else None
            for T in range(2):
                x = b + 12 + 4 * T
                out += [mfma16(AQ + 4 * T, b, x, c), mfma16(AK + 4 * T, b + 4, x, c), mfma16(AV + 4 * T, x, b + 8, c)]
        return out
    def p2_reads(t):
        s = SETS[t % 2]; s_ = t - G_P2; o = (s_ % 4) * 8192; r = []
        r.append(f"v_xor_b32 v{vTKB}, {TP[(s_ // 2) % 3] | ((s_ & 1) * 64)}, v{vTOK}\nds_read_b128 {vr(s+32,4)}, v{vTKB}")
        r.append(f"ds_read_b128 {vr(s+36,4)}, v{vTKB} offset:2048")
        for n in range(8):
            r.append(f"ds_read_b64_tr_b16 {vr(s+4*n,2)}, v{vW[n]} offset:{o}")
            r.append(f"ds_read_b64_tr_b16 {vr(s+4*n+2,2)}, v{vW[n]} offset:{o+1024}")
        return r
    def p2_acc(n, T): return 128 + 16 * (n // 2) + 8 * T + 4 * (n & 1)
    def p2_mfmas(t, first):
        s = SETS[t % 2]
        return [mfma16(p2_acc(n, T), s + 4 * n, s + 32 + 4 * T, "0" if first else None) for n in range(8) for T in range(2)]
    SRDN = dict(c=(R_C, 11), wuk=(R_WUK, 12), wuv=(R_WUV, 12), xa=(R_XA, 11), wa=(R_WQKV, 11), xb=(R_XB, 11), wq=(R_WQ, 12), wob=(R_WOB, 12))
    def lin_pf(names):
        x = f"s_lshl_b32 s{sT0}, s2, 2\ns_add_u32 s{sT0}, s{sT0}, s{sW3}\ns_lshl_b32 s{sT1}, s{sT0}, 12\ns_lshl_b32 s{sT0}, s{sT0}, 11\ns_mov_b32 exec_hi, 0\n"
        for n in names:
            srd, sh = SRDN[n]
            x += f"s_mov_b32 exec_lo, {'0xffff' if sh == 11 else '-1'}\nbuffer_load_dword v{vPD}, v{vP0}, {srd_s(srd)}, s{sT0 if sh == 11 else sT1} offen\n"
        return x + "s_mov_b64 exec, -1"
    def code_pf(dst, tmp):
        l = a.lab("cpf"); h = a.lab("here")
        return f"""s_cmp_lg_u32 s{sW}, 4
        s_cbranch_scc1 {l}
        s_getpc_b64 s[{sEX}:{sEX+1}]
        {h}:
        s_sub_u32 s{sEX}, s{sEX}, {h}-ka_kernel
        s_subb_u32 s{sEX+1}, s{sEX+1}, 0
        s_lshr_b32 s{sT0}, s2, 3
        s_mul_i32 s{sT0}, s{sT0}, {24*128}
        v_lshlrev_b32 v{tmp}, 7, v0
        v_add_u32 v{tmp}, s{sT0}, v{tmp}
        v_min_u32 v{tmp}, code_end-ka_kernel-4, v{tmp}
        s_mov_b64 exec, 0xffffff
        global_load_dword v{dst}, v{tmp}, s[{sEX}:{sEX+1}]
        s_mov_b64 exec, -1
        {l}:"""
    def pf_at(role, t):
        if role != 1: return []
        out = []
        if t in CFG["cpf"]:
            out.append(code_pf(vPD, t4)); marks[1]["pf"] = len(VMS[1].ops)
        if t in CFG["lin"]:
            VMS[1].add("pf", len(CFG["lin"][t])); out.append(lin_pf(CFG["lin"][t]))
        if CFG["stag"] and t in CFG["stag"][1]:
            tbs = [i for i, x in enumerate(CFG["stag"][1]) if x == t]
            l = a.lab("stg")
            cond = f"s_cmp_lg_u32 s{sTB}, {tbs[0]}\n" if len(tbs) == 1 else f"s_lshr_b32 s{sT0}, s{sTB}, 1\ns_cmp_lg_u32 s{sT0}, {tbs[0] // 2}\n"
            out.append(cond + f"s_cbranch_scc1 {l}\n" + lin_pf(CFG["stag"][0]) + f"\n{l}:")
            VMS[1].add("pf", 0); marks[1]["pf"] = len(VMS[1].ops)
        return out
    def conv_dma():
        vCB, vCA = t1, t2
        pre = f"""v_and_b32 v{vCB}, 0xff, v{vDW}
        v_lshrrev_b32 v{vCA}, 13, v{vDW}
        v_lshl_or_b32 v{vCB}, v{vCA}, 10, v{vCB}
        s_lshr_b32 s{sT1}, s2, 1
        s_lshl_b32 s{sT1}, s{sT1}, 15
        s_and_b32 s{sT2}, s2, 1
        s_lshl_b32 s{sT2}, s{sT2}, 9
        s_add_u32 s{sT1}, s{sT1}, s{sT2}
        v_lshrrev_b32 v{vCA}, 2, v0
        v_lshlrev_b32 v{vCA}, 10, v{vCA}
        v_and_b32 v{t4}, 3, v0
        v_lshl_or_b32 v{vCA}, v{t4}, 4, v{vCA}
        s_lshr_b32 s{sT2}, s2, 4
        s_lshl_b32 s{sT2}, s{sT2}, 1
        s_add_u32 s{sT2}, s{sT2}, s{sW3}
        s_lshl_b32 s{sT2}, s{sT2}, 14
        s_and_b32 s{sT3}, s2, 15
        s_lshl_b32 s{sT3}, s{sT3}, 6
        s_add_u32 s{sT2}, s{sT2}, s{sT3}
        s_cmp_lt_u32 s{sW3}, 2
        s_cselect_b32 s{sT2}, s{sT2}, {OOB}"""
        u = [dma_unit(sDMW, SCR + m * 8192 + hv * 4096, vCB, R_WOB, sT1, hv * 16384 + m * 256) for hv in range(2) for m in range(2)]
        u.append(dma_unit(sDM, SCR + 16384, vCA, R_WOA, sT2, 0))
        VMS[1].add("cv", 5)
        return [pre] + u
    def flag_voff(v):
        return f"""s_lshl_b32 s{sT2}, s{sHEAD}, 3
        s_lshl_b32 s{sT3}, s{sHP}, 4
        s_add_u32 s{sT3}, s{sT3}, 248
        v_mov_b32 v{v}, s{sT3}
        s_mov_b64 exec, 0xff
        v_mov_b32 v{v}, s{sT2}
        s_mov_b64 exec, 0xffffff
        v_add_u32 v{v}, v{v}, v0
        v_lshlrev_b32 v{v}, 7, v{v}
        s_mov_b32 s{sT2}, {FLG}"""
    def flag_load(dst, v):
        return flag_voff(v) + f"\nbuffer_load_dword v{dst}, v{v}, {srd_s(R_WS)}, s{sT2} offen sc1\ns_mov_b64 exec, -1"
    def fb_publish(kv_all, x, y):
        c = "" if kv_all else f"s_cmp_lt_u32 s{sTB}, {CFG['lvlA']}\ns_cselect_b32 s{sTD}, s{sTD}, 0\n"
        return f"""s_lshl_b32 s{sTD}, 1, s{sTB}
        {c}v_mov_b32 v{x}, s{sTD}
        s_lshl_b32 s{sTD}, 1, s{sTBA}
        v_mov_b32 v{y}, s{sTD}
        buffer_atomic_or v{x}, off, {srd_s(R_DBG)}, s{sT2} sc1
        buffer_atomic_or v{y}, off, {srd_s(R_DBG)}, s{sT3} sc1"""
    def poll_code(l, r, need, first_wait, new, v):
        lp, ok, tst, nf = a.lab("poll"), a.lab("pollok"), a.lab("polltst"), a.lab("pollnf")
        return f"""{l}:
        s_mov_b32 s{sCNT}, 0
        s_waitcnt vmcnt({first_wait})
        s_branch {tst}
        {lp}:
        s_sleep 2
        {flag_load(new, v)}
        s_waitcnt vmcnt(0)
        {tst}:
        v_cmp_ne_u32 vcc, v{new}, v{vSNAP}
        s_add_u32 s{sCNT}, s{sCNT}, 1
        s_and_b32 s{sT1}, vcc_lo, {need}
        s_cmp_eq_u32 s{sT1}, {need}
        s_cbranch_scc1 {ok}
        s_and_b32 s{sT2}, s{sCNT}, 63
        s_cmp_lg_u32 s{sT2}, 0
        s_cbranch_scc1 {nf}
        s_lshl_b32 s{sT2}, s{sHEAD}, 2
        s_lshl_b32 s{sT3}, s{sHP}, 2
        s_add_u32 s{sT3}, s{sT3}, 128
        s_mov_b64 exec, 1
        {fb_publish(need == 0xff, new, v)}
        s_waitcnt vmcnt(0)
        buffer_load_dword v{new}, off, {srd_s(R_DBG)}, s{sT2} sc1
        buffer_load_dword v{v}, off, {srd_s(R_DBG)}, s{sT3} sc1
        s_mov_b64 exec, -1
        s_waitcnt vmcnt(0)
        v_readfirstlane_b32 s{sT2}, v{new}
        v_readfirstlane_b32 s{sT3}, v{v}
        s_nop 0
        s_lshl_b32 s{sT3}, s{sT3}, 8
        s_or_b32 s{sT1}, s{sT1}, s{sT2}
        s_or_b32 s{sT1}, s{sT1}, s{sT3}
        s_and_b32 s{sT1}, s{sT1}, {need}
        s_cmp_eq_u32 s{sT1}, {need}
        s_cbranch_scc1 {ok}
        {nf}:
        s_cmp_lt_u32 s{sCNT}, {CFG['spin']}
        s_cbranch_scc1 {lp}
        {ok}:
        buffer_inv sc1
        s_branch {r}"""
    ool = []
    def st_ins(k):
        return f"s_add_u32 s{sTD2}, s{sST}, {(k // 4) * 8192}\nbuffer_store_dwordx4 {vr(192+4*k,4)}, v{vST1 if k & 1 else vST0}, {srd_s(R_WS)}, s{sTD2} offen offset:{(k>>1&1)*2048} {CFG['st_flags']}"
    def st_slot1(r, n):
        kf = [k for k, x in enumerate(CFG["fast"][r]) if x == n]; ks = [k for k, x in enumerate(CFG["slow"][r]) if x == n]
        if not kf and not ks: return None
        VMS[r].add("kvst", min(len(kf), len(ks)))
        if kf: marks[r]["fast"] = len(VMS[r].ops)
        if ks: marks[r]["slow"] = len(VMS[r].ops)
        marks[r]["nslow"] = max(ks) + 1 if ks else marks[r].get("nslow", 0)
        f = "\n".join(st_ins(k) for k in kf); s = "\n".join(st_ins(k) for k in ks)
        w = ""
        if r == 0 and n == min(CFG["fast"][0] + CFG["slow"][0]):
            assert n >= 8
            w = "s_waitcnt vmcnt(0)\n"; landed[0] = G_P2 + 1
        if kf == ks: return w + f
        l1, l2 = a.lab("ss"), a.lab("se")
        c = w + f"s_cmp_lt_u32 s{sTB}, {CFG['lvlA']}\n"
        if not ks: return c + f"s_cbranch_scc0 {l2}\n{f}\n{l2}:"
        if not kf: return c + f"s_cbranch_scc1 {l2}\n{s}\n{l2}:"
        return c + f"s_cbranch_scc1 {l1}\n{s}\ns_branch {l2}\n{l1}:\n{f}\n{l2}:"
    def st_slot(roles, n):
        x = [st_slot1(r, n) for r in roles]
        if len(roles) == 1: return [x[0]] if x[0] else []
        l1, l2 = a.lab("rs"), a.lab("re")
        return [f"s_cmp_ge_u32 s{sW}, 4\ns_cbranch_scc1 {l1}\n{x[0] or ''}\ns_branch {l2}\n{l1}:\n{x[1] or ''}\n{l2}:"]

    def part1(role):
        vm = VMS[role]
        if role == 0:
            a(f"""v_lshlrev_b32 v{vST0}, 10, v{t1}
            v_lshl_or_b32 v{vST0}, v{t2}, 9, v{vST0}
            v_bfe_u32 v{t3}, v0, 3, 1
            v_lshl_or_b32 v{vST0}, v{t3}, 8, v{vST0}
            v_and_b32 v{t3}, 7, v0
            v_lshl_or_b32 v{vST0}, v{t3}, 4, v{vST0}
            v_add_u32 v{vST1}, 128, v{vST0}
            s_add_u32 s{sST}, s{sST}, {KF}""")
        else:
            a(f"""v_lshlrev_b32 v{vST0}, 10, v{t2}
            v_lshl_or_b32 v{vST0}, v{t1}, 9, v{vST0}
            v_and_b32 v{t3}, 15, v0
            v_lshl_or_b32 v{vST0}, v{t3}, 4, v{vST0}
            v_add_u32 v{vST1}, 256, v{vST0}
            s_add_u32 s{sST}, s{sST}, {VF}""")
        if role == 0:
            l, r = a.lab("snap"), a.lab("snapr")
            a(f"s_cmp_eq_u32 s{sW}, 0\ns_cbranch_scc1 {l}\n{r}:")
            ool.append(f"{l}:\n{flag_load(vSNAP, t3)}\ns_branch {r}")
        if role == 1 and -1 in CFG["cpf"]: a(code_pf(vPD, t4))
        if role == 1 and CFG.get("q1pf") is not None:
            a(f"""s_lshl_b32 s{sT0}, s2, 2
            s_add_u32 s{sT0}, s{sT0}, s{sW3}
            s_lshl_b32 s{sT0}, s{sT0}, 12
            s_add_u32 s{sT0}, s{sT0}, {CFG['q1pf'] * 256}
            v_lshrrev_b32 v{t3}, 1, v0
            v_lshlrev_b32 v{t3}, 10, v{t3}
            v_and_b32 v{t4}, 1, v0
            v_lshl_or_b32 v{t3}, v{t4}, 7, v{t3}
            s_mov_b64 exec, 0xff
            buffer_load_dword v{vPD}, v{t3}, {srd_s(R_WUK)}, s{sT0} offen
            buffer_load_dword v{vPD}, v{t3}, {srd_s(R_WUV)}, s{sT0} offen
            s_mov_b64 exec, -1""")
            vm.add("pf", 2)
        if role == 1 and CFG["lin0"]:
            a(lin_pf(CFG["lin0"])); vm.add("pf", len(CFG["lin0"]))
        sync(role, 0)
        stamp(a, 13, [vm])
        for f in p1_reads(0): a(f)
        for t in range(CFG['n_init'], 4):
            for f in dma_stage(role, t): a(f)
        CVR = 26
        cv_t = CFG.get("cv_t", 1)
        def cv_read(k):
            if k == 4: return f"ds_read_b64_tr_b16 {vr(CVR,2)}, v{vCV[2]}\nds_read_b64_tr_b16 {vr(CVR+2,2)}, v{vCV[2]} offset:2048"
            o = (k >> 1) * 8192 + (k & 1) * 8
            return f"ds_read_b64_tr_b16 {vr(CVR,2)}, v{vCV[0]} offset:{o}\nds_read_b64_tr_b16 {vr(CVR+2,2)}, v{vCV[1]} offset:{2048+o}"
        def cv_store(k):
            vm.add("cvst")
            if k == 4:
                x = f"""s_and_b32 s{sT2}, s2, 15
                s_lshl_b32 s{sT2}, s{sT2}, 1
                s_add_u32 s{sT2}, s{sT2}, s{sW3}
                s_lshl_b32 s{sT2}, s{sT2}, 4
                s_lshr_b32 s{sT3}, s2, 4
                s_add_u32 s{sT2}, s{sT2}, s{sT3}
                s_lshl_b32 s{sT2}, s{sT2}, 10
                s_add_u32 s{sT2}, s{sT2}, {WOAF}
                s_cmp_lt_u32 s{sW3}, 2
                s_cselect_b32 s{sT2}, s{sT2}, {OOB}"""
            else:
                x = f"""s_and_b32 s{sT2}, s2, 1
                s_lshl_b32 s{sT2}, s{sT2}, 3
                s_add_u32 s{sT2}, s{sT2}, s{sW3}
                s_lshl_b32 s{sT2}, s{sT2}, 8
                s_lshr_b32 s{sT3}, s2, 1
                s_add_u32 s{sT2}, s{sT2}, s{sT3}
                s_lshl_b32 s{sT2}, s{sT2}, 10
                s_add_u32 s{sT2}, s{sT2}, {WOF + ((k >> 1) * 8 + (k & 1)) * 128 * 1024}"""
            return x + f"\nbuffer_store_dwordx4 {vr(CVR,4)}, v{vL16}, {srd_s(R_WS)}, s{sT2} offen"
        for t in range(NP1):
            if role == 1 and t == 2: stamp(a, 14, [vm])
            if role == 1 and t == 12: stamp(a, 15, [vm])
            sync(role, t + 1, marks[1]["cv"] if (role == 1 and t == cv_t + 4) else None)
            d = dma_stage(role, t + 4)
            pre = []; post = []
            if role == 1:
                if t == cv_t: d = d + conv_dma(); marks[1]["cv"] = len(vm.ops)
                k = t - (cv_t + 4)
                if k >= 0 and k % 2 == 1 and k // 2 < 5: pre = [cv_store(k // 2)]
                if k >= 0 and k % 2 == 0 and k // 2 < 5: post = [cv_read(k // 2)]
            if t + 1 < NP1: rd = p1_reads(t + 1)
            else:
                rd = [f"v_bfe_u32 v{vTKB}, v0, 1, 3\nv_lshrrev_b32 v{vTOK}, 4, v0\nv_xor_b32 v{vTKB}, v{vTKB}, v{vTOK}\nv_lshlrev_b32 v{vTKB}, 4, v{vTKB}\nv_and_b32 v{vTOK}, 15, v0\nv_lshl_or_b32 v{vTKB}, v{vTOK}, 7, v{vTKB}\nv_add_u32 v{vTOK}, s{sLD}, v{vTKB}\nv_xor_b32 v{vW[3]}, 64, v{vTOK}\nv_xor_b32 v{vW[0]}, {role*32}, v{vWB}\nv_xor_b32 v{vW[1]}, {64 + role*32}, v{vWB}\nv_xor_b32 v{vW[2]}, {128 + role*32}, v{vWB}"] + a1_reads(G_A1)
            interleave(a, p1_mfmas(role, t, first=(t == 0)), merge(rd, d + pre + pf_at(role, t)) + post)
        a("s_nop 7")
        for m in range(63, -1, -1):
            a(f"v_cvt_pk_bf16_f32 v{192+m}, v{ACC+2*m}, v{ACC+2*m+1}")
        stamp(a, 1, [vm])
        a(f"""s_lshl_b32 s{sT2}, s{sHP}, 10
        v_lshrrev_b32 v{t1}, 4, v0
        v_and_b32 v{t2}, 15, v0
        v_lshlrev_b32 v{t3}, 1, v{t2}
        v_lshl_or_b32 v{t3}, v{t1}, 7, v{t3}
        buffer_load_ushort v{vPH}, v{t3}, {srd_s(R_PHI)}, s{sT2} offen offset:{role*512}
        buffer_load_ushort v{vPH+1}, v{t3}, {srd_s(R_PHI)}, s{sT2} offen offset:{role*512+64}
        buffer_load_ushort v{vPH+2}, v{t3}, {srd_s(R_PHI)}, s{sT2} offen offset:{role*512+32}
        buffer_load_ushort v{vPH+3}, v{t3}, {srd_s(R_PHI)}, s{sT2} offen offset:{role*512+96}""")
        vm.add("phi", 4)
        cst = [f"v_lshlrev_b32 v{t1}, 2, v{t1}\nv_sub_u32 v{t1}, v{t2}, v{t1}\nv_mov_b32 v{t2}, 0x3f80\nv_mov_b32 v{t3}, 0x3f800000"]
        for j in range(2):
            cst.append(f"v_cmp_eq_u32 vcc, {2*j}, v{t1}\nv_mov_b32 v{SEL+2+j}, 0\nv_mov_b32 v{SEL+4+j}, 0\nv_cndmask_b32 v{SEL+j}, 0, v{t2}, vcc")
            cst.append(f"v_cmp_eq_u32 vcc, {2*j+1}, v{t1}\nv_mov_b32 v{ONES+2*j}, 0x3f803f80\nv_mov_b32 v{ONES+2*j+1}, 0x3f803f80\nv_cndmask_b32 v{SEL+j}, v{SEL+j}, v{t3}, vcc")
        cst.append(f"v_mov_b32 v{SEL+6}, v{SEL}\nv_mov_b32 v{SEL+7}, v{SEL+1}")
        for t in range(G_A1, G_P2):
            s = t - G_A1
            sync(role, t + 1)
            d = dma_stage(role, t + 4)
            ex = []
            ex += st_slot([role], s)
            if 1 <= s <= 6: ex.append(cst[s - 1])
            rd = a1_reads(t + 1) if t + 1 < G_P2 else []
            interleave(a, a1_mfmas(t, t == G_A1), merge(rd, d + ex + pf_at(role, t)))
        stamp(a, 2, [vm])
        a(f"s_waitcnt vmcnt({min(vm.n_after('phi'), vm.n_after('pf') if vm.has('pf') else 63)})")
        assert role == 0 or "pf" not in marks[1] or len(vm.ops) - marks[1]["pf"] >= vm.n_after('phi')
    part1(0)
    a("s_branch a1_epi\nstream_s:")
    part1(1)
    a("a1_epi:")
    vSP = 124
    stn = [8]
    def epi_store():
        for x in st_slot([0, 1], stn[0]): a(x)
        stn[0] += 1
    L2E = f32(math.log2(math.e))
    a(f"s_mov_b32 s{sSCL}, {L2E}")
    a(f"v_lshl_or_b32 v{vPH}, v{vPH+2}, 16, v{vPH}\nv_lshl_or_b32 v{vPH+1}, v{vPH+3}, 16, v{vPH+1}")
    epi_store()
    a("s_nop 2")
    B = 32
    QB, KB_, VB = B, B + 4, B + 8
    for T in range(2):
        for j in range(2):
            a(f"v_cvt_pk_bf16_f32 v{QB+2*T+j}, v{AQ+4*T+2*j}, v{AQ+4*T+2*j+1}")
            a(f"v_cvt_pk_bf16_f32 v{KB_+2*T+j}, v{AK+4*T+2*j}, v{AK+4*T+2*j+1}")
    PP = B + 12
    a("s_nop 1")
    for i in range(4):
        a(f"v_mfma_f32_16x16x16_bf16 {vr(PP+4*i,4)}, {vr(vPH,2)}, {vr(QB+2*i,2)}, 0")
    for T in range(2):
        for j in range(2):
            a(f"v_cvt_pk_bf16_f32 v{VB+2*T+j}, v{AV+4*T+2*j}, v{AV+4*T+2*j+1}")
    a(f"s_lshl_b32 s{sT0}, s{sW}, 12\nv_add_u32 v{vTOK}, s{sT0}, v{vTKB}\nv_mov_b32 v{vW[0]}, v{vWB}")
    for b in range(1, 8): a(f"v_xor_b32 v{vW[b]}, {b*32}, v{vWB}")
    MX = B + 40; EX = B + 56
    for i in range(4):
        p = PP + 4 * i
        a(f"v_max3_f32 v{MX+2*i}, v{p}, v{p+1}, v{p+2}\nv_max3_f32 v{MX+2*i+1}, -v{p}, -v{p+1}, -v{p+2}")
    for i in range(4):
        p = PP + 4 * i
        a(f"v_max_f32 v{MX+2*i}, v{MX+2*i}, v{p+3}\nv_max_f32_e64 v{MX+2*i+1}, v{MX+2*i+1}, -v{p+3}")
    def xreduce(op, mid):
        a("s_nop 1")
        for i in range(4): a(f"v_permlane32_swap_b32 v{MX+2*i}, v{MX+2*i+1}")
        for i in range(4): a(f"{op} v{MX+2*i}, v{MX+2*i}, v{MX+2*i+1}")
        a("s_nop 1")
        for i in range(2): a(f"v_permlane16_swap_b32 v{MX+4*i}, v{MX+4*i+2}")
        a("s_nop 0")
        for i in range(2): a(f"{op} v{MX+4*i}, v{MX+4*i}, v{MX+4*i+2}")
        for i in range(2): a(mid(MX + 4 * i))
        a("s_nop 0")
        for i in range(2): a(f"v_mov_b32 v{MX+4*i+2}, v{MX+4*i}")
        a("s_nop 1")
        for i in range(2): a(f"v_permlane16_swap_b32 v{MX+4*i}, v{MX+4*i+2}")
        a("s_nop 0")
        for i in range(4): a(f"v_mov_b32 v{MX+2*i+1}, v{MX+2*i}")
        a("s_nop 1")
        for i in range(4): a(f"v_permlane32_swap_b32 v{MX+2*i}, v{MX+2*i+1}")
        a("s_nop 0")
    epi_store()
    xreduce("v_max_f32", lambda r: f"v_mul_f32 v{r}, s{sSCL}, v{r}")
    epi_store()
    for i in range(4):
        p = PP + 4 * i
        for r in range(4):
            a(f"v_fma_f32 v{EX+8*i+r}, v{p+r}, s{sSCL}, -v{MX+2*i}\nv_fma_f32 v{EX+8*i+4+r}, -v{p+r}, s{sSCL}, -v{MX+2*i+1}")
    epi_store()
    for r in range(32): a(f"v_exp_f32 v{EX+r}, v{EX+r}")
    epi_store()
    for i in range(8):
        e = EX + 4 * i
        a(f"v_add_f32 v{MX+i}, v{e}, v{e+1}\nv_add_f32 v{PP+i}, v{e+2}, v{e+3}")
    for i in range(8): a(f"v_add_f32 v{MX+i}, v{MX+i}, v{PP+i}")
    xreduce("v_add_f32", lambda r: f"v_rcp_f32 v{r}, v{r}")
    epi_store()
    for i in (4, 5, 6, 7):
        for r in range(4): a(f"v_mul_f32 v{EX+4*i+r}, v{EX+4*i+r}, v{MX+i}")
    PHK = B + 12
    for T in range(2):
        for j in range(4):
            a(f"v_cvt_pk_bf16_f32 v{PHK+4*T+j}, v{EX+16+8*T+2*j}, v{EX+16+8*T+2*j+1}")
    a("s_nop 1")
    TR = EX + 16
    for sg in range(2):
        for T in range(2):
            a(mfma16(TR + 8 * sg + 4 * T, PHK + 4 * T, SEL + 4 * sg, "0"))
    for i in (0, 1, 2, 3):
        for r in range(4): a(f"v_mul_f32 v{EX+4*i+r}, v{EX+4*i+r}, v{MX+i}")
    PKT = B + 20
    for sg in range(2):
        for j in range(4):
            a(f"v_cvt_pk_bf16_f32 v{PKT+4*sg+j}, v{TR+8*sg+2*j}, v{TR+8*sg+2*j+1}")
    a("s_nop 1")
    KVZ = 128
    for sg in range(2):
        a(mfma16(KVZ + 4 * sg, PKT + 4 * sg, VB, "0"))
        a(mfma16(KVZ + 8 + 4 * sg, PKT + 4 * sg, ONES, "0"))
    for T in range(2):
        for j in range(4):
            a(f"v_cvt_pk_bf16_f32 v{vPHIQ+4*T+j}, v{EX+8*T+2*j}, v{EX+8*T+2*j+1}")
    epi_store()
    a(f"s_lshl_b32 s{sT0}, s{sW}, 12\ns_add_u32 s{sT0}, s{sT0}, {SCR}\nv_add_u32 v{t1}, s{sT0}, v{vL16}")
    for qd in range(4): a(f"ds_write_b128 v{t1}, {vr(KVZ+4*qd,4)} offset:{qd*1024}")
    a(f"""s_lshr_b32 s{sT0}, s{sW}, 2
    s_lshl_b32 s{sT0}, s{sT0}, 14
    s_lshl_b32 s{sT1}, s{sW3}, 10
    s_add_u32 s{sT0}, s{sT0}, s{sT1}
    s_add_u32 s{sT0}, s{sT0}, {SCR}
    v_add_u32 v{t1}, s{sT0}, v{vL16}
    s_lshl_b32 s{sT0}, s{sHP}, 1
    s_lshr_b32 s{sT2}, s{sW}, 2
    s_add_u32 s{sT0}, s{sT0}, s{sT2}
    s_lshl_b32 s{sT0}, s{sT0}, 4
    s_add_u32 s{sT0}, s{sT0}, s{sTBA}
    s_lshl_b32 s{sT0}, s{sT0}, 12
    s_add_u32 s{sT0}, s{sT0}, s{sT1}
    s_add_u32 s{sT0}, s{sT0}, {KVP}""")
    epi_store()
    assert stn[0] == 16 and landed[0] == G_P2 + 1
    a("s_waitcnt lgkmcnt(0)\ns_barrier")
    for i in range(4): a(f"ds_read_b128 {vr(KVZ+4*i,4)}, v{t1} offset:{i*4096}")
    rd = p2_reads(G_P2)
    for f in rd[:10]: a(f)
    a("s_waitcnt lgkmcnt(10)")
    for f in rd[10:]: a(f)
    for r in (0, 2): a(f"v_pk_add_f32 {vr(KVZ+r,2)}, {vr(KVZ+r,2)}, {vr(KVZ+4+r,2)}\nv_pk_add_f32 {vr(KVZ+8+r,2)}, {vr(KVZ+8+r,2)}, {vr(KVZ+12+r,2)}")
    for r in (0, 2): a(f"v_pk_add_f32 {vr(72+r,2)}, {vr(KVZ+r,2)}, {vr(KVZ+8+r,2)}")
    a(f"buffer_store_dwordx4 {vr(72,4)}, v{vL16}, {srd_s(R_WS)}, s{sT0} offen sc1")
    for r in range(2): VMS[r].add("pst"); marks[r]["pst"] = len(VMS[r].ops)
    stamp(a, 3, VMS)
    a(f"s_cmp_ge_u32 s{sW}, 4\ns_cbranch_scc1 p2_s")

    def att_dma_parts():
        pre = f"""s_cmp_le_u32 s{sDST}, s{sTMAX}
        s_cselect_b32 s{sDK}, s{sKO}, {OOB}
        s_cselect_b32 s{sDV}, s{sVO}, {OOB}
        s_mov_b32 m0, s{sDSL}
        s_add_u32 s{sKO}, s{sKO}, 16384"""
        ld = [f"buffer_load_dwordx4 v{vL16}, {srd_s(R_WS)}, s{sDK} offen offset:{i*1024} lds" for i in range(4)] + \
             [f"buffer_load_dwordx4 v{vL16}, {srd_s(R_WS)}, s{sDV} offen offset:{i*1024} lds" for i in range(4)]
        ld[4] = f"s_add_u32 m0, s{sDSL}, 16384\ns_add_u32 s{sVO}, s{sVO}, 16384\n" + ld[4]
        post = f"""s_add_u32 s{sDST}, s{sDST}, 1
        s_add_u32 s{sDSL}, s{sDSL}, {SLOT}
        s_cmp_ge_u32 s{sDSL}, {5*SLOT}
        s_cselect_b32 s{sDSL}, s{sLD}, s{sDSL}"""
        if CFG.get("nodma"): ld = ["s_nop 0"] * 8
        return pre, ld, post
    def att_dma():
        pre, ld, post = att_dma_parts()
        a(pre)
        for x in ld: a(x)
        a(post)
    PL = 192
    KR_ = 112
    def part2(role):
        vm = VMS[role]
        npl = [0]
        for t in range(G_P2, G_END):
            s = t - G_P2
            cover = None
            if s == CFG["s_pf"]: cover = max(marks[role]["fast"], marks[role]["pst"])
            if s == CFG["s_ps"]: cover = marks[role]["slow"]; assert max(CFG["slow"][role]) - 16 < s
            if role == 0 and s == CFG["s_go"] and not CFG.get("nopoll"): cover = marks[0]["inv"]
            if role == 0 and s == CFG["s_chk"] and not CFG.get("nopoll"):
                l, r = a.lab("chk"), a.lab("chkr")
                a(f"s_cmp_eq_u32 s{sW}, 0\ns_cbranch_scc1 {l}\n{r}:")
                ool.append(poll_code(l, r, 0xffff00 | ((1 << CFG["lvlA"]) - 1), len(vm.ops) - marks[0]["fl"], t3, t4))
                marks[0]["inv"] = len(vm.ops)
            sync(role, t + 1, cover)
            if role == 0 and s in (CFG["s_pf"], CFG["s_ps"]):
                l, r = a.lab("pub"), a.lab("pubr")
                a(f"s_cmp_eq_u32 s{sW}, 0\ns_cbranch_scc1 {l}\n{r}:")
                x = f"{l}:\n{flag_voff(t4)}\nv_add_u32 v{t2}, 1, v{vSNAP}\ns_lshl_b32 s{sT3}, 1, s{sTB}\ns_cmp_lt_u32 s{sTB}, {CFG['lvlA']}\n"
                if s == CFG["s_pf"]:
                    x += f"s_cselect_b32 s{sT3}, s{sT3}, 0\ns_lshl_b32 s{sTD}, 0x100, s{sTBA}\ns_or_b32 exec_lo, s{sT3}, s{sTD}\n"
                    x += f"buffer_store_dword v{t2}, v{t4}, {srd_s(R_WS)}, s{sT2} offen sc1\ns_mov_b64 exec, -1\ns_branch {r}"
                else:
                    sk = a.lab("pubs")
                    x += f"s_cbranch_scc1 {sk}\ns_mov_b32 exec_lo, s{sT3}\nbuffer_store_dword v{t2}, v{t4}, {srd_s(R_WS)}, s{sT2} offen sc1\n{sk}:\ns_mov_b64 exec, -1\ns_branch {r}"
                ool.append(x)
            if role == 0 and s == CFG["s_pl"] and not CFG.get("nopoll"):
                l, r = a.lab("fl"), a.lab("flr")
                a(f"s_cmp_eq_u32 s{sW}, 0\ns_cbranch_scc1 {l}\n{r}:")
                ool.append(f"{l}:\n{flag_load(t3, t4)}\ns_branch {r}")
                marks[0]["fl"] = len(vm.ops)
            pre = []
            d = dma_stage(role, t + 4)
            rd = p2_reads(t + 1) if t + 1 < G_END else []
            ex = st_slot([role], 16 + s)
            if s == CFG["s_go"]:
                ex.append(f"""s_lshl_b32 s{sT0}, s{sHP}, 17
                s_lshl_b32 s{sT1}, s{sW3}, 10
                s_add_u32 s{sT0}, s{sT0}, s{sT1}
                s_add_u32 s{sT0}, s{sT0}, {KVP + role * 65536}
                s_cmp_lt_u32 s{sW3}, 2
                s_cselect_b32 s{sT1}, -1, 0x300
                v_and_b32 v{t1}, s{sT1}, v{vL16}""")
            nd = {CFG["s_go"]: 1, 13: 1, 15: 2}.get(s, 0) if role == 1 else 0
            assert CFG["s_go"] < 13
            if s >= CFG["s_go"]:
                left = 15 - s
                k = 16 - npl[0] if left <= 1 else min(16 - npl[0], 6 if role == 0 else 3)
                k = min(k, marks[role]["nslow"] - npl[0])
                for i in range(npl[0], npl[0] + k):
                    ex.append(f"buffer_load_dwordx4 {vr(PL+4*i,4)}, v{t1}, {srd_s(R_WS)}, s{sT0} offen\ns_add_u32 s{sT0}, s{sT0}, 4096")
                    vm.add("pl")
                npl[0] += k
            for i in range(nd):
                p_, ld, post = att_dma_parts()
                ex += [p_] + ld + [post]; vm.add("adma", 8)
            interleave(a, p2_mfmas(t, t == G_P2), pre + merge(rd, d + ex))
        assert npl[0] == 16
        stamp(a, 4, [vm])
    part2(0)
    a("s_branch q_epi\np2_s:")
    if CFG["p2prio"]: a("s_setprio 1")
    part2(1)
    a("q_epi:")
    if CFG.get("trace"):
        a(f"s_waitcnt lgkmcnt(0)\nv_writelane_b32 v19, s100, {G_END - G_A1}\ns_lshl_b32 s94, s2, 3\ns_add_u32 s94, s94, s{sW}\ns_lshl_b32 s94, s94, 9\ns_add_u32 s94, s94, {STAMP + 0x100000}\nv_lshlrev_b32 v21, 2, v0")
        a(f"buffer_store_dword v19, v21, {srd_s(R_WS)}, s94 offen offset:256\ns_nop 2")
    vSP = 22
    Q = 32
    vLs = (3, 4)
    vE = [5, 6, 7, 8, 9, 10]
    vM, vM2, vD, vNINF = 11, 12, 13, 14
    O, S, NEG, P, KR, VR = 64, (128, 144), 160, (176, 184), 192, 224
    a(f"s_mov_b32 s{sSCL}, {f32(math.log2(math.e) / math.sqrt(128.0))}")
    for r in range(16):
        c = 16 * ((r // 4) % 2) + 8 * (r // 8) + r % 4
        m = sum(1 << l for l in range(64) if c > (l % 32) - 4 * (l // 32))
        a(f"s_mov_b32 s{sMASK+2*r}, {hex(m & 0xffffffff)}\ns_mov_b32 s{sMASK+2*r+1}, {hex(m >> 32)}")
    nl2 = a.lab("w_s"); nl3 = a.lab("w_d")
    a(f"s_cmp_ge_u32 s{sW}, 4\ns_cbranch_scc1 {nl2}\ns_waitcnt vmcnt({VMS[0].n_after('pl')})\n{nl2}:\ns_waitcnt vmcnt({VMS[1].n_after('pl')})")
    for st in (8, 4, 2, 1):
        for i in range(st):
            for r in (0, 2): a(f"v_pk_add_f32 {vr(PL+4*i+r,2)}, {vr(PL+4*i+r,2)}, {vr(PL+4*(i+st)+r,2)}")
    a(f"v_cvt_pk_bf16_f32 v{O+4}, v{PL}, v{PL+1}\nv_cvt_pk_bf16_f32 v{O+5}, v{PL+2}, v{PL+3}")
    a(f"""s_lshr_b32 s{sT0}, s{sW}, 1
    s_lshl_b32 s{sT0}, s{sT0}, 10
    s_and_b32 s{sT1}, s{sW}, 1
    s_lshl_b32 s{sT1}, s{sT1}, 3
    s_add_u32 s{sT0}, s{sT0}, s{sT1}
    s_add_u32 s{sT0}, s{sT0}, {3*SLOT}
    v_add_u32 v{vKV}, s{sT0}, v{vL16}
    ds_write_b64 v{vKV}, {vr(O+4,2)}
    s_lshr_b32 s{sT0}, s{sW}, 2
    s_lshl_b32 s{sT0}, s{sT0}, 11
    s_add_u32 s{sT0}, s{sT0}, {3*SLOT}
    v_add_u32 v{vKV}, s{sT0}, v{vL16}
    v_add_u32 v{vM}, {4*SLOT}, v{vL16}""")
    a("s_waitcnt vmcnt(24) lgkmcnt(0)\ns_barrier")
    a(f"ds_read_b128 {vr(O+8,4)}, v{vKV}\nds_read_b128 {vr(O+12,4)}, v{vKV} offset:1024")
    for c in range(8): a(f"ds_read_b128 {vr(KR+4*c,4)}, v{vM} offset:{c*1024}")
    for r in range(0, 64, 2): a(f"v_pk_mul_f32 {vr(128+r,2)}, {vr(128+r,2)}, s[{sSCL}:{sSCL+1}] op_sel_hi:[1,0]")
    a("s_waitcnt lgkmcnt(8)")
    for T in range(2):
        a(mfma16(O + 16 + 8 * T, O + 8, vPHIQ + 4 * T, "0"))
        a(mfma16(O + 20 + 8 * T, O + 12, vPHIQ + 4 * T, "0"))
    for m in range(32): a(f"v_cvt_pk_bf16_f32 v{Q+m}, v{128+2*m}, v{128+2*m+1}")
    a(f"v_mov_b32 v{vNINF}, 0xff800000\ns_nop 0")
    for i in range(4):
        for r in range(4): a(f"v_permlane16_swap_b32 v{Q+8*i+r}, v{Q+8*i+4+r}")
    stamp(a, 5)
    a(f"""s_lshl_b32 s{sT0}, s{sTBA}, 3
    s_lshl_b32 s{sT1}, s{sW3}, 1
    s_add_u32 s{sT0}, s{sT0}, s{sT1}
    s_lshl_b32 s{sT0}, s{sT0}, 4
    s_add_u32 s{sT0}, s{sT0}, s{sHP}
    s_lshl_b32 s{sT0}, s{sT0}, 10
    s_lshr_b32 s{sT1}, s{sW}, 2
    s_lshl_b32 s{sT1}, s{sT1}, 3
    s_add_u32 s{sT0}, s{sT0}, s{sT1}
    s_add_u32 s{sT0}, s{sT0}, {OAF}
    s_add_u32 s{sT1}, s{sT0}, 16384""")
    a("s_waitcnt lgkmcnt(0)")
    fill = []
    for T in range(2):
        n, d = O + 16 + 8 * T, O + 20 + 8 * T
        fill.append(f"v_add_f32 v{d}, {f32(1e-6)}, v{d}\nv_rcp_f32 v{d}, v{d}")
        fill.append("\n".join(f"v_mul_f32 v{n+r}, v{n+r}, v{d}" for r in range(4)))
        fill.append(f"v_cvt_pk_bf16_f32 v{vPHIQ+2*T}, v{n}, v{n+1}\nv_cvt_pk_bf16_f32 v{vPHIQ+2*T+1}, v{n+2}, v{n+3}\nbuffer_store_dwordx2 {vr(vPHIQ+2*T,2)}, v{vL16}, {srd_s(R_WS)}, s{sT0+T} offen")
    fill += ["s_nop 0", "s_nop 0"]
    for c in range(8):
        a(mfma32(S[0], KR + 4 * c, Q + 4 * c, "0" if c == 0 else None))
        a(f"ds_read_b128 {vr(KR+4*c,4)}, v{vM} offset:{8192+c*1024}")
        a(fill[c])
    a("s_nop 9")
    stamp(a, 6)
    def mask_op(s, r): return f"v_cndmask_b32 v{s+r}, v{s+r}, v{vNINF}, s[{sMASK+2*r}:{sMASK+2*r+1}]"
    def rowmax(s):
        a(f"v_max3_f32 v{vM}, v{s}, v{s+1}, v{s+2}")
        for r in range(3, 15, 2): a(f"v_max3_f32 v{vM}, v{vM}, v{s+r}, v{s+r+1}")
        a(f"v_max_f32 v{vM}, v{vM}, v{s+15}\nv_mov_b32 v{vM2}, v{vM}\ns_nop 1\nv_permlane32_swap_b32 v{vM}, v{vM2}\ns_nop 1\nv_max_f32 v{vM}, v{vM}, v{vM2}")
    nm = a.lab("nomask0")
    a(f"s_cmp_lg_u32 s{sG}, 0\ns_cbranch_scc1 {nm}")
    for r in range(16): a(mask_op(S[0], r))
    a(f"{nm}:")
    rowmax(S[0])
    a(f"v_sub_f32 v{NEG}, {f32(-CFG['bias'])}, v{vM}")
    for r in range(1, 16): a(f"v_mov_b32 v{NEG+r}, v{NEG}")
    for r in range(0, 16, 2): a(f"v_pk_add_f32 {vr(S[0]+r,2)}, {vr(S[0]+r,2)}, {vr(NEG,2)}")
    a(f"v_mov_b32 v{vLs[1]}, 0\ns_mov_b32 s{sSLOT}, {4*SLOT}\ns_mov_b32 s{sREM}, s{sG}\ns_mov_b32 s{sSTG}, 0\ns_mov_b32 s98, 0")

    slot_adv = f"s_add_u32 s{sSLOT}, s{sSLOT}, {SLOT}\ns_cmp_ge_u32 s{sSLOT}, {5*SLOT}\ns_cselect_b32 s{sSLOT}, 0, s{sSLOT}\ns_add_u32 s{sSTG}, s{sSTG}, 1"
    kv_adv = f"v_add_u32 v{vKV}, s{sSLOT}, v{vL16}"
    def bar(vmn):
        w = f"s_waitcnt vmcnt({vmn})\n" if vmn is not None else ""
        if CFG.get("bartime"):
            a(f"s_waitcnt lgkmcnt(0)\ns_memtime s[94:95]\ns_waitcnt lgkmcnt(0)\n{w}s_barrier\ns_memtime s[96:97]\ns_waitcnt lgkmcnt(0)\ns_sub_u32 s96, s96, s94\ns_add_u32 s98, s98, s96\ns_mov_b32 s97, m0\ns_mov_b32 m0, s{sSTG}\ns_nop 0\nv_writelane_b32 v21, s96, m0\ns_mov_b32 m0, s97")
        elif CFG.get("nobar"): pass
        else: a(w + "s_barrier")
    def gen_sync(vmn=16):
        a(slot_adv); a(kv_adv)
        bar(vmn)
        nl = a.lab("nold")
        a(f"s_cmp_lt_u32 s{sW}, 4\ns_cbranch_scc1 {nl}")
        att_dma()
        a(f"{nl}:")
    def cond_sync(vmn=16):
        sk = a.lab("nosync")
        a(f"s_cmp_ge_u32 s{sSTG}, s{sTMAX}\ns_cbranch_scc1 {sk}")
        gen_sync(vmn)
        a(f"{sk}:")
    EG = [0, 0, 1, 2, 3, 4, 5, 6, 6, 7, 8, 9, 10, 11, 12, 13]
    def sm_ops(p, masked=False):
        s = S[p]; g = [[] for _ in range(16)]; pre = []
        NE = len(vE)
        for m in range(16):
            g[EG[m]].append(f"v_exp_f32 v{vE[m%NE]}, v{s+m}")
        for m in range(16):
            src = vLs[1 - p] if m == 0 else vLs[p]
            g[EG[m] + 1].append(f"v_add_f32 v{vLs[p]}, v{src}, v{vE[m%NE]}")
        for k in range(8):
            g[EG[2 * k + 1] + 1].append(f"v_cvt_pk_bf16_f32 v{P[p]+k}, v{vE[(2*k)%NE]}, v{vE[(2*k+1)%NE]}")
        if masked:
            for m in range(16):
                if EG[m] == 0: pre.append(mask_op(s, m))
                else: g[EG[m] - 1].append(mask_op(s, m))
        return pre, g
    rets = []
    ORDER = CFG.get("order", "QPQPQPQPQQPQQPPP")
    def real_check(p):
        r = a.lab("ret"); rets.append((p, r))
        return f"v_cmp_nge_f32 vcc, s{sTHR}, v{vLs[p]}\ns_mov_b32 s{sRET}, {len(rets)-1}\ns_cbranch_vccnz rare{p}\n{r}:"
    def body(p, qk=True, pv=True, sm=True, vrd=True, w0=8, w1=8, masked=False, extra=None, hot=False, barrier=None):
        pre, g = sm_ops(p, masked) if sm else ([], [[] for _ in range(16)])
        if sm and hot:
            g[14].insert(len(g[14]) - 1, f"v_cmp_nge_f32 vcc, s{sTH}, v{vLs[p]}")
        for k, x in (extra or {}).items(): g[k] += x
        for x in pre: a(x)
        nq = npv = 0
        for m in range(16):
            if m == 0: a(f"s_waitcnt lgkmcnt({w0})")
            if m == 8: a(f"s_waitcnt lgkmcnt({w1})")
            rd = None
            if ORDER[m] == "Q":
                if qk:
                    a(mfma32(S[1 - p], KR + 4 * nq, Q + 4 * nq, vr(NEG, 16) if nq == 0 else None))
                    rd = f"ds_read_b128 {vr(KR+4*nq,4)}, v{vKV} offset:{p*8192+nq*1024}"
                nq += 1
            else:
                t, u = npv % 4, npv // 4
                f = 2 * t + u
                if pv: a(mfma32(O + 16 * t, VR + 4 * f, P[1 - p] + 4 * u))
                if vrd: rd = f"ds_read_b128 {vr(VR+4*f,4)}, v{vKV} offset:{16384+p*8192+f*1024}"
                npv += 1
            if m == 0 and barrier is not None:
                for x in g[0]: a(x)
                barrier()
                if rd: a(rd)
            else:
                if rd: a(rd)
                for x in g[m]: a(x)
        if sm and not hot: a(real_check(p))
    zero_o = {k: ["\n".join(f"v_mov_b32 v{O+4*k+r}, 0" for r in range(4))] for k in range(16)}
    a("s_waitcnt lgkmcnt(0)")
    gen_sync()
    a(f"s_cmp_eq_u32 s{sG}, 0\ns_cbranch_scc1 att_g0")
    body(0, pv=False, extra=zero_o)
    a(f"s_cmp_eq_u32 s{sREM}, 1\ns_cbranch_scc1 att_last_odd")
    if CFG.get("prio") is not None:
        pl = a.lab("prio")
        a(f"s_setprio 0\ns_cmp_{'ge' if CFG['prio'] == 0 else 'lt'}_u32 s{sW}, 4\ns_cbranch_scc1 {pl}\ns_setprio 1\n{pl}:")
    else: a("s_setprio 0")
    a(f"s_cmp_ge_u32 s{sW}, 4\ns_cbranch_scc1 att_loop1")
    HB = 4 * CFG["lvlA"] - 5
    sa = slot_adv.split("\n")
    for role in range(2):
        if CFG.get("align"):
            if role == 0: a("s_branch att_loop0")
            a.body.append(f".p2align {CFG['align']}")
            for _ in range(CFG.get("apad", 0)): a("s_nop 0")
        a(f"att_loop{role}:")
        ex = {2: [f"s_sub_u32 s{sREM}, s{sREM}, 2", sa[3]], 4: [f"s_cmp_eq_u32 s{sREM}, 0", f"s_cselect_b32 s{sTH}, -1.0, s{sTHR}"],
              11: sa[0:1], 13: sa[1:3], 15: [kv_adv]}
        if role == 0 and not CFG.get("nopoll"): ex[9] = [f"s_cmp_le_u32 s{sSTG}, {HB+2}", f"s_cselect_b32 s{sTH}, -1.0, s{sTH}"]
        body(1, extra=ex, hot=True)
        a(f"s_cbranch_vccnz att_sp{role}\natt_cont{role}:")
        ex = {k: [] for k in range(16)}
        ex[13] += [f"s_cmp_eq_u32 s{sREM}, 1", f"s_cselect_b32 s{sTH}, -1.0, s{sTHR}"]
        if role:
            pre, ld, post = att_dma_parts()
            ex[2].append(pre)
            for i in range(8): ex[CFG.get("dgaps", [2, 4, 5, 6, 9, 10, 11, 12])[i]].append(ld[i])
            ex[15].append(post)
        body(0, extra=ex, hot=True, barrier=lambda: bar(16 if role else None))
        a(f"s_cbranch_vccz att_loop{role}")
        a(real_check(0))
        a(f"s_cmp_lg_u32 s{sREM}, 1\ns_cbranch_scc1 att_loop{role}\ns_branch att_last_odd")
        a(f"att_sp{role}:")
        a(real_check(1))
        if role == 0: a(f"s_cmp_le_u32 s{sSTG}, {HB+2 if not CFG.get('nopoll') else 0}\ns_cbranch_scc1 lvlb\nlvlb_ret:")
        a(f"s_cmp_lg_u32 s{sREM}, 0\ns_cbranch_scc1 att_cont{role}")
        bar(16 if role else None)
        a(f"s_branch att_last_even{role}")
    a("att_g0:")
    body(0, qk=False, pv=False, extra=zero_o)
    a("s_branch att_fin_odd")
    a("att_last_even1:")
    att_dma()
    a("att_last_even0:")
    a(f"s_setprio {CFG.get('tailprio', 2)}\ns_nop 3")
    body(0, qk=False, w1=4, masked=True)
    a("att_fin_odd:")
    a(f"v_mov_b32 v{vD}, v{vLs[0]}")
    body(1, qk=False, sm=False, vrd=False, w0=0, w1=0)
    cond_sync()
    a("s_branch att_done")
    a("att_last_odd:")
    a(f"s_setprio {CFG.get('tailprio', 2)}\ns_nop 3")
    body(1, qk=False, w1=4, masked=True)
    a("s_waitcnt lgkmcnt(0)")
    cond_sync()
    a(f"v_mov_b32 v{vD}, v{vLs[1]}")
    body(0, qk=False, sm=False, vrd=False, w0=0, w1=0)
    a("att_done:")
    stamp(a, 7)
    if CFG.get("bartime"):
        a(f"s_lshl_b32 s94, s2, 3\ns_add_u32 s94, s94, s{sW}\ns_lshl_b32 s94, s94, 9\ns_add_u32 s94, s94, {STAMP + 0x100000}\nv_lshlrev_b32 v19, 2, v0\nbuffer_store_dword v21, v19, {srd_s(R_WS)}, s94 offen")
        a(f"s_getreg_b32 s99, hwreg(HW_REG_HW_ID)\nv_mov_b32 v{vSP}, s98\nv_mov_b32 v{vSP+1}, s99\nbuffer_store_dwordx2 v[{vSP}:{vSP+1}], off, {srd_s(R_WS)}, s{sSTAMP} offset:16")
    a(f"v_mov_b32 v{vM}, v{vD}\ns_nop 1\nv_permlane32_swap_b32 v{vM}, v{vD}\ns_nop 1\nv_add_f32 v{vD}, v{vD}, v{vM}\nv_rcp_f32 v{vD}, v{vD}")
    a(f"""v_bfe_u32 v{vM}, v0, 4, 1
    v_lshlrev_b32 v{vM}, 17, v{vM}
    v_lshrrev_b32 v{vM2}, 5, v0
    v_lshl_or_b32 v{vM}, v{vM2}, 8, v{vM}
    v_and_b32 v{vM2}, 15, v0
    v_lshl_or_b32 v{vM}, v{vM2}, 4, v{vM}
    s_lshl_b32 s{sT0}, s{sG}, 18
    s_lshl_b32 s{sT1}, s{sHEAD}, 12
    s_add_u32 s{sT0}, s{sT0}, s{sT1}
    s_add_u32 s{sT0}, s{sT0}, {CTX}""")
    for t in range(4):
        for c in range(2):
            b = O + 16 * t + 8 * c; d = KR + 4 * (2 * t + c)
            for r in range(0, 8, 2): a(f"v_pk_mul_f32 {vr(b+r,2)}, {vr(b+r,2)}, {vr(vD-1,2)} op_sel:[0,1] op_sel_hi:[1,1]")
            for j in range(4): a(f"v_cvt_pk_bf16_f32 v{d+j}, v{b+2*j}, v{b+2*j+1}")
            a(f"buffer_store_dwordx4 {vr(d,4)}, v{vM}, {srd_s(R_WS)}, s{sT0} offen offset:{t*1024+c*512} {CFG['ctx_flags']}")
    l, r = a.lab("fb"), a.lab("fbr")
    a(f"s_cmp_eq_u32 s{sW}, 4\ns_cbranch_scc1 {l}\n{r}:")
    ool.append(f"""{l}:
    s_lshl_b32 s{sT2}, s{sHEAD}, 2
    s_lshl_b32 s{sT3}, s{sHP}, 2
    s_add_u32 s{sT3}, s{sT3}, 128
    s_mov_b64 exec, 1
    {fb_publish(True, t1, t2)}
    s_lshl_b32 s{sT2}, s2, 7
    s_add_u32 s{sT2}, s{sT2}, {FLB}
    v_mov_b32 v{t3}, 0
    buffer_store_dword v{t3}, off, {srd_s(R_WS)}, s{sT2} sc1
    s_mov_b64 exec, -1
    s_branch {r}""")
    a(f"s_mov_b32 s{sCNT}, 0\nidle24:")
    a(f"s_cmp_ge_u32 s{sSTG}, s{sTMAX}\ns_cbranch_scc1 ka_fin")
    gen_sync(24)
    a(f"s_add_u32 s{sCNT}, s{sCNT}, 1\ns_cmp_lt_u32 s{sCNT}, 3\ns_cbranch_scc1 idle24")
    a("idle16:")
    a(f"s_cmp_ge_u32 s{sSTG}, s{sTMAX}\ns_cbranch_scc1 ka_fin")
    gen_sync(16)
    a("s_branch idle16")
    a("ka_fin:")
    if CFG["stamps"]: a("s_waitcnt vmcnt(0)")
    stamp(a, 8)
    a(f"{END}:\ns_endpgm")
    a(f"""lvlb:
    s_cmp_lg_u32 s{sW}, 0
    s_cbranch_scc1 lvlb_ret
    s_cmp_eq_u32 s{sSTG}, {HB+1}
    s_cbranch_scc1 lvlb_chk
    s_cmp_eq_u32 s{sSTG}, {HB+2}
    s_cbranch_scc1 lvlb_wait
    s_cmp_lg_u32 s{sSTG}, {HB}
    s_cbranch_scc1 lvlb_ret
    {flag_load(t3, t4)}
    s_branch lvlb_ret
    lvlb_wait:
    s_waitcnt vmcnt(0)
    s_branch lvlb_ret""")
    a(poll_code("lvlb_chk", "lvlb_ret", 0xff, 0, t3, t4))
    for x in ool: a(x)
    for p in range(2):
        mine = [(i, r) for i, (pp, r) in enumerate(rets) if pp == p]
        if not mine: continue
        a(f"rare{p}:")
        a("s_nop 11")
        rowmax(S[p])
        a(f"v_add_f32 v{vD}, {f32(CFG['bias'])}, v{vM}\nv_max_f32 v{vD}, 0, v{vD}\nv_sub_f32 v{vM}, 0, v{vD}\nv_exp_f32 v{vM}, v{vM}")
        for r in range(16):
            a(f"v_sub_f32 v{S[0]+r}, v{S[0]+r}, v{vD}\nv_sub_f32 v{S[1]+r}, v{S[1]+r}, v{vD}\nv_sub_f32 v{NEG+r}, v{NEG+r}, v{vD}")
        for r in range(64): a(f"v_mul_f32 v{O+r}, v{O+r}, v{vM}")
        a(f"v_mul_f32 v{vLs[1-p]}, v{vLs[1-p]}, v{vM}")
        for grp in sm_ops(p)[1]:
            for x in grp: a(x)
            a("s_nop 0")
        a("s_nop 1")
        for i, r in mine[:-1]:
            a(f"s_cmp_eq_u32 s{sRET}, {i}\ns_cbranch_scc1 {r}")
        a(f"s_branch {mine[-1][1]}")
    a.kernel_end(K, denorm=CFG["denorm"])

def gen_KB(a):
    global vSP
    vSP = 22
    K = "kb_kernel"
    a.kernel_begin(K, 256, 256, 128 * 1024)
    END = "kb_end"
    R_OUT = 12
    vm = VM()
    a(f"s_cmp_ge_u32 s2, 256\ns_cbranch_scc1 {END}")
    a(f"s_load_dwordx2 s[{R_WS}:{R_WS+1}], s[0:1], 96\ns_load_dwordx2 s[{R_OUT}:{R_OUT+1}], s[0:1], 80")
    a(f"v_lshrrev_b32 v1, 6, v0\nv_and_b32 v0, 63, v0\nv_readfirstlane_b32 s{sW}, v1\nv_lshlrev_b32 v1, 4, v0")
    a(f"s_mov_b32 s{R_WS+2}, {WS_BYTES}\ns_mov_b32 s{R_WS+3}, 0x20000\ns_mov_b32 s{R_OUT+2}, {4<<20}\ns_mov_b32 s{R_OUT+3}, 0x20000")
    sRB, sCB, sKQ, sTI = 4, 5, 6, 7
    sD = [30 + i for i in range(4)]
    sM = 34
    sX = [36 + i for i in range(4)]; sY = [40 + i for i in range(4)]
    sRA, sCA, sOA, sOB, sEXW, sEXR = 44, 45, 46, 47, 48, 49
    a(f"""s_and_b32 s{sKQ}, s2, 3
    s_bfe_u32 s{sRB}, s2, 0x10002
    s_lshl_b32 s{sRB}, s{sRB}, 3
    s_bfe_u32 s{sT0}, s2, 0x30003
    s_add_u32 s{sRB}, s{sRB}, s{sT0}
    s_lshr_b32 s{sCB}, s2, 6
    s_lshl_b32 s{sTI}, s{sRB}, 2
    s_add_u32 s{sTI}, s{sTI}, s{sCB}
    s_lshl_b32 s{sT3}, s{sKQ}, 15
    s_lshl_b32 s{sM}, s{sW}, 12""")
    for e in range(2):
        a(f"""s_lshl_b32 s{sT0}, s{sW}, 1
        s_add_u32 s{sT0}, s{sT0}, {e}
        s_add_u32 s{sT1}, s{sT0}, s{sKQ}
        s_and_b32 s{sT1}, s{sT1}, 3
        s_and_b32 s{sT2}, s{sT0}, 4
        s_add_u32 s{sT1}, s{sT1}, s{sT2}
        s_lshl_b32 s{sT2}, s{sRB}, 3
        s_add_u32 s{sT1}, s{sT1}, s{sT2}
        s_lshl_b32 s{sT1}, s{sT1}, 17
        s_add_u32 s{sT1}, s{sT1}, s{sT3}
        s_add_u32 s{sD[e]}, s{sT1}, {CTX}
        s_lshl_b32 s{sT2}, s{sCB}, 3
        s_add_u32 s{sT0}, s{sT0}, s{sT2}
        s_lshl_b32 s{sT0}, s{sT0}, 17
        s_add_u32 s{sT0}, s{sT0}, s{sT3}
        s_add_u32 s{sD[2+e]}, s{sT0}, {WOF}""")
    NS = 16
    def dma(t):
        if t >= NS: return []
        out = []
        for u in range(4):
            m = (t % 4) * SLOT + (u >> 1) * 16384 + (u & 1) * 2048
            out.append(f"s_add_u32 m0, s{sM}, {m}\ns_add_u32 s{sTD}, s{sD[u]}, {t*2048}\nbuffer_load_dwordx4 v1, {srd_s(R_WS)}, s{sTD} offen lds")
            out.append(f"buffer_load_dwordx4 v1, {srd_s(R_WS)}, s{sTD} offen offset:1024 lds")
        vm.add(("dma", t), 8)
        return out
    a("s_waitcnt lgkmcnt(0)")
    stamp(a, 10, [vm])
    for t in range(CFG.get("kb_init", 3)):
        for x in dma(t): a(x)
    a(f"""s_lshr_b32 s{sT0}, s{sW}, 1
    s_lshl_b32 s{sT0}, s{sT0}, 13
    v_add_u32 v2, s{sT0}, v1
    v_add_u32 v3, 0x10000, v2
    s_and_b32 s{sT0}, s{sW}, 1
    s_lshl_b32 s{sT0}, s{sT0}, 13
    s_add_u32 s{sT0}, s{sT0}, 16384
    v_add_u32 v4, s{sT0}, v1
    v_add_u32 v5, 0x10000, v4""")
    a(f"""s_lshl_b32 s{sRA}, s{sRB}, 1
    s_lshr_b32 s{sT0}, s{sKQ}, 1
    s_add_u32 s{sRA}, s{sRA}, s{sT0}
    s_lshl_b32 s{sCA}, s{sCB}, 1
    s_and_b32 s{sT0}, s{sKQ}, 1
    s_add_u32 s{sCA}, s{sCA}, s{sT0}
    s_lshl_b32 s{sX[0]}, s{sRA}, 16
    s_add_u32 s{sX[0]}, s{sX[0]}, s{sM}
    s_add_u32 s{sX[0]}, s{sX[0]}, {OAF}
    s_lshl_b32 s{sY[0]}, s{sCA}, 16
    s_add_u32 s{sY[0]}, s{sY[0]}, s{sM}
    s_add_u32 s{sY[0]}, s{sY[0]}, {WOAF}""")
    for i in range(1, 4):
        a(f"s_add_u32 s{sX[i]}, s{sX[0]}, {i*16384}\ns_add_u32 s{sY[i]}, s{sY[0]}, {i*16384}")
    a(f"""v_and_b32 v6, 15, v0
    v_lshlrev_b32 v6, 11, v6
    v_lshrrev_b32 v7, 4, v0
    v_lshl_or_b32 v6, v7, 4, v6
    s_lshl_b32 s{sOA}, s{sRA}, 2
    s_add_u32 s{sOA}, s{sOA}, s{sW}
    s_lshl_b32 s{sOA}, s{sOA}, 15
    s_lshl_b32 s{sT1}, s{sCA}, 7
    s_add_u32 s{sOA}, s{sOA}, s{sT1}
    s_lshl_b32 s{sOB}, s{sRB}, 3
    s_and_b32 s{sT0}, s{sW}, 2
    s_lshl_b32 s{sT0}, s{sT0}, 1
    s_add_u32 s{sOB}, s{sOB}, s{sT0}
    s_add_u32 s{sOB}, s{sOB}, s{sKQ}
    s_lshl_b32 s{sOB}, s{sOB}, 15
    s_lshl_b32 s{sT1}, s{sCB}, 8
    s_add_u32 s{sOB}, s{sOB}, s{sT1}
    s_and_b32 s{sT0}, s{sW}, 1
    s_lshl_b32 s{sT0}, s{sT0}, 7
    s_add_u32 s{sOB}, s{sOB}, s{sT0}
    s_add_u32 s{sOB}, s{sOB}, 1024
    s_lshl_b32 s{sEXW}, s{sTI}, 18
    s_add_u32 s{sEXW}, s{sEXW}, s{sM}
    s_add_u32 s{sEXW}, s{sEXW}, {EXB}
    s_lshl_b32 s{sT0}, s{sKQ}, 16
    s_add_u32 s{sEXR}, s{sEXW}, s{sT0}
    v_add_u32 v8, s{sM}, v1
    s_lshl_b32 s{sT1}, s{sW}, 14
    v_add_u32 v9, s{sT1}, v1""")
    FS = (32, 64); AB = 96
    def reads(t, k):
        b = FS[k]; o = (t & 1) * SLOT + k * 1024; h = (t >> 1) & 1
        return [f"ds_read_b128 {vr(b+4*i,4)}, v{2+h} offset:{o+i*2048}" for i in range(4)] + \
               [f"ds_read_b128 {vr(b+16+4*i,4)}, v{4+h} offset:{o+i*2048}" for i in range(4)]
    def am(d, x, y, first):
        c = "0" if first else f"a[{d}:{d+3}]"
        return f"v_mfma_f32_16x16x32_bf16 a[{d}:{d+3}], {vr(x,4)}, {vr(y,4)}, {c}"
    def mf(acc, b, first): return [am(acc + 16 * x + 4 * y, b + 16 + 4 * y, b + 4 * x, first) for x in range(4) for y in range(4)]
    def aload(k):
        b = AB + 32 * k; out = []
        for i in range(4):
            out.append(f"buffer_load_dwordx4 {vr(b+4*i,4)}, v1, {srd_s(R_WS)}, s{sX[i]} offen offset:{k*1024}")
            out.append(f"buffer_load_dwordx4 {vr(b+16+4*i,4)}, v1, {srd_s(R_WS)}, s{sY[i]} offen offset:{k*1024}")
        vm.add("al", 8)
        return out
    a(f"s_waitcnt vmcnt({vm.n_after(('dma', 0))})\ns_barrier")
    for x in reads(0, 0): a(x)
    for t in range(CFG.get("kb_init", 3), 4):
        for x in dma(t): a(x)
    pend = []
    for t in range(NS):
        a("s_waitcnt lgkmcnt(0)")
        interleave(a, mf(64, FS[0], t == 0), merge(reads(t, 1), pend))
        if t + 1 < NS:
            a(f"s_waitcnt vmcnt({vm.n_after(('dma', t + 1))}) lgkmcnt(0)\ns_barrier")
        else: a("s_waitcnt lgkmcnt(0)")
        d = dma(t + 4) if t + 4 < NS else aload(t + 4 - NS)
        pend = d[4:] if t + 1 < NS else []
        now = d[:4] if t + 1 < NS else d
        interleave(a, mf(64, FS[1], False), merge(reads(t + 1, 0) if t + 1 < NS else [], now))
    stamp(a, 11, [vm])
    a("s_nop 7")
    for x in range(1, 4):
        a(f"s_add_u32 s{sT0}, s{sKQ}, {x}\ns_and_b32 s{sT0}, s{sT0}, 3\ns_lshl_b32 s{sT0}, s{sT0}, 16\ns_add_u32 s{sT0}, s{sT0}, s{sEXW}\ns_add_u32 s{sT0}, s{sT0}, {(x-1)*16384}")
        for r in range(16): a(f"v_accvgpr_read_b32 v{32+r}, a{64+16*x+r}")
        for m in range(8): a(f"v_cvt_pk_bf16_f32 v{48+8*x+m}, v{32+2*m}, v{32+2*m+1}")
        for be in range(2):
            a(f"buffer_store_dwordx4 {vr(48+8*x+4*be,4)}, v1, {srd_s(R_WS)}, s{sT0} offen offset:{be*1024} sc1")
    vm.add("st", 6)
    a(f"s_waitcnt vmcnt({vm.n_after('al')})")
    NK1 = CFG.get("kb_nk1", 4)
    for k in range(NK1):
        for m in mf(0, AB + 32 * k, k == 0): a(m)
    a("s_waitcnt vmcnt(0)\ns_barrier")
    stamp(a, 14)
    a(f"""s_cmp_lg_u32 s{sW}, 0
    s_cbranch_scc1 kb_nopub
    s_lshl_b32 s{sT0}, s2, 7
    s_add_u32 s{sT0}, s{sT0}, {FLB}
    v_mov_b32 v10, 1
    s_mov_b64 exec, 1
    buffer_store_dword v10, off, {srd_s(R_WS)}, s{sT0} sc1
    s_mov_b64 exec, -1
    kb_nopub:""")
    for k in range(NK1, 4):
        for m in mf(0, AB + 32 * k, k == 0): a(m)
    a("s_nop 7")
    for x in range(4):
        for y in range(4):
            a(f"ds_write_b128 v8, a[{16*x+4*y}:{16*x+4*y+3}] offset:{x*16384+y*1024}")
    a("s_waitcnt lgkmcnt(0)\ns_barrier")
    RA = 32
    def finish(n, off):
        for m in range(8): a(f"v_cvt_pk_bf16_f32 v{RA+16+m}, v{RA+2*m}, v{RA+2*m+1}")
        for be in range(2): a(f"buffer_store_dwordx4 {vr(RA+16+4*be,4)}, v6, {srd_s(R_OUT)}, s{off} offen offset:{be*64}")
    def add4():
        for r in range(0, 16, 2):
            a(f"v_pk_add_f32 {vr(RA+r,2)}, {vr(RA+r,2)}, {vr(RA+16+r,2)}\nv_pk_add_f32 {vr(RA+32+r,2)}, {vr(RA+32+r,2)}, {vr(RA+48+r,2)}")
        for r in range(0, 16, 2): a(f"v_pk_add_f32 {vr(RA+r,2)}, {vr(RA+r,2)}, {vr(RA+32+r,2)}")
    for sw in range(4):
        for y in range(4): a(f"ds_read_b128 {vr(RA+16*sw+4*y,4)}, v9 offset:{sw*4096+y*1024}")
    a(f"""s_and_b32 s{sT0}, s2, 0xfc
    s_lshl_b32 s{sT0}, s{sT0}, 7
    s_add_u32 s{sT0}, s{sT0}, {FLB}
    v_lshlrev_b32 v11, 7, v0
    s_mov_b32 s{sCNT}, 0
    s_lshl_b32 s{sT2}, 1, s{sKQ}
    kb_poll:
    s_mov_b64 exec, 15
    buffer_load_dword v10, v11, {srd_s(R_WS)}, s{sT0} offen sc1
    s_waitcnt vmcnt(0)
    v_cmp_eq_u32 vcc, 1, v10
    s_mov_b64 exec, -1
    s_add_u32 s{sCNT}, s{sCNT}, 1
    s_or_b32 s{sT1}, vcc_lo, s{sT2}
    s_cmp_eq_u32 s{sT1}, 15
    s_cbranch_scc1 kb_ok
    s_sleep 1
    s_cmp_lt_u32 s{sCNT}, {CFG['spin']}
    s_cbranch_scc1 kb_poll
    kb_ok:""")
    stamp(a, 15)
    RA = 96
    for x in range(3):
        a(f"s_add_u32 s{sT0}, s{sEXR}, {x*16384}")
        for be in range(2): a(f"buffer_load_dwordx4 {vr(RA+64+8*x+4*be,4)}, v1, {srd_s(R_WS)}, s{sT0} offen offset:{be*1024} sc1")
    for r in range(16): a(f"v_accvgpr_read_b32 v{RA+r}, a{64+r}")
    RA = 32
    a("s_waitcnt lgkmcnt(0)")
    add4(); finish(0, sOA)
    RA = 96
    for x in range(3):
        a(f"s_waitcnt vmcnt({6 - 2*x})")
        for m in range(8):
            a(f"v_lshlrev_b32 v{RA+16+16*x+2*m}, 16, v{RA+64+8*x+m}\nv_and_b32 v{RA+16+16*x+2*m+1}, 0xffff0000, v{RA+64+8*x+m}")
    add4(); finish(1, sOB)
    stamp(a, 12)
    a(f"{END}:\ns_endpgm\ncode_end:")
    a.kernel_end(K, vgpr=384, accum=256)

HEADER = """; Fused hedgehog linear attention + MLA causal prefill attention for gfx950 (generated by own script).
; ka: K/V projection, hedgehog features, Q projection, flash attention ; kb: output projections."""

def build(path, **cfg):
    CFG.clear(); CFG.update(DEF); CFG.update(cfg)
    a = Asm()
    gen_KA(a)
    gen_KB(a)
    if CFG.get("kb2"): a.relaunch("kb_kernel", 256, 256, 128 * 1024)
    txt = a.text(HEADER)
    errs, n = hazard.check(txt)
    for e in errs: print("HAZARD", e)
    print(f"{path}: {n} instructions, {len(errs)} hazards, {len(txt)} bytes")
    open(path, "w").write(txt)

if __name__ == "__main__":
    build("k_dbg.s", stamps=True)
    build("k_dbg_bt.s", stamps=True, bartime=True)
    build("cdna_kernels/" + NAME + ".s")
```

```python
import sys, struct, math
from agen import Asm
import hazard

NAME = "concat_heads__linear_kernel_hedgehog__compressed_kv_cla__prompt"
KF   = 0x0100000
VF   = 0x1200000
CTX  = 0x2400000
PHQ  = 0x5300000
OAF  = 0x3580000
RED  = 0x3500000
WOF  = 0x3800000
WOAF = 0x3D00000
KVP  = 0x3E00000
FLG  = 0x4100000
FLB  = 0x4180000
EXB  = 0x4200000
STAMP = 0xF000000
WS_BYTES = 0x10000000
SLOT = 32768
SCR = 4 * SLOT
OOB = 0x40000000

def f32(x): return struct.unpack("<I", struct.pack("<f", x))[0]

DEF = dict(stamps=False, bias=102.0, thr=132.0, vsh=64, st_flags="sc1", ctx_flags="sc1", spin=200000, prefetch=False, denorm=0,
           s_pf=2, s_ps=13, s_pl=8, s_chk=10, s_go=12, kb_nb=5, rotm=(2, 2, 2), lvlA=2, pf_t0=1, pf_t1=15, n_init=3, q1l=0, q1q=15, q1full=True, cpf=[11], p2prio=1, nt=(20, 24, 44), lin={}, stag=(["xa", "wa", "xb", "wq"], [3, 4, 5, 6, 7, 8, 9, 10]), lin0=[],
           fast=[[8, 8, 9, 9, 10, 10, 11, 11, 12, 12, 13, 13, 14, 14, 15, 15], list(range(16))],
           slow=[[9, 11, 13, 15, 18, 18, 19, 19, 20, 20, 21, 21, 22, 22, 23, 24], list(range(16))])
CFG = dict(DEF)

sW, sHEAD, sTB, sTBA, sHP = 3, 4, 5, 6, 7
R_WS, R_DBG, R_C, R_WUK, R_WUV, R_XA, R_WQKV, R_XB, R_WQ, R_WOB, R_WOA, R_PHI = [8 + 4 * i for i in range(12)]
sMASK = 24
sT0, sT1, sT2, sT3 = 56, 57, 58, 59
sDM, sDMW = 60, 61
sO0, sO2 = 62, 63
sTD = 64
sW3 = 65
sST, sCNT, sG, sREM, sSLOT, sRET, sTHR = 66, 67, 68, 69, 70, 71, 72
sKO, sVO, sDST, sTMAX, sLD = 73, 74, 75, 76, 77
sA0, sA2 = 78, 79
sBL, sBS, sB2 = 80, 81, 82
sSTG = 83
sDK, sDV = 84, 85
sEX = 86
sSTAMP = 88
sSCL, sDSL = 90, 91
sPQ, sPX = 100, 101
sRT, sCT, sCT2, sCW = 94, 95, 96, 97
sTD2 = 99
sTH = 62
vTOK = 1
vW = [2 + i for i in range(8)]
vDTOK, vDW, vDWA, vST0, vST1 = 10, 11, 12, 13, 14
vT = [15 + i for i in range(9)]
vSP = 126
vPHIQ = 24
vSNAP = 20
vDTK2 = 23
vP0, vPD, vWB, vTKB = 24, 25, 22, 21

def srd_s(r): return f"s[{r}:{r+3}]"
def vr(a, n): return f"v[{a}:{a+n-1}]" if n > 1 else f"v{a}"

class VM:
    def __init__(s): s.ops = []
    def add(s, tag, n=1): s.ops += [tag] * n
    def has(s, tag): return tag in s.ops
    def n_after(s, tag):
        idx = max(i for i, t in enumerate(s.ops) if t == tag)
        return min(63, len(s.ops) - 1 - idx)

def interleave(a, mf, fill):
    n = len(mf); m = len(fill)
    slots = [[] for _ in range(n)]
    for k, f in enumerate(fill):
        slots[min((k * n) // max(m, 1), n - 1)].append(f)
    for x, s in zip(mf, slots):
        a(x)
        for f in s: a(f)

def sched(a, mf, reads, other, frac=None):
    frac = CFG.get("rfrac", 0.85) if frac is None else frac
    n = len(mf); slots = [[] for _ in range(n)]
    nr = max(1, int(n * frac))
    for k, f in enumerate(reads): slots[min((k * nr) // max(len(reads), 1), n - 1)].append(f)
    o0 = CFG.get("ostart", 0.0)
    for k, f in enumerate(other): slots[min(int(n * o0) + ((2 * k + 1) * (n - int(n * o0))) // (2 * len(other)), n - 1)].append(f)
    for x, sl in zip(mf, slots):
        a(x)
        for f in sl: a(f)

def merge(x, y):
    if not y: return list(x)
    if not x: return list(y)
    out = []; j = 0
    for i, e in enumerate(x):
        out.append(e)
        while j < len(y) and (j + 1) * len(x) <= (i + 1) * len(y):
            out.append(y[j]); j += 1
    return out + y[j:]

def mfma16(d, x, y, c=None):
    c = vr(d, 4) if c is None else c
    return f"v_mfma_f32_16x16x32_bf16 {vr(d,4)}, {vr(x,4)}, {vr(y,4)}, {c}"
def mfma32(d, x, y, c=None):
    c = vr(d, 16) if c is None else c
    return f"v_mfma_f32_32x32x16_bf16 {vr(d,16)}, {vr(x,4)}, {vr(y,4)}, {c}"

def stamp(a, idx, vms=()):
    if not CFG["stamps"]: return
    a(f"s_memrealtime s[{sSTAMP}:{sSTAMP+1}]\ns_memtime s[92:93]")
    a("s_waitcnt lgkmcnt(0)")
    a(f"v_mov_b32 v{vSP}, s{sSTAMP}\nv_mov_b32 v{vSP+1}, s92")
    a(f"s_lshl_b32 s{sSTAMP}, s2, 3\ns_add_u32 s{sSTAMP}, s{sSTAMP}, s{sW}\ns_lshl_b32 s{sSTAMP}, s{sSTAMP}, 7\ns_add_u32 s{sSTAMP}, s{sSTAMP}, {STAMP + idx*8}")
    a(f"buffer_store_dwordx2 v[{vSP}:{vSP+1}], off, {srd_s(R_WS)}, s{sSTAMP}")
    for v in vms: v.add("stamp")

def dma_unit(m0s, m0c, voff, srd, bs, bc):
    nt = " nt" if srd in CFG["nt"] else ""
    return f"s_add_u32 m0, s{m0s}, {m0c}\ns_add_u32 s{sTD}, s{bs}, {bc}\nbuffer_load_dwordx4 v{voff}, {srd_s(srd)}, s{sTD} offen{nt} lds"

def gen_KA(a):
    global vSP
    K = "ka_kernel"
    a.kernel_begin(K, 256, 512, 160 * 1024)
    marks = [{}, {}]
    VMS = [VM(), VM()]
    END = "ka_end"
    vSP = 30
    a(f"s_cmp_ge_u32 s2, 256\ns_cbranch_scc1 {END}")
    for r, off in ((R_C, 40), (R_WUK, 56), (R_WUV, 64), (R_WS, 96)):
        a(f"s_load_dwordx2 s[{r}:{r+1}], s[0:1], {off}")
    a(f"""s_getpc_b64 s[{sEX}:{sEX+1}]
    ka_here:
    s_sub_u32 s{sEX}, s{sEX}, ka_here-ka_kernel
    s_subb_u32 s{sEX+1}, s{sEX+1}, 0
    s_lshr_b32 s{sT0}, s2, 3
    s_mul_i32 s{sT0}, s{sT0}, 24
    s_sub_u32 s{sT0}, s{sT0}, 488
    v_add_u32 v2, s{sT0}, v0
    v_lshlrev_b32 v2, 7, v2
    v_min_u32 v2, code_end-ka_kernel-4, v2
    v_cmp_lt_u32 vcc, 487, v0
    s_and_saveexec_b64 s[{sSTAMP}:{sSTAMP+1}], vcc
    s_cbranch_execz ka_nocpf
    global_load_dword v{vPD}, v2, s[{sEX}:{sEX+1}]
    ka_nocpf:
    s_mov_b64 exec, s[{sSTAMP}:{sSTAMP+1}]""")
    a(f"v_lshrrev_b32 v1, 6, v0\nv_and_b32 v0, 63, v0\nv_readfirstlane_b32 s{sW}, v1")
    SZ = {R_XA: 2 << 20, R_WQKV: 512 * 3072, R_PHI: 16384, R_WOA: 512 * 1024, R_XB: 2 << 20, R_C: 2 << 20,
          R_WQ: 4 << 20, R_WUK: 4 << 20, R_WUV: 4 << 20, R_WOB: 4 << 20, R_DBG: 256, R_WS: WS_BYTES}
    for r in (R_C, R_WUK, R_WUV, R_WS): a(f"s_mov_b32 s{r+2}, {SZ[r]}\ns_mov_b32 s{r+3}, 0x20000")
    a(f"""s_and_b32 s{sT0}, s2, 7
    s_lshr_b32 s{sT1}, s2, 3
    s_add_u32 s{sT1}, s{sT1}, {CFG.get("hshift", 0)}
    s_and_b32 s{sT2}, s{sT1}, 3
    s_lshl_b32 s{sHEAD}, s{sT0}, 2
    s_add_u32 s{sHEAD}, s{sHEAD}, s{sT2}
    s_lshr_b32 s{sTB}, s2, 5
    s_lshr_b32 s{sTBA}, s{sT0}, 1
    s_lshl_b32 s{sTBA}, s{sTBA}, 2
    s_add_u32 s{sTBA}, s{sTBA}, s{sT2}
    s_and_b32 s{sHP}, s{sT0}, 1
    s_lshl_b32 s{sHP}, s{sHP}, 3
    s_add_u32 s{sHP}, s{sHP}, s{sTB}
    s_and_b32 s{sW3}, s{sW}, 3
    s_lshl_b32 s{sDM}, s{sW}, 11
    s_lshl_b32 s{sDMW}, s{sW}, 10""")
    t0, t1, t2, t3, t4 = vT[0], vT[1], vT[2], vT[3], vT[4]
    def emit_f(x, out, tmp):
        a(f"v_lshrrev_b32 v{tmp}, 1, v{x}\nv_xor_b32 v{out}, v{x}, v{tmp}\nv_and_b32 v{out}, 1, v{out}\nv_lshl_or_b32 v{out}, v{out}, 1, v{tmp}")
    a(f"v_lshrrev_b32 v{t0}, 4, v0")
    emit_f(t0, t1, t2)
    a(f"v_and_b32 v{t2}, 3, v0\nv_xor_b32 v{t1}, v{t1}, v{t2}\nv_lshlrev_b32 v{t1}, 4, v{t1}")
    a(f"v_lshrrev_b32 v{t2}, 2, v0\nv_lshl_or_b32 v{vDTOK}, v{t2}, 10, v{t1}")
    a(f"s_and_b32 s{sT0}, s{sW}, 2\ns_lshl_b32 s{sT0}, s{sT0}, 1\ns_lshl_b32 s{sT1}, s{sW3}, 2\nv_and_b32 v{t2}, 15, v0")
    a(f"v_or_b32 v{t1}, s{sT0}, v{t0}\nv_lshlrev_b32 v{t1}, 1, v{t1}\nv_xor_b32 v{t1}, v{t1}, v{t2}")
    a(f"v_add_u32 v{t4}, s{sT1}, v{t0}")
    a(f"v_lshlrev_b32 v{vDW}, 13, v{t4}\nv_lshl_or_b32 v{vDW}, v{t1}, 4, v{vDW}")
    a(f"""s_lshl_b32 s{sO0}, s{sTB}, 8
    s_lshl_b32 s{sT0}, s{sW}, 5
    s_add_u32 s{sO0}, s{sO0}, s{sT0}
    s_lshl_b32 s{sO0}, s{sO0}, 10
    s_lshr_b32 s{sT0}, s{sW}, 2
    s_lshl_b32 s{sT0}, s{sT0}, 17
    s_lshl_b32 s{sO2}, s{sHEAD}, 8
    s_add_u32 s{sO2}, s{sO2}, s{sT0}""")

    NP1, NA1, NP2 = 16, 8, 16
    G_A1 = NP1; G_P2 = G_A1 + NA1; G_END = G_P2 + NP2
    WB = 65536
    def tko(t): return (t % 4) * 16384
    def rot_base(ph):
        mode = CFG["rotm"][ph]
        if mode == 0: return f"s_mov_b32 s{sRT}, 0"
        if mode == 2: return f"s_and_b32 s{sRT}, s2, 7" + (f"\ns_lshl_b32 s{sRT}, s{sRT}, 1" if ph != 1 else "")
        if ph == 1: return f"s_lshl_b32 s{sRT}, s{sTBA}, 1\ns_add_u32 s{sRT}, s{sRT}, s{sHP}"
        return f"s_lshl_b32 s{sRT}, s{sHEAD}, 1\ns_add_u32 s{sRT}, s{sRT}, s{sTB}\ns_lshl_b32 s{sRT}, s{sRT}, 1"
    def rk(dst, idx, mask, mul, base):
        return f"s_add_u32 s{dst}, s{sRT}, {idx}\ns_and_b32 s{dst}, s{dst}, {mask}\ns_mul_i32 s{dst}, s{dst}, {mul}\ns_add_u32 s{dst}, s{dst}, s{base}\n"
    TP = (0, 32768, 98304)
    def loader(t):
        return 2 if t < CFG['n_init'] else 0 if t < G_P2 + 2 else 1
    def loads(role, t): return t < G_END and loader(t) in (role, 2)
    rb_done = [set(), set()]
    def dma_stage(role, t):
        if not loads(role, t): return []
        hvs = [role] if loader(t) == 2 else [0, 1]
        ph = 0 if t < G_A1 else 1 if t < G_P2 else 2
        b = tko(t); out = []
        vd = (vDTOK, vDTK2)
        if ph == 0:
            pre = rk(sCT, t, 15, 64, sO0) + rk(sCW, t, 15, 32 * 8192, sO2)
            for hv in hvs:
                out += [dma_unit(sDM, b + hv * 8192 + d * 1024, vDTOK, R_C, sCT, (128 * hv + 16 * d) * 1024) for d in range(2)]
                out += [dma_unit(sDMW, WB + b + m * 8192 + hv * 4096, vDW, (R_WUK, R_WUV)[m], sCW, 16 * hv * 8192) for m in range(2)]
        elif ph == 1:
            pre = rk(sCT, t - G_A1, 7, 128, sA0) + rk(sCW, t - G_A1, 7, 64 * 3072, sA2)
            for hv in hvs:
                out += [dma_unit(sDM, b + hv * 8192 + d * 1024, vd[d], R_XA, sCT, hv * 65536 + d * 8192) for d in range(2)]
                out += [dma_unit(sDMW, WB + b + m * 8192 + hv * 4096, vDWA, R_WQKV, sCW, (16 * hv + 32 * m) * 3072) for m in range(2)]
        else:
            s_ = t - G_P2; p_, hv = s_ // 2, s_ % 2
            pre = rk(sCT, 2 * p_, 14, 64, (sBL, sBS)[hv]) + rk(sCW, s_, 15, 32 * 8192, sB2)
            out += [dma_unit(sLD, TP[p_ % 3] + hv * 16384 + d * 1024, vd[d & 1], R_XB, sCT, d * 8192) for d in range(4)]
            out += [dma_unit(sDMW, WB + (s_ % 4) * 8192 + h * 4096, vDW, R_WQ, sCW, 16 * h * 8192) for h in range(2)]
        VMS[role].add(("dma", t), len(out))
        if ph not in rb_done[role]:
            rb_done[role].add(ph); pre = rot_base(ph) + "\n" + pre
            if ph > 0 and "v128" not in rb_done[role]:
                rb_done[role].add("v128")
                pre = f"""v_lshrrev_b32 v{vDTK2}, 4, v0
                v_and_b32 v{vDTOK}, 7, v0
                v_xor_b32 v{vDTOK}, v{vDTOK}, v{vDTK2}
                v_lshlrev_b32 v{vDTOK}, 4, v{vDTOK}
                v_lshrrev_b32 v{vDTK2}, 3, v0
                v_lshl_or_b32 v{vDTOK}, v{vDTK2}, 10, v{vDTOK}
                v_xor_b32 v{vDTK2}, 64, v{vDTOK}
                """ + pre
        out[0] = pre + out[0]
        return out
    landed = [-1, -1]
    def sync(role, t, cover=None):
        vm = VMS[role]
        tr = CFG.get("trace") and t > G_A1
        if tr: a(f"s_memtime s[92:93]\ns_waitcnt lgkmcnt(0)\nv_writelane_b32 v19, s92, {32 + t - G_A1}\nv_writelane_b32 v19, s100, {t - G_A1 - 1}")
        need = [t] + ([t + 1] if (t >= G_P2 and (t - G_P2) % 2 == 0) else [])
        if t == G_P2: need = []
        n = min([vm.n_after(("dma", x)) for x in need if loads(role, x) and x > landed[role]] + [63])
        if cover is not None: n = min(n, len(vm.ops) - cover)
        a(f"s_waitcnt vmcnt({n}) lgkmcnt(0)" if n < 63 else "s_waitcnt lgkmcnt(0)")
        a("s_barrier")
        if tr: a("s_memtime s[100:101]")

    a("s_waitcnt lgkmcnt(0)")
    stamp(a, 0, VMS)
    for t in range(CFG['n_init']):
        for f in dma_stage(0, t): a(f)
        dma_stage(1, t)
    a(f"s_lshl_b32 s{sDM}, s{sW3}, 11\ns_lshl_b32 s{sDMW}, s{sW3}, 10")
    for r, off in ((R_XA, 0), (R_WQKV, 8), (R_PHI, 16), (R_WOA, 24), (R_XB, 32), (R_WQ, 48), (R_WOB, 72), (R_DBG, 88)):
        a(f"s_load_dwordx2 s[{r}:{r+1}], s[0:1], {off}\ns_mov_b32 s{r+2}, {SZ[r]}\ns_mov_b32 s{r+3}, 0x20000")
    a(f"v_lshlrev_b32 v{vP0}, 7, v0")
    a(f"v_mul_u32_u24 v{vDWA}, 3072, v{t4}\nv_lshrrev_b32 v{t3}, 2, v{t1}\nv_lshl_add_u32 v{vDWA}, v{t3}, 10, v{vDWA}")
    a(f"v_and_b32 v{t4}, 3, v{t1}\nv_lshl_add_u32 v{vDWA}, v{t4}, 4, v{vDWA}")
    a(f"v_cmp_eq_u32 vcc, 3, v{t3}\nv_mov_b32 v{t4}, {OOB}\ns_nop 0\nv_cndmask_b32 v{vDWA}, v{vDWA}, v{t4}, vcc")
    a(f"v_bfe_u32 v{t3}, v0, 2, 2")
    emit_f(t3, t1, t2)
    a(f"v_xor_b32 v{t1}, v{t1}, v{t0}\nv_lshlrev_b32 v{t1}, 4, v{t1}\nv_and_b32 v{t2}, 15, v0\nv_lshl_or_b32 v{vTKB}, v{t2}, 6, v{t1}")
    a(f"""s_lshl_b32 s{sA0}, s{sTBA}, 7
    s_lshl_b32 s{sT0}, s{sW3}, 4
    s_add_u32 s{sA0}, s{sA0}, s{sT0}
    s_lshl_b32 s{sA0}, s{sA0}, 10
    s_lshl_b32 s{sA2}, s{sHP}, 6
    s_lshl_b32 s{sT0}, s{sTB}, 2
    s_add_u32 s{sBS}, s{sT0}, s{sW3}
    s_sub_u32 s{sBL}, 63, s{sBS}
    s_cmp_lt_u32 s{sW}, 4
    s_cselect_b32 s{sG}, s{sBL}, s{sBS}
    s_lshl_b32 s{sBL}, s{sBL}, 15
    s_lshl_b32 s{sBS}, s{sBS}, 15
    s_lshl_b32 s{sB2}, s{sHEAD}, 8""")
    a(f"""v_lshl_add_u32 v{t2}, v{t0}, 3, v{t3}
    v_lshlrev_b32 v{vWB}, 8, v{t2}
    v_and_b32 v{t2}, 1, v{t0}
    v_lshl_or_b32 v{t2}, v{t2}, 2, v{t3}
    v_lshl_or_b32 v{vWB}, v{t2}, 5, v{vWB}
    v_and_b32 v{t2}, 3, v0
    v_lshl_or_b32 v{vWB}, v{t2}, 3, v{vWB}
    v_or_b32 v{vWB}, {WB}, v{vWB}
    s_lshr_b32 s{sT0}, s{sW}, 2
    s_lshl_b32 s{sT0}, s{sT0}, 13
    s_and_b32 s{sT1}, s{sW}, 2
    s_lshl_b32 s{sT1}, s{sT1}, 6
    s_or_b32 s{sT0}, s{sT0}, s{sT1}
    v_xor_b32 v{vW[0]}, s{sT0}, v{vWB}""")
    for b in range(1, 4): a(f"v_xor_b32 v{vW[b]}, {b*32}, v{vW[0]}")
    a(f"s_and_b32 s{sT0}, s{sW}, 1\ns_lshl_b32 s{sT0}, s{sT0}, 13\nv_add_u32 v{vTOK}, s{sT0}, v{vTKB}")
    a(f"""s_lshl_b32 s{sT0}, s{sHEAD}, 6
    s_lshl_b32 s{sT1}, s{sTB}, 3
    s_add_u32 s{sT0}, s{sT0}, s{sT1}
    s_and_b32 s{sT1}, s{sW}, 1
    s_lshl_b32 s{sT1}, s{sT1}, 2
    s_add_u32 s{sT0}, s{sT0}, s{sT1}
    s_lshl_b32 s{sST}, s{sT0}, 13
    s_and_b32 s{sT1}, s{sW}, 2
    s_lshl_b32 s{sT1}, s{sT1}, 11
    s_add_u32 s{sST}, s{sST}, s{sT1}""")
    vL16, vKV = vT[0], 2
    a(f"""s_lshl_b32 s{sKO}, s{sHEAD}, 19
    s_lshl_b32 s{sLD}, s{sW3}, 12
    s_add_u32 s{sKO}, s{sKO}, s{sLD}
    s_add_u32 s{sVO}, s{sKO}, {VF - 2*8192}
    s_add_u32 s{sKO}, s{sKO}, {KF}
    s_mov_b32 s{sDST}, 0
    s_lshl_b32 s{sT1}, s{sTB}, 1
    s_sub_u32 s{sTMAX}, 32, s{sT1}
    s_add_u32 s{sDSL}, s{sLD}, {4*SLOT}
    s_mov_b32 s{sTHR}, {f32(2.0 ** (CFG['thr'] - CFG['bias']))}""")
    vCV = vW[4:7]
    a(f"""v_and_b32 v{t1}, 1, v{t0}
    v_lshrrev_b32 v{t2}, 1, v{t0}
    v_lshlrev_b32 v{vCV[0]}, 4, v{t2}
    v_lshl_or_b32 v{vCV[0]}, v{t1}, 2, v{vCV[0]}
    v_or_b32 v{vCV[0]}, v{vCV[0]}, v{t3}
    v_lshlrev_b32 v{vCV[0]}, 8, v{vCV[0]}
    v_lshlrev_b32 v{t3}, 1, v{t3}
    v_and_b32 v{t4}, 3, v0
    v_xor_b32 v{t3}, v{t3}, v{t4}
    s_lshl_b32 s{sT0}, s{sW3}, 2
    v_xor_b32 v{t3}, s{sT0}, v{t3}
    v_lshl_or_b32 v{vCV[0]}, v{t3}, 4, v{vCV[0]}
    v_add_u32 v{vCV[0]}, {SCR}, v{vCV[0]}
    v_xor_b32 v{vCV[1]}, 128, v{vCV[0]}
    v_lshrrev_b32 v{vCV[2]}, 2, v0
    v_lshlrev_b32 v{vCV[2]}, 6, v{vCV[2]}
    v_lshl_or_b32 v{vCV[2]}, v{t4}, 4, v{vCV[2]}
    s_and_b32 s{sT0}, s{sW}, 1
    s_lshl_b32 s{sT0}, s{sT0}, 3
    s_add_u32 s{sT0}, s{sT0}, {SCR + 16384}
    v_add_u32 v{vCV[2]}, s{sT0}, v{vCV[2]}
    v_lshlrev_b32 v{vL16}, 4, v0""")
    a(f"s_cmp_ge_u32 s{sW}, 4\ns_cbranch_scc1 stream_s")

    ACC = 128
    SETS = (32, 80)
    def p1_reads(t):
        s = SETS[t % 2]; o = tko(t); r = []
        for b in range(4):
            r.append(f"ds_read_b64_tr_b16 {vr(s+4*b,2)}, v{vW[b]} offset:{o}")
            r.append(f"ds_read_b64_tr_b16 {vr(s+4*b+2,2)}, v{vW[b]} offset:{o+1024}")
        for T in range(8):
            r.append(f"ds_read_b128 {vr(s+16+4*T,4)}, v{vTOK} offset:{o+T*1024}")
        return r
    def p1_acc(role, n, T):
        if role == 0: s = (T // 2) * 4 + (T & 1) + 2 * (n // 2); return ACC + 8 * s + 4 * (n & 1)
        else: s = (T // 2) * 4 + n; return ACC + 8 * s + 4 * (T & 1)
    def p1_mfmas(role, t, first=False):
        s = SETS[t % 2]; out = []
        for T in range(8):
            for n in range(4):
                w, k = s + 4 * n, s + 16 + 4 * T
                d = p1_acc(role, n, T)
                out.append(mfma16(d, w, k, "0" if first else None) if role == 0 else mfma16(d, k, w, "0" if first else None))
        return out
    def a1_reads(t):
        s = SETS[t % 2]; o = tko(t); r = []
        for u in range(2):
            b = s + 20 * u
            for T in range(2):
                r.append(f"ds_read_b128 {vr(b+12+4*T,4)}, v{(vTOK, vW[3])[u]} offset:{o+T*2048}")
            for m in range(3):
                r.append(f"ds_read_b64_tr_b16 {vr(b+4*m,2)}, v{vW[m]} offset:{o+u*8192}")
                r.append(f"ds_read_b64_tr_b16 {vr(b+4*m+2,2)}, v{vW[m]} offset:{o+u*8192+1024}")
        return r
    AQ, AK, AV = 128, 136, 144
    vPH = 152
    CA = 160
    SEL, ONES = 176, 184
    def a1_mfmas(t, first):
        s = SETS[t % 2]; out = []
        for u in range(2):
            b = s + 20 * u
            c = "0" if (first and u == 0) else None
            for T in range(2):
                x = b + 12 + 4 * T
                out += [mfma16(AQ + 4 * T, b, x, c), mfma16(AK + 4 * T, b + 4, x, c), mfma16(AV + 4 * T, x, b + 8, c)]
        return out
    def p2_reads(t):
        s = SETS[t % 2]; s_ = t - G_P2; o = (s_ % 4) * 8192; r = []
        r.append(f"v_xor_b32 v{vTKB}, {TP[(s_ // 2) % 3] | ((s_ & 1) * 64)}, v{vTOK}\nds_read_b128 {vr(s+32,4)}, v{vTKB}")
        r.append(f"ds_read_b128 {vr(s+36,4)}, v{vTKB} offset:2048")
        for n in range(8):
            r.append(f"ds_read_b64_tr_b16 {vr(s+4*n,2)}, v{vW[n]} offset:{o}")
            r.append(f"ds_read_b64_tr_b16 {vr(s+4*n+2,2)}, v{vW[n]} offset:{o+1024}")
        return r
    def p2_acc(n, T): return 128 + 16 * (n // 2) + 8 * T + 4 * (n & 1)
    def p2_mfmas(t, first):
        s = SETS[t % 2]
        return [mfma16(p2_acc(n, T), s + 4 * n, s + 32 + 4 * T, "0" if first else None) for n in range(8) for T in range(2)]
    SRDN = dict(c=(R_C, 11), wuk=(R_WUK, 12), wuv=(R_WUV, 12), xa=(R_XA, 11), wa=(R_WQKV, 11), xb=(R_XB, 11), wq=(R_WQ, 12), wob=(R_WOB, 12))
    def lin_pf(names):
        x = f"s_lshl_b32 s{sT0}, s2, 2\ns_add_u32 s{sT0}, s{sT0}, s{sW3}\ns_lshl_b32 s{sT1}, s{sT0}, 12\ns_lshl_b32 s{sT0}, s{sT0}, 11\ns_mov_b32 exec_hi, 0\n"
        for n in names:
            srd, sh = SRDN[n]
            x += f"s_mov_b32 exec_lo, {'0xffff' if sh == 11 else '-1'}\nbuffer_load_dword v{vPD}, v{vP0}, {srd_s(srd)}, s{sT0 if sh == 11 else sT1} offen\n"
        return x + "s_mov_b64 exec, -1"
    def code_pf(dst, tmp):
        l = a.lab("cpf"); h = a.lab("here")
        return f"""s_cmp_lg_u32 s{sW}, 4
        s_cbranch_scc1 {l}
        s_getpc_b64 s[{sEX}:{sEX+1}]
        {h}:
        s_sub_u32 s{sEX}, s{sEX}, {h}-ka_kernel
        s_subb_u32 s{sEX+1}, s{sEX+1}, 0
        s_lshr_b32 s{sT0}, s2, 3
        s_mul_i32 s{sT0}, s{sT0}, {24*128}
        v_lshlrev_b32 v{tmp}, 7, v0
        v_add_u32 v{tmp}, s{sT0}, v{tmp}
        v_min_u32 v{tmp}, code_end-ka_kernel-4, v{tmp}
        s_mov_b64 exec, 0xffffff
        global_load_dword v{dst}, v{tmp}, s[{sEX}:{sEX+1}]
        s_mov_b64 exec, -1
        {l}:"""
    def q1_local(srds, nt, full=False):
        sh = 3 if full else 1
        x = f"""s_lshr_b32 s{sT0}, s2, 3
        s_lshl_b32 s{sT0}, s{sT0}, 2
        s_add_u32 s{sT0}, s{sT0}, s{sW3}
        s_lshl_b32 s{sT0}, s{sT0}, 15
        s_and_b32 s{sT1}, s2, 7
        s_lshl_b32 s{sT1}, s{sT1}, 10
        s_add_u32 s{sT0}, s{sT0}, s{sT1}
        s_add_u32 s{sT0}, s{sT0}, {0 if full else 256}
        v_lshrrev_b32 v{t3}, {sh}, v0
        v_lshlrev_b32 v{t3}, 13, v{t3}
        v_and_b32 v{t4}, {(1 << sh) - 1}, v0
        v_lshl_or_b32 v{t3}, v{t4}, 7, v{t3}
        s_mov_b32 exec_hi, 0
        s_mov_b32 exec_lo, {'-1' if full else '0xff'}
        """
        for r in srds: x += f"buffer_load_dword v{vPD}, v{t3}, {srd_s(r)}, s{sT0} offen{' nt' if nt else ''}\n"
        VMS[1].add("pf", len(srds))
        return x + "s_mov_b64 exec, -1"
    def pf_at(role, t):
        if role != 1: return []
        out = []
        if CFG.get("q1q") == t: out.append(q1_local([R_WQ], CFG.get("qqnt", False), CFG.get("qqfull", False)))
        if CFG.get("q1l") == t: out.append(q1_local([R_WUK, R_WUV], CFG.get("q1nt", True), CFG.get("q1full", False)))
        if t in CFG["cpf"]:
            out.append(code_pf(vPD, t4)); marks[1]["pf"] = len(VMS[1].ops)
        if t in CFG["lin"]:
            VMS[1].add("pf", len(CFG["lin"][t])); out.append(lin_pf(CFG["lin"][t]))
        if CFG["stag"] and t in CFG["stag"][1]:
            tbs = [i for i, x in enumerate(CFG["stag"][1]) if x == t]
            l = a.lab("stg")
            cond = f"s_cmp_lg_u32 s{sTB}, {tbs[0]}\n" if len(tbs) == 1 else f"s_lshr_b32 s{sT0}, s{sTB}, 1\ns_cmp_lg_u32 s{sT0}, {tbs[0] // 2}\n"
            out.append(cond + f"s_cbranch_scc1 {l}\n" + lin_pf(CFG["stag"][0]) + f"\n{l}:")
            VMS[1].add("pf", 0); marks[1]["pf"] = len(VMS[1].ops)
        return out
    def conv_dma():
        vCB, vCA = t1, t2
        pre = f"""v_and_b32 v{vCB}, 0xff, v{vDW}
        v_lshrrev_b32 v{vCA}, 13, v{vDW}
        v_lshl_or_b32 v{vCB}, v{vCA}, 10, v{vCB}
        s_lshr_b32 s{sT1}, s2, 1
        s_lshl_b32 s{sT1}, s{sT1}, 15
        s_and_b32 s{sT2}, s2, 1
        s_lshl_b32 s{sT2}, s{sT2}, 9
        s_add_u32 s{sT1}, s{sT1}, s{sT2}
        v_lshrrev_b32 v{vCA}, 2, v0
        v_lshlrev_b32 v{vCA}, 10, v{vCA}
        v_and_b32 v{t4}, 3, v0
        v_lshl_or_b32 v{vCA}, v{t4}, 4, v{vCA}
        s_lshr_b32 s{sT2}, s2, 4
        s_lshl_b32 s{sT2}, s{sT2}, 1
        s_add_u32 s{sT2}, s{sT2}, s{sW3}
        s_lshl_b32 s{sT2}, s{sT2}, 14
        s_and_b32 s{sT3}, s2, 15
        s_lshl_b32 s{sT3}, s{sT3}, 6
        s_add_u32 s{sT2}, s{sT2}, s{sT3}
        s_cmp_lt_u32 s{sW3}, 2
        s_cselect_b32 s{sT2}, s{sT2}, {OOB}"""
        u = [dma_unit(sDMW, SCR + m * 8192 + hv * 4096, vCB, R_WOB, sT1, hv * 16384 + m * 256) for hv in range(2) for m in range(2)]
        u.append(dma_unit(sDM, SCR + 16384, vCA, R_WOA, sT2, 0))
        VMS[1].add("cv", 5)
        return [pre] + u
    def flag_voff(v):
        return f"""s_lshl_b32 s{sT2}, s{sHEAD}, 10
        s_add_u32 s{sT2}, s{sT2}, {FLG}
        v_lshlrev_b32 v{v}, 7, v0
        s_mov_b64 exec, 0xff"""
    def flag_load(dst, v):
        return flag_voff(v) + f"\nbuffer_load_dword v{dst}, v{v}, {srd_s(R_WS)}, s{sT2} offen sc1\ns_mov_b64 exec, -1"
    def fb_publish(kv_all, x):
        c = "" if kv_all else f"s_cmp_lt_u32 s{sTB}, {CFG['lvlA']}\ns_cselect_b32 s{sTD}, s{sTD}, 0\n"
        return f"""s_lshl_b32 s{sTD}, 1, s{sTB}
        {c}v_mov_b32 v{x}, s{sTD}
        buffer_atomic_or v{x}, off, {srd_s(R_DBG)}, s{sT2} sc1"""
    def poll_code(l, r, need, first_wait, new, v):
        lp, ok, tst, nf = a.lab("poll"), a.lab("pollok"), a.lab("polltst"), a.lab("pollnf")
        return f"""{l}:
        s_mov_b32 s{sCNT}, 0
        s_waitcnt vmcnt({first_wait})
        s_branch {tst}
        {lp}:
        s_sleep 2
        {flag_load(new, v)}
        s_waitcnt vmcnt(0)
        {tst}:
        v_cmp_ne_u32 vcc, v{new}, v{vSNAP}
        s_add_u32 s{sCNT}, s{sCNT}, 1
        s_and_b32 s{sT1}, vcc_lo, {need}
        s_cmp_eq_u32 s{sT1}, {need}
        s_cbranch_scc1 {ok}
        s_and_b32 s{sT2}, s{sCNT}, 63
        s_cmp_lg_u32 s{sT2}, 0
        s_cbranch_scc1 {nf}
        s_lshl_b32 s{sT2}, s{sHEAD}, 2
        s_mov_b64 exec, 1
        {fb_publish(need == 0xff, new)}
        s_waitcnt vmcnt(0)
        buffer_load_dword v{new}, off, {srd_s(R_DBG)}, s{sT2} sc1
        s_mov_b64 exec, -1
        s_waitcnt vmcnt(0)
        v_readfirstlane_b32 s{sT2}, v{new}
        s_nop 0
        s_or_b32 s{sT1}, s{sT1}, s{sT2}
        s_and_b32 s{sT1}, s{sT1}, {need}
        s_cmp_eq_u32 s{sT1}, {need}
        s_cbranch_scc1 {ok}
        {nf}:
        s_cmp_lt_u32 s{sCNT}, {CFG['spin']}
        s_cbranch_scc1 {lp}
        {ok}:
        buffer_inv sc1
        s_branch {r}"""
    ool = []
    def st_ins(k):
        return f"s_add_u32 s{sTD2}, s{sST}, {(k // 4) * 8192}\nbuffer_store_dwordx4 {vr(192+4*k,4)}, v{vST1 if k & 1 else vST0}, {srd_s(R_WS)}, s{sTD2} offen offset:{(k>>1&1)*2048} {CFG['st_flags']}"
    def st_slot1(r, n):
        kf = [k for k, x in enumerate(CFG["fast"][r]) if x == n]; ks = [k for k, x in enumerate(CFG["slow"][r]) if x == n]
        if not kf and not ks: return None
        VMS[r].add("kvst", min(len(kf), len(ks)))
        if kf: marks[r]["fast"] = len(VMS[r].ops)
        if ks: marks[r]["slow"] = len(VMS[r].ops)
        marks[r]["nslow"] = max(ks) + 1 if ks else marks[r].get("nslow", 0)
        f = "\n".join(st_ins(k) for k in kf); s = "\n".join(st_ins(k) for k in ks)
        w = ""
        if r == 0 and n == min(CFG["fast"][0] + CFG["slow"][0]):
            assert n >= 8
            w = "s_waitcnt vmcnt(0)\n"; landed[0] = G_P2 + 1
        if kf == ks: return w + f
        l1, l2 = a.lab("ss"), a.lab("se")
        c = w + f"s_cmp_lt_u32 s{sTB}, {CFG['lvlA']}\n"
        if not ks: return c + f"s_cbranch_scc0 {l2}\n{f}\n{l2}:"
        if not kf: return c + f"s_cbranch_scc1 {l2}\n{s}\n{l2}:"
        return c + f"s_cbranch_scc1 {l1}\n{s}\ns_branch {l2}\n{l1}:\n{f}\n{l2}:"
    def st_slot(roles, n):
        x = [st_slot1(r, n) for r in roles]
        if len(roles) == 1: return [x[0]] if x[0] else []
        l1, l2 = a.lab("rs"), a.lab("re")
        return [f"s_cmp_ge_u32 s{sW}, 4\ns_cbranch_scc1 {l1}\n{x[0] or ''}\ns_branch {l2}\n{l1}:\n{x[1] or ''}\n{l2}:"]

    def part1(role):
        vm = VMS[role]
        if role == 0:
            a(f"""v_lshlrev_b32 v{vST0}, 10, v{t1}
            v_lshl_or_b32 v{vST0}, v{t2}, 9, v{vST0}
            v_bfe_u32 v{t3}, v0, 3, 1
            v_lshl_or_b32 v{vST0}, v{t3}, 8, v{vST0}
            v_and_b32 v{t3}, 7, v0
            v_lshl_or_b32 v{vST0}, v{t3}, 4, v{vST0}
            v_add_u32 v{vST1}, 128, v{vST0}
            s_add_u32 s{sST}, s{sST}, {KF}""")
        else:
            a(f"""v_lshlrev_b32 v{vST0}, 10, v{t2}
            v_lshl_or_b32 v{vST0}, v{t1}, 9, v{vST0}
            v_and_b32 v{t3}, 15, v0
            v_lshl_or_b32 v{vST0}, v{t3}, 4, v{vST0}
            v_add_u32 v{vST1}, 256, v{vST0}
            s_add_u32 s{sST}, s{sST}, {VF}""")
        if role == 0:
            a(flag_load(vSNAP, t3)); vm.add("snap")
        if role == 1 and -1 in CFG["cpf"]: a(code_pf(vPD, t4))
        if role == 1 and CFG.get("q1pf") is not None:
            a(f"""s_lshl_b32 s{sT0}, s2, 2
            s_add_u32 s{sT0}, s{sT0}, s{sW3}
            s_lshl_b32 s{sT0}, s{sT0}, 12
            s_add_u32 s{sT0}, s{sT0}, {CFG['q1pf'] * 256}
            v_lshrrev_b32 v{t3}, 1, v0
            v_lshlrev_b32 v{t3}, 10, v{t3}
            v_and_b32 v{t4}, 1, v0
            v_lshl_or_b32 v{t3}, v{t4}, 7, v{t3}
            s_mov_b64 exec, 0xff
            buffer_load_dword v{vPD}, v{t3}, {srd_s(R_WUK)}, s{sT0} offen""")
            if not CFG.get("q1half"): a(f"buffer_load_dword v{vPD}, v{t3}, {srd_s(R_WUV)}, s{sT0} offen")
            a("s_mov_b64 exec, -1")
            vm.add("pf", 1 if CFG.get("q1half") else 2)
        if role == 1 and CFG.get("q1l") == -1: a(q1_local([R_WUK, R_WUV], CFG.get("q1nt", True), CFG.get("q1full", False)))
        if role == 1 and CFG["lin0"]:
            a(lin_pf(CFG["lin0"])); vm.add("pf", len(CFG["lin0"]))
        sync(role, 0)
        stamp(a, 13, [vm])
        for f in p1_reads(0): a(f)
        for t in range(CFG['n_init'], 4):
            for f in dma_stage(role, t): a(f)
        CVR = 26
        cv_t = CFG.get("cv_t", 1)
        def cv_read(k):
            if k == 4: return f"ds_read_b64_tr_b16 {vr(CVR,2)}, v{vCV[2]}\nds_read_b64_tr_b16 {vr(CVR+2,2)}, v{vCV[2]} offset:2048"
            o = (k >> 1) * 8192 + (k & 1) * 8
            return f"ds_read_b64_tr_b16 {vr(CVR,2)}, v{vCV[0]} offset:{o}\nds_read_b64_tr_b16 {vr(CVR+2,2)}, v{vCV[1]} offset:{2048+o}"
        def cv_store(k):
            vm.add("cvst")
            if k == 4:
                x = f"""s_and_b32 s{sT2}, s2, 15
                s_lshl_b32 s{sT2}, s{sT2}, 1
                s_add_u32 s{sT2}, s{sT2}, s{sW3}
                s_lshl_b32 s{sT2}, s{sT2}, 4
                s_lshr_b32 s{sT3}, s2, 4
                s_add_u32 s{sT2}, s{sT2}, s{sT3}
                s_lshl_b32 s{sT2}, s{sT2}, 10
                s_add_u32 s{sT2}, s{sT2}, {WOAF}
                s_cmp_lt_u32 s{sW3}, 2
                s_cselect_b32 s{sT2}, s{sT2}, {OOB}"""
            else:
                x = f"""s_and_b32 s{sT2}, s2, 1
                s_lshl_b32 s{sT2}, s{sT2}, 3
                s_add_u32 s{sT2}, s{sT2}, s{sW3}
                s_lshl_b32 s{sT2}, s{sT2}, 8
                s_lshr_b32 s{sT3}, s2, 1
                s_add_u32 s{sT2}, s{sT2}, s{sT3}
                s_lshl_b32 s{sT2}, s{sT2}, 10
                s_add_u32 s{sT2}, s{sT2}, {WOF + ((k >> 1) * 8 + (k & 1)) * 128 * 1024}"""
            return x + f"\nbuffer_store_dwordx4 {vr(CVR,4)}, v{vL16}, {srd_s(R_WS)}, s{sT2} offen"
        for t in range(NP1):
            if role == 1 and t == 2: stamp(a, 14, [vm])
            if role == 1 and t == 12: stamp(a, 15, [vm])
            sync(role, t + 1, marks[1]["cv"] if (role == 1 and t == cv_t + 4) else None)
            d = dma_stage(role, t + 4)
            pre = []; post = []
            if role == 1:
                if t == cv_t: d = d + conv_dma(); marks[1]["cv"] = len(vm.ops)
                k = t - (cv_t + 4)
                if k >= 0 and k % 2 == 1 and k // 2 < 5: pre = [cv_store(k // 2)]
                if k >= 0 and k % 2 == 0 and k // 2 < 5: post = [cv_read(k // 2)]
            if t + 1 < NP1: rd = p1_reads(t + 1)
            else:
                rd = [f"v_bfe_u32 v{vTKB}, v0, 1, 3\nv_lshrrev_b32 v{vTOK}, 4, v0\nv_xor_b32 v{vTKB}, v{vTKB}, v{vTOK}\nv_lshlrev_b32 v{vTKB}, 4, v{vTKB}\nv_and_b32 v{vTOK}, 15, v0\nv_lshl_or_b32 v{vTKB}, v{vTOK}, 7, v{vTKB}\nv_add_u32 v{vTOK}, s{sLD}, v{vTKB}\nv_xor_b32 v{vW[3]}, 64, v{vTOK}\nv_xor_b32 v{vW[0]}, {role*32}, v{vWB}\nv_xor_b32 v{vW[1]}, {64 + role*32}, v{vWB}\nv_xor_b32 v{vW[2]}, {128 + role*32}, v{vWB}"] + a1_reads(G_A1)
            sched(a, p1_mfmas(role, t, first=(t == 0)), rd + post, d + pre + pf_at(role, t))
        a("s_nop 7")
        if role == 1 and CFG["vsh"]: a(f"s_mov_b32 s{sSCL}, {f32(2.0 ** CFG['vsh'])}")
        for m in range(63, -1, -1):
            if role == 1 and CFG["vsh"]: a(f"v_pk_mul_f32 {vr(ACC+2*m,2)}, {vr(ACC+2*m,2)}, s[{sSCL}:{sSCL+1}] op_sel_hi:[1,0]")
            a(f"v_cvt_pk_bf16_f32 v{192+m}, v{ACC+2*m}, v{ACC+2*m+1}")
        stamp(a, 1, [vm])
        a(f"""s_lshl_b32 s{sT2}, s{sHP}, 10
        v_lshrrev_b32 v{t1}, 4, v0
        v_and_b32 v{t2}, 15, v0
        v_lshlrev_b32 v{t3}, 1, v{t2}
        v_lshl_or_b32 v{t3}, v{t1}, 7, v{t3}
        buffer_load_ushort v{vPH}, v{t3}, {srd_s(R_PHI)}, s{sT2} offen offset:{role*512}
        buffer_load_ushort v{vPH+1}, v{t3}, {srd_s(R_PHI)}, s{sT2} offen offset:{role*512+64}
        buffer_load_ushort v{vPH+2}, v{t3}, {srd_s(R_PHI)}, s{sT2} offen offset:{role*512+32}
        buffer_load_ushort v{vPH+3}, v{t3}, {srd_s(R_PHI)}, s{sT2} offen offset:{role*512+96}""")
        vm.add("phi", 4)
        cst = [f"v_lshlrev_b32 v{t1}, 2, v{t1}\nv_sub_u32 v{t1}, v{t2}, v{t1}\nv_mov_b32 v{t2}, 0x3f80\nv_mov_b32 v{t3}, 0x3f800000"]
        for j in range(2):
            cst.append(f"v_cmp_eq_u32 vcc, {2*j}, v{t1}\nv_mov_b32 v{SEL+2+j}, 0\nv_mov_b32 v{SEL+4+j}, 0\nv_cndmask_b32 v{SEL+j}, 0, v{t2}, vcc")
            cst.append(f"v_cmp_eq_u32 vcc, {2*j+1}, v{t1}\nv_mov_b32 v{ONES+2*j}, 0x3f803f80\nv_mov_b32 v{ONES+2*j+1}, 0x3f803f80\nv_cndmask_b32 v{SEL+j}, v{SEL+j}, v{t3}, vcc")
        cst.append(f"v_mov_b32 v{SEL+6}, v{SEL}\nv_mov_b32 v{SEL+7}, v{SEL+1}")
        for t in range(G_A1, G_P2):
            s = t - G_A1
            sync(role, t + 1)
            d = dma_stage(role, t + 4)
            ex = []
            ex += st_slot([role], s)
            if 1 <= s <= 6: ex.append(cst[s - 1])
            rd = a1_reads(t + 1) if t + 1 < G_P2 else []
            sched(a, a1_mfmas(t, t == G_A1), rd, d + ex + pf_at(role, t))
        stamp(a, 2, [vm])
        a(f"s_waitcnt vmcnt({min(vm.n_after('phi'), vm.n_after('pf') if vm.has('pf') else 63)})")
        assert role == 0 or "pf" not in marks[1] or len(vm.ops) - marks[1]["pf"] >= vm.n_after('phi')
    part1(0)
    a("s_branch a1_epi\nstream_s:")
    part1(1)
    a("a1_epi:")
    vSP = 124
    stn = [8]
    def epi_store():
        for x in st_slot([0, 1], stn[0]): a(x)
        stn[0] += 1
    L2E = f32(math.log2(math.e))
    a(f"s_mov_b32 s{sSCL}, {L2E}")
    a(f"v_lshl_or_b32 v{vPH}, v{vPH+2}, 16, v{vPH}\nv_lshl_or_b32 v{vPH+1}, v{vPH+3}, 16, v{vPH+1}")
    epi_store()
    a("s_nop 2")
    B = 32
    QB, KB_, VB = B, B + 4, B + 8
    for T in range(2):
        for j in range(2):
            a(f"v_cvt_pk_bf16_f32 v{QB+2*T+j}, v{AQ+4*T+2*j}, v{AQ+4*T+2*j+1}")
            a(f"v_cvt_pk_bf16_f32 v{KB_+2*T+j}, v{AK+4*T+2*j}, v{AK+4*T+2*j+1}")
    PP = B + 12
    a("s_nop 1")
    for i in range(4):
        a(f"v_mfma_f32_16x16x16_bf16 {vr(PP+4*i,4)}, {vr(vPH,2)}, {vr(QB+2*i,2)}, 0")
    for T in range(2):
        for j in range(2):
            a(f"v_cvt_pk_bf16_f32 v{VB+2*T+j}, v{AV+4*T+2*j}, v{AV+4*T+2*j+1}")
    a(f"s_lshl_b32 s{sT0}, s{sW}, 12\nv_add_u32 v{vTOK}, s{sT0}, v{vTKB}\nv_mov_b32 v{vW[0]}, v{vWB}")
    for b in range(1, 8): a(f"v_xor_b32 v{vW[b]}, {b*32}, v{vWB}")
    MX = B + 40; EX = B + 56
    for i in range(4):
        p = PP + 4 * i
        a(f"v_max3_f32 v{MX+2*i}, v{p}, v{p+1}, v{p+2}\nv_max3_f32 v{MX+2*i+1}, -v{p}, -v{p+1}, -v{p+2}")
    for i in range(4):
        p = PP + 4 * i
        a(f"v_max_f32 v{MX+2*i}, v{MX+2*i}, v{p+3}\nv_max_f32_e64 v{MX+2*i+1}, v{MX+2*i+1}, -v{p+3}")
    def xreduce(op, mid):
        a("s_nop 1")
        for i in range(4): a(f"v_permlane32_swap_b32 v{MX+2*i}, v{MX+2*i+1}")
        for i in range(4): a(f"{op} v{MX+2*i}, v{MX+2*i}, v{MX+2*i+1}")
        a("s_nop 1")
        for i in range(2): a(f"v_permlane16_swap_b32 v{MX+4*i}, v{MX+4*i+2}")
        a("s_nop 0")
        for i in range(2): a(f"{op} v{MX+4*i}, v{MX+4*i}, v{MX+4*i+2}")
        for i in range(2): a(mid(MX + 4 * i))
        a("s_nop 0")
        for i in range(2): a(f"v_mov_b32 v{MX+4*i+2}, v{MX+4*i}")
        a("s_nop 1")
        for i in range(2): a(f"v_permlane16_swap_b32 v{MX+4*i}, v{MX+4*i+2}")
        a("s_nop 0")
        for i in range(4): a(f"v_mov_b32 v{MX+2*i+1}, v{MX+2*i}")
        a("s_nop 1")
        for i in range(4): a(f"v_permlane32_swap_b32 v{MX+2*i}, v{MX+2*i+1}")
        a("s_nop 0")
    epi_store()
    xreduce("v_max_f32", lambda r: f"v_mul_f32 v{r}, s{sSCL}, v{r}")
    epi_store()
    for i in range(4):
        p = PP + 4 * i
        for r in range(4):
            a(f"v_fma_f32 v{EX+8*i+r}, v{p+r}, s{sSCL}, -v{MX+2*i}\nv_fma_f32 v{EX+8*i+4+r}, -v{p+r}, s{sSCL}, -v{MX+2*i+1}")
    epi_store()
    for r in range(32): a(f"v_exp_f32 v{EX+r}, v{EX+r}")
    epi_store()
    for i in range(8):
        e = EX + 4 * i
        a(f"v_add_f32 v{MX+i}, v{e}, v{e+1}\nv_add_f32 v{PP+i}, v{e+2}, v{e+3}")
    for i in range(8): a(f"v_add_f32 v{MX+i}, v{MX+i}, v{PP+i}")
    xreduce("v_add_f32", lambda r: f"v_rcp_f32 v{r}, v{r}")
    epi_store()
    for i in (4, 5, 6, 7):
        for r in range(4): a(f"v_mul_f32 v{EX+4*i+r}, v{EX+4*i+r}, v{MX+i}")
    PHK = B + 12
    for T in range(2):
        for j in range(4):
            a(f"v_cvt_pk_bf16_f32 v{PHK+4*T+j}, v{EX+16+8*T+2*j}, v{EX+16+8*T+2*j+1}")
    a("s_nop 1")
    TR = EX + 16
    for sg in range(2):
        for T in range(2):
            a(mfma16(TR + 8 * sg + 4 * T, PHK + 4 * T, SEL + 4 * sg, "0"))
    for i in (0, 1, 2, 3):
        for r in range(4): a(f"v_mul_f32 v{EX+4*i+r}, v{EX+4*i+r}, v{MX+i}")
    PKT = B + 20
    for sg in range(2):
        for j in range(4):
            a(f"v_cvt_pk_bf16_f32 v{PKT+4*sg+j}, v{TR+8*sg+2*j}, v{TR+8*sg+2*j+1}")
    a("s_nop 1")
    KVZ = 128
    for sg in range(2):
        a(mfma16(KVZ + 4 * sg, PKT + 4 * sg, VB, "0"))
        a(mfma16(KVZ + 8 + 4 * sg, PKT + 4 * sg, ONES, "0"))
    for T in range(2):
        for j in range(4):
            a(f"v_cvt_pk_bf16_f32 v{vPHIQ+4*T+j}, v{EX+8*T+2*j}, v{EX+8*T+2*j+1}")
    a(f"""s_lshl_b32 s{sT0}, s{sTBA}, 2
    s_add_u32 s{sT0}, s{sT0}, s{sW3}
    s_lshl_b32 s{sT0}, s{sT0}, 5
    s_add_u32 s{sT0}, s{sT0}, s{sHP}
    s_lshl_b32 s{sT0}, s{sT0}, 1
    s_lshr_b32 s{sT1}, s{sW}, 2
    s_add_u32 s{sT0}, s{sT0}, s{sT1}
    s_lshl_b32 s{sT0}, s{sT0}, 10
    s_add_u32 s{sT0}, s{sT0}, {PHQ}
    s_add_u32 s{sT1}, s{sT0}, 32768
    buffer_store_dwordx4 {vr(vPHIQ,4)}, v{vL16}, {srd_s(R_WS)}, s{sT0} offen
    buffer_store_dwordx4 {vr(vPHIQ+4,4)}, v{vL16}, {srd_s(R_WS)}, s{sT1} offen""")
    for r in range(2): VMS[r].add("phq", 2)
    epi_store()
    a(f"s_lshl_b32 s{sT0}, s{sW}, 12\ns_add_u32 s{sT0}, s{sT0}, {SCR}\nv_add_u32 v{t1}, s{sT0}, v{vL16}")
    for qd in range(4): a(f"ds_write_b128 v{t1}, {vr(KVZ+4*qd,4)} offset:{qd*1024}")
    a(f"""s_lshr_b32 s{sT0}, s{sW}, 2
    s_lshl_b32 s{sT0}, s{sT0}, 14
    s_lshl_b32 s{sT1}, s{sW3}, 10
    s_add_u32 s{sT0}, s{sT0}, s{sT1}
    s_add_u32 s{sT0}, s{sT0}, {SCR}
    v_add_u32 v{t1}, s{sT0}, v{vL16}
    s_lshl_b32 s{sT0}, s{sHP}, 1
    s_lshr_b32 s{sT2}, s{sW}, 2
    s_add_u32 s{sT0}, s{sT0}, s{sT2}
    s_lshl_b32 s{sT0}, s{sT0}, 4
    s_add_u32 s{sT0}, s{sT0}, s{sTBA}
    s_lshl_b32 s{sT0}, s{sT0}, 12
    s_add_u32 s{sT0}, s{sT0}, s{sT1}
    s_add_u32 s{sT0}, s{sT0}, {KVP}""")
    epi_store()
    assert stn[0] == 16 and landed[0] == G_P2 + 1
    a("s_waitcnt lgkmcnt(0)\ns_barrier")
    for i in range(4): a(f"ds_read_b128 {vr(KVZ+4*i,4)}, v{t1} offset:{i*4096}")
    rd = p2_reads(G_P2)
    for f in rd[:10]: a(f)
    a("s_waitcnt lgkmcnt(10)")
    for f in rd[10:]: a(f)
    for r in (0, 2): a(f"v_pk_add_f32 {vr(KVZ+r,2)}, {vr(KVZ+r,2)}, {vr(KVZ+4+r,2)}\nv_pk_add_f32 {vr(KVZ+8+r,2)}, {vr(KVZ+8+r,2)}, {vr(KVZ+12+r,2)}")
    for r in (0, 2): a(f"v_pk_add_f32 {vr(72+r,2)}, {vr(KVZ+r,2)}, {vr(KVZ+8+r,2)}")
    a(f"buffer_store_dwordx4 {vr(72,4)}, v{vL16}, {srd_s(R_WS)}, s{sT0} offen")
    for r in range(2): VMS[r].add("pst")
    stamp(a, 3, VMS)
    a(f"s_cmp_ge_u32 s{sW}, 4\ns_cbranch_scc1 p2_s")

    def att_dma_parts():
        pre = f"""s_cmp_le_u32 s{sDST}, s{sTMAX}
        s_cselect_b32 s{sDK}, s{sKO}, {OOB}
        s_cselect_b32 s{sDV}, s{sVO}, {OOB}
        s_mov_b32 m0, s{sDSL}
        s_add_u32 s{sKO}, s{sKO}, 16384"""
        ld = [f"buffer_load_dwordx4 v{vL16}, {srd_s(R_WS)}, s{sDK} offen offset:{i*1024} lds" for i in range(4)] + \
             [f"buffer_load_dwordx4 v{vL16}, {srd_s(R_WS)}, s{sDV} offen offset:{i*1024} lds" for i in range(4)]
        ld[4] = f"s_add_u32 m0, s{sDSL}, 16384\ns_add_u32 s{sVO}, s{sVO}, 16384\n" + ld[4]
        post = f"""s_add_u32 s{sDST}, s{sDST}, 1
        s_add_u32 s{sDSL}, s{sDSL}, {SLOT}
        s_cmp_ge_u32 s{sDSL}, {5*SLOT}
        s_cselect_b32 s{sDSL}, s{sLD}, s{sDSL}"""
        if CFG.get("nodma"): ld = ["s_nop 0"] * 8
        return pre, ld, post
    def att_dma():
        pre, ld, post = att_dma_parts()
        a(pre)
        for x in ld: a(x)
        a(post)
    PL = 192
    KR_ = 112
    def part2(role):
        vm = VMS[role]
        npl = [0]
        for t in range(G_P2, G_END):
            s = t - G_P2
            cover = None
            if s == CFG["s_pf"]: cover = marks[role]["fast"]
            if s == CFG["s_ps"]: cover = marks[role]["slow"]; assert max(CFG["slow"][role]) - 16 < s
            if role == 0 and s == CFG["s_go"] and not CFG.get("nopoll"): cover = marks[0]["inv"]
            if role == 1 and s == 15: cover = marks[1]["idx0"]
            if role == 0 and s == CFG["s_chk"] and not CFG.get("nopoll"):
                l, r = a.lab("chk"), a.lab("chkr")
                a(f"s_cmp_eq_u32 s{sW}, 0\ns_cbranch_scc1 {l}\n{r}:")
                ool.append(poll_code(l, r, (1 << CFG["lvlA"]) - 1, len(vm.ops) - marks[0]["fl"], t3, t4))
                marks[0]["inv"] = len(vm.ops)
            sync(role, t + 1, cover)
            if role == 0 and s in (CFG["s_pf"], CFG["s_ps"]):
                l, r = a.lab("pub"), a.lab("pubr")
                a(f"s_cmp_eq_u32 s{sW}, 0\ns_cbranch_scc1 {l}\n{r}:")
                x = f"{l}:\n{flag_voff(t4)}\nv_add_u32 v{t2}, 1, v{vSNAP}\ns_lshl_b32 s{sT3}, 1, s{sTB}\ns_cmp_lt_u32 s{sTB}, {CFG['lvlA']}\n"
                sk = a.lab("pubs")
                x += f"s_cbranch_scc{0 if s == CFG['s_pf'] else 1} {sk}\ns_mov_b32 exec_lo, s{sT3}\nbuffer_store_dword v{t2}, v{t4}, {srd_s(R_WS)}, s{sT2} offen sc1\n{sk}:\ns_mov_b64 exec, -1\ns_branch {r}"
                ool.append(x)
            if role == 0 and s == CFG["s_pl"] and not CFG.get("nopoll"):
                l, r = a.lab("fl"), a.lab("flr")
                a(f"s_cmp_eq_u32 s{sW}, 0\ns_cbranch_scc1 {l}\n{r}:")
                ool.append(f"{l}:\n{flag_load(t3, t4)}\ns_branch {r}")
                marks[0]["fl"] = len(vm.ops)
            pre = []
            d = dma_stage(role, t + 4)
            rd = p2_reads(t + 1) if t + 1 < G_END else []
            ex = st_slot([role], 16 + s)
            nd = {CFG["s_go"]: 1, 13: 1, 15: 2}.get(s, 0) if role == 1 else 0
            assert CFG["s_go"] < 13
            for i in range(nd):
                p_, ld, post = att_dma_parts()
                ex += [p_] + ld + [post]; vm.add("adma", 8)
                marks[1].setdefault("idx0", len(vm.ops))
            sched(a, p2_mfmas(t, t == G_P2), rd, d + ex)
        stamp(a, 4, [vm])
    part2(0)
    a("s_branch q_epi\np2_s:")
    if CFG["p2prio"]: a("s_setprio 1")
    part2(1)
    a("q_epi:")
    if CFG.get("trace"):
        a(f"s_waitcnt lgkmcnt(0)\nv_writelane_b32 v19, s100, {G_END - G_A1}\ns_lshl_b32 s94, s2, 3\ns_add_u32 s94, s94, s{sW}\ns_lshl_b32 s94, s94, 9\ns_add_u32 s94, s94, {STAMP + 0x100000}\nv_lshlrev_b32 v21, 2, v0")
        a(f"buffer_store_dword v19, v21, {srd_s(R_WS)}, s94 offen offset:256\ns_nop 2")
    vSP = 22
    Q = 32
    vLs = (3, 4)
    vE = [5, 6, 7, 8, 9, 10]
    vM, vM2, vD, vNINF = 11, 12, 13, 14
    O, S, NEG, P, KR, VR = 64, (128, 144), 160, (176, 184), 192, 224
    a(f"s_mov_b32 s{sSCL}, {f32(math.log2(math.e) / math.sqrt(128.0))}")
    for r in range(16):
        c = 16 * ((r // 4) % 2) + 8 * (r // 8) + r % 4
        m = sum(1 << l for l in range(64) if c > (l % 32) - 4 * (l // 32))
        a(f"s_mov_b32 s{sMASK+2*r}, {hex(m & 0xffffffff)}\ns_mov_b32 s{sMASK+2*r+1}, {hex(m >> 32)}")
    a(f"v_add_u32 v{vM}, {4*SLOT}, v{vL16}")
    for c in range(8): a(f"ds_read_b128 {vr(KR+4*c,4)}, v{vM} offset:{c*1024}")
    for r in range(0, 64, 2): a(f"v_pk_mul_f32 {vr(128+r,2)}, {vr(128+r,2)}, s[{sSCL}:{sSCL+1}] op_sel_hi:[1,0]")
    for m in range(32): a(f"v_cvt_pk_bf16_f32 v{Q+m}, v{128+2*m}, v{128+2*m+1}")
    a(f"v_mov_b32 v{vNINF}, 0xff800000\ns_nop 0")
    for i in range(4):
        for r in range(4): a(f"v_permlane16_swap_b32 v{Q+8*i+r}, v{Q+8*i+4+r}")
    stamp(a, 5)
    a("s_waitcnt lgkmcnt(0)\ns_nop 0")
    for c in range(8):
        a(mfma32(S[0], KR + 4 * c, Q + 4 * c, "0" if c == 0 else None))
        a(f"ds_read_b128 {vr(KR+4*c,4)}, v{vM} offset:{8192+c*1024}")
    a("s_nop 10")
    stamp(a, 6)
    def mask_op(s, r): return f"v_cndmask_b32 v{s+r}, v{s+r}, v{vNINF}, s[{sMASK+2*r}:{sMASK+2*r+1}]"
    def rowmax(s):
        a(f"v_max3_f32 v{vM}, v{s}, v{s+1}, v{s+2}")
        for r in range(3, 15, 2): a(f"v_max3_f32 v{vM}, v{vM}, v{s+r}, v{s+r+1}")
        a(f"v_max_f32 v{vM}, v{vM}, v{s+15}\nv_mov_b32 v{vM2}, v{vM}\ns_nop 1\nv_permlane32_swap_b32 v{vM}, v{vM2}\ns_nop 1\nv_max_f32 v{vM}, v{vM}, v{vM2}")
    nm = a.lab("nomask0")
    a(f"s_cmp_lg_u32 s{sG}, 0\ns_cbranch_scc1 {nm}")
    for r in range(16): a(mask_op(S[0], r))
    a(f"{nm}:")
    rowmax(S[0])
    a(f"v_sub_f32 v{NEG}, {f32(-CFG['bias'])}, v{vM}")
    for r in range(1, 16): a(f"v_mov_b32 v{NEG+r}, v{NEG}")
    for r in range(0, 16, 2): a(f"v_pk_add_f32 {vr(S[0]+r,2)}, {vr(S[0]+r,2)}, {vr(NEG,2)}")
    a(f"v_mov_b32 v{vLs[1]}, 0\ns_mov_b32 s{sSLOT}, {4*SLOT}\ns_mov_b32 s{sREM}, s{sG}\ns_mov_b32 s{sSTG}, 0\ns_mov_b32 s98, 0")

    slot_adv = f"s_add_u32 s{sSLOT}, s{sSLOT}, {SLOT}\ns_cmp_ge_u32 s{sSLOT}, {5*SLOT}\ns_cselect_b32 s{sSLOT}, 0, s{sSLOT}\ns_add_u32 s{sSTG}, s{sSTG}, 1"
    kv_adv = f"v_add_u32 v{vKV}, s{sSLOT}, v{vL16}"
    def bar(vmn):
        w = f"s_waitcnt vmcnt({vmn})\n" if vmn is not None else ""
        if CFG.get("bartime"):
            a(f"s_waitcnt lgkmcnt(0)\ns_memtime s[94:95]\ns_waitcnt lgkmcnt(0)\n{w}s_barrier\ns_memtime s[96:97]\ns_waitcnt lgkmcnt(0)\ns_sub_u32 s96, s96, s94\ns_add_u32 s98, s98, s96\ns_mov_b32 s97, m0\ns_mov_b32 m0, s{sSTG}\ns_nop 0\nv_writelane_b32 v21, s96, m0\ns_mov_b32 m0, s97")
        elif CFG.get("nobar"): pass
        else: a(w + "s_barrier")
    def gen_sync(vmn=16):
        a(slot_adv); a(kv_adv)
        bar(vmn)
        nl = a.lab("nold")
        a(f"s_cmp_lt_u32 s{sW}, 4\ns_cbranch_scc1 {nl}")
        att_dma()
        a(f"{nl}:")
    def cond_sync(vmn=16):
        sk = a.lab("nosync")
        a(f"s_cmp_ge_u32 s{sSTG}, s{sTMAX}\ns_cbranch_scc1 {sk}")
        gen_sync(vmn)
        a(f"{sk}:")
    EG = [0, 0, 1, 2, 3, 4, 5, 6, 6, 7, 8, 9, 10, 11, 12, 13]
    def sm_ops(p, masked=False):
        s = S[p]; g = [[] for _ in range(16)]; pre = []
        NE = len(vE)
        for m in range(16):
            g[EG[m]].append(f"v_exp_f32 v{vE[m%NE]}, v{s+m}")
        for m in range(16):
            src = vLs[1 - p] if m == 0 else vLs[p]
            g[EG[m] + 1].append(f"v_add_f32 v{vLs[p]}, v{src}, v{vE[m%NE]}")
        for k in range(8):
            g[EG[2 * k + 1] + 1].append(f"v_cvt_pk_bf16_f32 v{P[p]+k}, v{vE[(2*k)%NE]}, v{vE[(2*k+1)%NE]}")
        if masked:
            for m in range(16):
                if EG[m] == 0: pre.append(mask_op(s, m))
                else: g[EG[m] - 1].append(mask_op(s, m))
        return pre, g
    rets = []
    ORDER = CFG.get("order", "QPQPQPQPQQPQQPPP")
    def real_check(p):
        r = a.lab("ret"); rets.append((p, r))
        return f"v_cmp_nge_f32 vcc, s{sTHR}, v{vLs[p]}\ns_mov_b32 s{sRET}, {len(rets)-1}\ns_cbranch_vccnz rare{p}\n{r}:"
    def body(p, qk=True, pv=True, sm=True, vrd=True, w0=8, w1=8, masked=False, extra=None, hot=False, barrier=None):
        pre, g = sm_ops(p, masked) if sm else ([], [[] for _ in range(16)])
        if sm and hot:
            g[14].insert(len(g[14]) - 1, f"v_cmp_nge_f32 vcc, s{sTH}, v{vLs[p]}")
        for k, x in (extra or {}).items(): g[k] += x
        for x in pre: a(x)
        nq = npv = 0
        for m in range(16):
            if m == 0: a(f"s_waitcnt lgkmcnt({w0})")
            if m == 8: a(f"s_waitcnt lgkmcnt({w1})")
            rd = None
            if ORDER[m] == "Q":
                if qk:
                    a(mfma32(S[1 - p], KR + 4 * nq, Q + 4 * nq, vr(NEG, 16) if nq == 0 else None))
                    rd = f"ds_read_b128 {vr(KR+4*nq,4)}, v{vKV} offset:{p*8192+nq*1024}"
                nq += 1
            else:
                t, u = npv % 4, npv // 4
                f = 2 * t + u
                if pv: a(mfma32(O + 16 * t, VR + 4 * f, P[1 - p] + 4 * u))
                if vrd: rd = f"ds_read_b128 {vr(VR+4*f,4)}, v{vKV} offset:{16384+p*8192+f*1024}"
                npv += 1
            if m == 0 and barrier is not None:
                for x in g[0]: a(x)
                barrier()
                if rd: a(rd)
            else:
                if rd: a(rd)
                for x in g[m]: a(x)
        if sm and not hot: a(real_check(p))
    zero_o = {k: ["\n".join(f"v_mov_b32 v{O+4*k+r}, 0" for r in range(4))] for k in range(16)}
    a("s_waitcnt lgkmcnt(0)")
    gen_sync()
    a(f"s_cmp_eq_u32 s{sG}, 0\ns_cbranch_scc1 att_g0")
    body(0, pv=False, extra=zero_o)
    a(f"s_cmp_eq_u32 s{sREM}, 1\ns_cbranch_scc1 att_last_odd")
    if CFG.get("prio") is not None:
        pl = a.lab("prio")
        a(f"s_setprio 0\ns_cmp_{'ge' if CFG['prio'] == 0 else 'lt'}_u32 s{sW}, 4\ns_cbranch_scc1 {pl}\ns_setprio 1\n{pl}:")
    else: a("s_setprio 0")
    a(f"s_cmp_ge_u32 s{sW}, 4\ns_cbranch_scc1 att_loop1")
    HB = 4 * CFG["lvlA"] - 5
    sa = slot_adv.split("\n")
    for role in range(2):
        if CFG.get("align"):
            if role == 0: a("s_branch att_loop0")
            a.body.append(f".p2align {CFG['align']}")
            for _ in range(CFG.get("apad", 0)): a("s_nop 0")
        a(f"att_loop{role}:")
        ex = {2: [f"s_sub_u32 s{sREM}, s{sREM}, 2", sa[3]], 4: [f"s_cmp_eq_u32 s{sREM}, 0", f"s_cselect_b32 s{sTH}, -1.0, s{sTHR}"],
              11: sa[0:1], 13: sa[1:3], 15: [kv_adv]}
        if role == 0 and not CFG.get("nopoll"): ex[9] = [f"s_cmp_le_u32 s{sSTG}, {HB+2}", f"s_cselect_b32 s{sTH}, -1.0, s{sTH}"]
        body(1, extra=ex, hot=True)
        a(f"s_cbranch_vccnz att_sp{role}\natt_cont{role}:")
        ex = {k: [] for k in range(16)}
        ex[13] += [f"s_cmp_eq_u32 s{sREM}, 1", f"s_cselect_b32 s{sTH}, -1.0, s{sTHR}"]
        if role:
            pre, ld, post = att_dma_parts()
            ex[2].append(pre)
            for i in range(8): ex[CFG.get("dgaps", [2, 4, 5, 6, 9, 10, 11, 12])[i]].append(ld[i])
            ex[15].append(post)
        body(0, extra=ex, hot=True, barrier=lambda: bar(16 if role else None))
        a(f"s_cbranch_vccz att_loop{role}")
        a(real_check(0))
        a(f"s_cmp_lg_u32 s{sREM}, 1\ns_cbranch_scc1 att_loop{role}\ns_branch att_last_odd")
        a(f"att_sp{role}:")
        a(real_check(1))
        if role == 0: a(f"s_cmp_le_u32 s{sSTG}, {HB+2 if not CFG.get('nopoll') else 0}\ns_cbranch_scc1 lvlb\nlvlb_ret:")
        a(f"s_cmp_lg_u32 s{sREM}, 0\ns_cbranch_scc1 att_cont{role}")
        bar(16 if role else None)
        a(f"s_branch att_last_even{role}")
    a("att_g0:")
    body(0, qk=False, pv=False, extra=zero_o)
    a("s_branch att_fin_odd")
    a("att_last_even1:")
    att_dma()
    a("att_last_even0:")
    a(f"s_setprio {CFG.get('tailprio', 2)}\ns_nop 3")
    body(0, qk=False, w1=4, masked=True)
    a("att_fin_odd:")
    a(f"v_mov_b32 v{vD}, v{vLs[0]}")
    body(1, qk=False, sm=False, vrd=False, w0=0, w1=0)
    cond_sync()
    a("s_branch att_done")
    a("att_last_odd:")
    a(f"s_setprio {CFG.get('tailprio', 2)}\ns_nop 3")
    body(1, qk=False, w1=4, masked=True)
    a("s_waitcnt lgkmcnt(0)")
    cond_sync()
    a(f"v_mov_b32 v{vD}, v{vLs[1]}")
    body(0, qk=False, sm=False, vrd=False, w0=0, w1=0)
    a("att_done:")
    stamp(a, 7)
    if CFG.get("bartime"):
        a(f"s_lshl_b32 s94, s2, 3\ns_add_u32 s94, s94, s{sW}\ns_lshl_b32 s94, s94, 9\ns_add_u32 s94, s94, {STAMP + 0x100000}\nv_lshlrev_b32 v19, 2, v0\nbuffer_store_dword v21, v19, {srd_s(R_WS)}, s94 offen")
        a(f"s_getreg_b32 s99, hwreg(HW_REG_HW_ID)\nv_mov_b32 v{vSP}, s98\nv_mov_b32 v{vSP+1}, s99\nbuffer_store_dwordx2 v[{vSP}:{vSP+1}], off, {srd_s(R_WS)}, s{sSTAMP} offset:16")
    a(f"v_mov_b32 v{vM}, v{vD}\ns_nop 1\nv_permlane32_swap_b32 v{vM}, v{vD}\ns_nop 1\nv_add_f32 v{vD}, v{vD}, v{vM}\nv_mul_f32 v{vD}, {f32(2.0 ** CFG['vsh'])}, v{vD}\nv_rcp_f32 v{vD}, v{vD}")
    a(f"""v_bfe_u32 v{vM}, v0, 4, 1
    v_lshlrev_b32 v{vM}, 17, v{vM}
    v_lshrrev_b32 v{vM2}, 5, v0
    v_lshl_or_b32 v{vM}, v{vM2}, 8, v{vM}
    v_and_b32 v{vM2}, 15, v0
    v_lshl_or_b32 v{vM}, v{vM2}, 4, v{vM}
    s_lshl_b32 s{sT0}, s{sG}, 18
    s_lshl_b32 s{sT1}, s{sHEAD}, 12
    s_add_u32 s{sT0}, s{sT0}, s{sT1}
    s_add_u32 s{sT0}, s{sT0}, {CTX}""")
    for t in range(4):
        for c in range(2):
            b = O + 16 * t + 8 * c; d = KR + 4 * (2 * t + c)
            for r in range(0, 8, 2): a(f"v_pk_mul_f32 {vr(b+r,2)}, {vr(b+r,2)}, {vr(vD-1,2)} op_sel:[0,1] op_sel_hi:[1,1]")
            for j in range(4): a(f"v_cvt_pk_bf16_f32 v{d+j}, v{b+2*j}, v{b+2*j+1}")
            a(f"buffer_store_dwordx4 {vr(d,4)}, v{vM}, {srd_s(R_WS)}, s{sT0} offen offset:{t*1024+c*512} {CFG['ctx_flags']}")
    l, r = a.lab("fb"), a.lab("fbr")
    a(f"s_cmp_ge_u32 s{sW}, 4\ns_cbranch_scc1 {l}\n{r}:")
    ool.append(f"""{l}:
    s_lshl_b32 s{sT2}, s2, 13
    s_lshl_b32 s{sT3}, s{sW3}, 11
    s_add_u32 s{sT2}, s{sT2}, s{sT3}
    s_add_u32 s{sT2}, s{sT2}, {OAF}
    v_mov_b32 v24, -1
    v_mov_b32 v25, -1
    v_mov_b32 v26, -1
    v_mov_b32 v27, -1
    buffer_store_dwordx4 v[24:27], v{vL16}, {srd_s(R_WS)}, s{sT2} offen
    buffer_store_dwordx4 v[24:27], v{vL16}, {srd_s(R_WS)}, s{sT2} offen offset:1024
    s_cmp_lg_u32 s{sW}, 4
    s_cbranch_scc1 {r}
    s_lshl_b32 s{sT2}, s2, 8
    s_add_u32 s{sT2}, s{sT2}, {RED}
    v_mov_b32 v{t3}, -1
    v_lshlrev_b32 v{t2}, 2, v0
    buffer_store_dword v{t3}, v{t2}, {srd_s(R_WS)}, s{sT2} offen
    s_lshl_b32 s{sT2}, s{sHEAD}, 2
    s_mov_b64 exec, 1
    {fb_publish(True, t1)}
    s_lshl_b32 s{sT2}, s2, 7
    s_add_u32 s{sT2}, s{sT2}, {FLB}
    v_mov_b32 v{t4}, 0
    buffer_store_dword v{t4}, off, {srd_s(R_WS)}, s{sT2}
    s_mov_b64 exec, -1
    s_branch {r}""")
    a(f"s_mov_b32 s{sCNT}, 0\nidle24:")
    a(f"s_cmp_ge_u32 s{sSTG}, s{sTMAX}\ns_cbranch_scc1 ka_fin")
    gen_sync(26)
    a(f"s_add_u32 s{sCNT}, s{sCNT}, 1\ns_cmp_lt_u32 s{sCNT}, 3\ns_cbranch_scc1 idle24")
    a("idle16:")
    a(f"s_cmp_ge_u32 s{sSTG}, s{sTMAX}\ns_cbranch_scc1 ka_fin")
    gen_sync(16)
    a("s_branch idle16")
    a("ka_fin:")
    if CFG["stamps"]: a("s_waitcnt vmcnt(0)")
    stamp(a, 8)
    a(f"{END}:\ns_endpgm")
    a(f"""lvlb:
    s_cmp_lg_u32 s{sW}, 0
    s_cbranch_scc1 lvlb_ret
    s_cmp_eq_u32 s{sSTG}, {HB+1}
    s_cbranch_scc1 lvlb_chk
    s_cmp_eq_u32 s{sSTG}, {HB+2}
    s_cbranch_scc1 lvlb_wait
    s_cmp_lg_u32 s{sSTG}, {HB}
    s_cbranch_scc1 lvlb_ret
    {flag_load(t3, t4)}
    s_branch lvlb_ret
    lvlb_wait:
    s_waitcnt vmcnt(0)
    s_branch lvlb_ret""")
    a(poll_code("lvlb_chk", "lvlb_ret", 0xff, 0, t3, t4))
    for x in ool: a(x)
    for p in range(2):
        mine = [(i, r) for i, (pp, r) in enumerate(rets) if pp == p]
        if not mine: continue
        a(f"rare{p}:")
        a("s_nop 11")
        rowmax(S[p])
        a(f"v_add_f32 v{vD}, {f32(CFG['bias'])}, v{vM}\nv_max_f32 v{vD}, 0, v{vD}\nv_sub_f32 v{vM}, 0, v{vD}\nv_exp_f32 v{vM}, v{vM}")
        for r in range(16):
            a(f"v_sub_f32 v{S[0]+r}, v{S[0]+r}, v{vD}\nv_sub_f32 v{S[1]+r}, v{S[1]+r}, v{vD}\nv_sub_f32 v{NEG+r}, v{NEG+r}, v{vD}")
        for r in range(64): a(f"v_mul_f32 v{O+r}, v{O+r}, v{vM}")
        a(f"v_mul_f32 v{vLs[1-p]}, v{vLs[1-p]}, v{vM}")
        for grp in sm_ops(p)[1]:
            for x in grp: a(x)
            a("s_nop 0")
        a("s_nop 1")
        for i, r in mine[:-1]:
            a(f"s_cmp_eq_u32 s{sRET}, {i}\ns_cbranch_scc1 {r}")
        a(f"s_branch {mine[-1][1]}")
    a.kernel_end(K, denorm=CFG["denorm"])

def gen_KB(a):
    global vSP
    vSP = 22
    K = "kb_kernel"
    NR = CFG.get('kb_nr', 4)
    a.kernel_begin(K, 256, 256, NR * SLOT)
    END = "kb_end"
    R_OUT = 12
    vm = VM()
    a(f"s_cmp_ge_u32 s2, 256\ns_cbranch_scc1 {END}")
    a(f"s_load_dwordx2 s[{R_WS}:{R_WS+1}], s[0:1], 96\ns_load_dwordx2 s[{R_OUT}:{R_OUT+1}], s[0:1], 80")
    a(f"v_lshrrev_b32 v1, 6, v0\nv_and_b32 v0, 63, v0\nv_readfirstlane_b32 s{sW}, v1\nv_lshlrev_b32 v1, 4, v0")
    a(f"s_mov_b32 s{R_WS+2}, {WS_BYTES}\ns_mov_b32 s{R_WS+3}, 0x20000\ns_mov_b32 s{R_OUT+2}, {4<<20}\ns_mov_b32 s{R_OUT+3}, 0x20000")
    sRB, sCB, sKQ, sTI = 4, 5, 6, 7
    sD = [30 + i for i in range(4)]
    sM = 34
    sX = [36 + i for i in range(4)]; sY = [40 + i for i in range(4)]
    sRA, sCA, sOA, sOB, sEXW, sEXR, sRD, sPH, sOW = 44, 45, 46, 47, 48, 49, 50, 51, 52
    a(f"""s_and_b32 s{sKQ}, s2, 3
    s_bfe_u32 s{sRB}, s2, 0x10002
    s_lshl_b32 s{sRB}, s{sRB}, 3
    s_bfe_u32 s{sT0}, s2, 0x30003
    s_add_u32 s{sRB}, s{sRB}, s{sT0}
    s_lshr_b32 s{sCB}, s2, 6
    s_lshl_b32 s{sTI}, s{sRB}, 2
    s_add_u32 s{sTI}, s{sTI}, s{sCB}
    s_lshl_b32 s{sT3}, s{sKQ}, 15
    s_lshl_b32 s{sM}, s{sW}, 12""")
    for e in range(2):
        a(f"""s_lshl_b32 s{sT0}, s{sW}, 1
        s_add_u32 s{sT0}, s{sT0}, {e}
        s_add_u32 s{sT1}, s{sT0}, s{sKQ}
        s_and_b32 s{sT1}, s{sT1}, 3
        s_and_b32 s{sT2}, s{sT0}, 4
        s_add_u32 s{sT1}, s{sT1}, s{sT2}
        s_lshl_b32 s{sT2}, s{sRB}, 3
        s_add_u32 s{sT1}, s{sT1}, s{sT2}
        s_lshl_b32 s{sT1}, s{sT1}, 17
        s_add_u32 s{sT1}, s{sT1}, s{sT3}
        s_add_u32 s{sD[e]}, s{sT1}, {CTX}
        s_lshl_b32 s{sT2}, s{sCB}, 3
        s_add_u32 s{sT0}, s{sT0}, s{sT2}
        s_lshl_b32 s{sT0}, s{sT0}, 17
        s_add_u32 s{sT0}, s{sT0}, s{sT3}
        s_add_u32 s{sD[2+e]}, s{sT0}, {WOF}""")
    NS = 16
    def dma(t):
        if t >= NS: return []
        out = []
        for u in range(4):
            m = (t % NR) * SLOT + (u >> 1) * 16384 + (u & 1) * 2048
            out.append(f"s_add_u32 m0, s{sM}, {m}\ns_add_u32 s{sTD}, s{sD[u]}, {t*2048}\nbuffer_load_dwordx4 v1, {srd_s(R_WS)}, s{sTD} offen lds")
            out.append(f"buffer_load_dwordx4 v1, {srd_s(R_WS)}, s{sTD} offen offset:1024 lds")
        vm.add(("dma", t), 8)
        return out
    a("s_waitcnt lgkmcnt(0)")
    stamp(a, 10, [vm])
    RP = CFG.get('kb_rp', 1)
    for t in range(RP):
        for x in dma(t): a(x)
    RD = 224
    a(f"""v_and_b32 v12, 31, v0
    v_lshlrev_b32 v12, 4, v12
    s_cmp_lg_u32 s{sW}, 3
    s_cbranch_scc1 kb_nored
    s_lshr_b32 s{sT0}, s2, 3
    s_lshl_b32 s{sT0}, s{sT0}, 16
    s_and_b32 s{sT1}, s2, 7
    s_lshl_b32 s{sT1}, s{sT1}, 9
    s_add_u32 s{sT0}, s{sT0}, s{sT1}
    s_add_u32 s{sT0}, s{sT0}, {KVP}
    v_lshrrev_b32 v13, 5, v0
    v_lshl_or_b32 v13, v13, 15, v12""")
    for i in range(8): a(f"buffer_load_dwordx4 {vr(RD+4*i,4)}, v13, {srd_s(R_WS)}, s{sT0} offen\ns_add_u32 s{sT0}, s{sT0}, 4096")
    a("kb_nored:")
    for t in range(RP, CFG.get("kb_init", 3)):
        for x in dma(t): a(x)
    a(f"""s_lshr_b32 s{sT0}, s{sW}, 1
    s_lshl_b32 s{sT0}, s{sT0}, 13
    v_add_u32 v2, s{sT0}, v1
    v_add_u32 v3, 0x10000, v2
    s_and_b32 s{sT0}, s{sW}, 1
    s_lshl_b32 s{sT0}, s{sT0}, 13
    s_add_u32 s{sT0}, s{sT0}, 16384
    v_add_u32 v4, s{sT0}, v1
    v_add_u32 v5, 0x10000, v4
    v_add_u32 v14, 0x20000, v2
    v_add_u32 v15, 0x20000, v4""")
    a(f"""s_lshl_b32 s{sRA}, s{sRB}, 1
    s_lshr_b32 s{sT0}, s{sKQ}, 1
    s_add_u32 s{sRA}, s{sRA}, s{sT0}
    s_lshl_b32 s{sCA}, s{sCB}, 1
    s_and_b32 s{sT0}, s{sKQ}, 1
    s_add_u32 s{sCA}, s{sCA}, s{sT0}
    s_lshl_b32 s{sX[0]}, s{sRA}, 16
    s_add_u32 s{sX[0]}, s{sX[0]}, s{sM}
    s_add_u32 s{sX[0]}, s{sX[0]}, {OAF}
    s_lshl_b32 s{sY[0]}, s{sCA}, 16
    s_add_u32 s{sY[0]}, s{sY[0]}, s{sM}
    s_add_u32 s{sY[0]}, s{sY[0]}, {WOAF}
    s_and_b32 s{sT0}, s2, 15
    s_lshl_b32 s{sRD}, s{sT0}, 12
    s_add_u32 s{sRD}, s{sRD}, {RED}
    s_lshr_b32 s{sT1}, s2, 4
    s_lshl_b32 s{sT1}, s{sT1}, 2
    s_add_u32 s{sT1}, s{sT1}, s{sW}
    s_lshl_b32 s{sPH}, s{sT1}, 5
    s_add_u32 s{sPH}, s{sPH}, s{sT0}
    s_lshl_b32 s{sOW}, s{sPH}, 10
    s_add_u32 s{sOW}, s{sOW}, {OAF}
    s_lshl_b32 s{sPH}, s{sPH}, 11
    s_add_u32 s{sPH}, s{sPH}, {PHQ}""")
    for i in range(1, 4):
        a(f"s_add_u32 s{sX[i]}, s{sX[0]}, {i*16384}\ns_add_u32 s{sY[i]}, s{sY[0]}, {i*16384}")
    a(f"""v_and_b32 v6, 15, v0
    v_lshlrev_b32 v6, 11, v6
    v_lshrrev_b32 v7, 4, v0
    v_lshl_or_b32 v6, v7, 4, v6
    s_lshl_b32 s{sOA}, s{sRA}, 2
    s_add_u32 s{sOA}, s{sOA}, s{sW}
    s_lshl_b32 s{sOA}, s{sOA}, 15
    s_lshl_b32 s{sT1}, s{sCA}, 7
    s_add_u32 s{sOA}, s{sOA}, s{sT1}
    s_lshl_b32 s{sOB}, s{sRB}, 3
    s_and_b32 s{sT0}, s{sW}, 2
    s_lshl_b32 s{sT0}, s{sT0}, 1
    s_add_u32 s{sOB}, s{sOB}, s{sT0}
    s_add_u32 s{sOB}, s{sOB}, s{sKQ}
    s_lshl_b32 s{sOB}, s{sOB}, 15
    s_lshl_b32 s{sT1}, s{sCB}, 8
    s_add_u32 s{sOB}, s{sOB}, s{sT1}
    s_and_b32 s{sT0}, s{sW}, 1
    s_lshl_b32 s{sT0}, s{sT0}, 7
    s_add_u32 s{sOB}, s{sOB}, s{sT0}
    s_add_u32 s{sOB}, s{sOB}, 1024
    s_lshl_b32 s{sEXW}, s{sTI}, 18
    s_add_u32 s{sEXW}, s{sEXW}, s{sM}
    s_add_u32 s{sEXW}, s{sEXW}, {EXB}
    s_lshl_b32 s{sT0}, s{sKQ}, 16
    s_add_u32 s{sEXR}, s{sEXW}, s{sT0}
    v_add_u32 v8, s{sM}, v1
    s_lshl_b32 s{sT1}, s{sW}, 14
    v_add_u32 v9, s{sT1}, v1""")
    a(f"s_mov_b32 s{sCNT}, 0")
    FS = (32, 64)
    def reads(t, k):
        b = FS[k]; sl = t % NR; o = (sl & 1) * SLOT + k * 1024; h = sl >> 1
        return [f"ds_read_b128 {vr(b+4*i,4)}, v{(2, 3, 14)[h]} offset:{o+i*2048}" for i in range(4)] + \
               [f"ds_read_b128 {vr(b+16+4*i,4)}, v{(4, 5, 15)[h]} offset:{o+i*2048}" for i in range(4)]
    def am(d, x, y, first):
        c = "0" if first else f"a[{d}:{d+3}]"
        return f"v_mfma_f32_16x16x32_bf16 a[{d}:{d+3}], {vr(x,4)}, {vr(y,4)}, {c}"
    def mf(acc, b, first): return [am(acc + 16 * x + 4 * y, b + 16 + 4 * y, b + 4 * x, first) for x in range(4) for y in range(4)]
    AB = 96
    RV, PV, TN = 96, 112, 128
    def o_loads_red(): return [f"buffer_load_dwordx4 {vr(RV+4*i,4)}, v1, {srd_s(R_WS)}, s{sRD} offen offset:{i*1024} sc1" for i in range(4)]
    def o_loads():
        vm.add("ol", 8)
        return o_loads_red() + [f"buffer_load_dwordx4 {vr(PV+4*h,4)}, v1, {srd_s(R_WS)}, s{sPH} offen offset:{h*1024}" for h in range(2)] + \
               [(f"s_add_u32 s{sT3}, s{sPH}, 32768\n" if h == 0 else "") + f"buffer_load_dwordx4 {vr(PV+8+4*h,4)}, v1, {srd_s(R_WS)}, s{sT3} offen offset:{h*1024}" for h in range(2)]
    def validate(regs, tag):
        x = f"kb_val{tag}:\nv_max3_u32 v10, v{regs[0]}, v{regs[1]}, v{regs[2]}\n"
        for r in range(3, len(regs) - 1, 2): x += f"v_max3_u32 v10, v10, v{regs[r]}, v{regs[r+1]}\n"
        return x + f"v_max_u32 v10, v10, v{regs[-1]}\nv_cmp_eq_u32 vcc, -1, v10\ns_cbranch_vccnz kb_reload{tag}\nkb_valok{tag}:"
    def o_mfma():
        out = [validate(list(range(RV, RV + 16)), 0)]
        for T in range(2):
            for h in range(2):
                out.append(mfma16(TN + 16 * T + 8 * h, RV + 8 * h, PV + 8 * T + 4 * h, "0") + "\n" + mfma16(TN + 16 * T + 8 * h + 4, RV + 8 * h + 4, PV + 8 * T + 4 * h, "0"))
        return out
    def o_fin():
        out = []
        for i in range(4): out.append(f"v_add_f32 v{TN+8*i+4}, {f32(1e-6)}, v{TN+8*i+4}\nv_rcp_f32 v{TN+8*i+4}, v{TN+8*i+4}")
        for i in range(4):
            n = TN + 8 * i; o = TN + 32 + 2 * i
            out.append("\n".join(f"v_mul_f32 v{n+r}, v{n+r}, v{n+4}" for r in range(4)))
            out.append(f"v_cvt_pk_bf16_f32 v{o}, v{n}, v{n+1}\nv_cvt_pk_bf16_f32 v{o+1}, v{n+2}, v{n+3}")
        out.append(f"s_add_u32 s{sT3}, s{sOW}, 16384\nbuffer_store_dwordx4 {vr(TN+32,4)}, v1, {srd_s(R_WS)}, s{sOW} offen sc1\nbuffer_store_dwordx4 {vr(TN+36,4)}, v1, {srd_s(R_WS)}, s{sT3} offen sc1")
        return out
    def a_o(k): return [f"buffer_load_dwordx4 {vr(AB+32*k+4*i,4)}, v1, {srd_s(R_WS)}, s{sX[i]} offen offset:{k*1024} sc1" for i in range(4)]
    def a_w(k): return [f"buffer_load_dwordx4 {vr(AB+32*k+16+4*i,4)}, v1, {srd_s(R_WS)}, s{sY[i]} offen offset:{k*1024}" for i in range(4)]
    AL = a_w(0) + a_w(1) + a_w(2) + a_w(3) + a_o(0) + a_o(1) + a_o(2) + a_o(3)
    def aload(k):
        vm.add("al", 8)
        return AL[8 * k:8 * k + 8]
    def red_finish():
        x = f"s_cmp_lg_u32 s{sW}, 3\ns_cbranch_scc1 kb_nored2\n"
        for st in (4, 2, 1):
            for i in range(st):
                for r in (0, 2): x += f"v_pk_add_f32 {vr(RD+4*i+r,2)}, {vr(RD+4*i+r,2)}, {vr(RD+4*(i+st)+r,2)}\n"
        for r in range(4): x += f"v_mov_b32 v{RD+4+r}, v{RD+r}\n"
        x += "s_nop 1\n"
        for r in range(4): x += f"v_permlane32_swap_b32 v{RD+r}, v{RD+4+r}\n"
        x += "s_nop 0\n"
        for r in (0, 2): x += f"v_pk_add_f32 {vr(RD+r,2)}, {vr(RD+r,2)}, {vr(RD+4+r,2)}\n"
        x += f"""v_cvt_pk_bf16_f32 v{RD+4}, v{RD}, v{RD+1}
        v_cvt_pk_bf16_f32 v{RD+5}, v{RD+2}, v{RD+3}
        s_lshr_b32 s{sT0}, s2, 2
        s_lshl_b32 s{sT0}, s{sT0}, 10
        s_and_b32 s{sT1}, s2, 1
        s_lshl_b32 s{sT1}, s{sT1}, 9
        s_add_u32 s{sT0}, s{sT0}, s{sT1}
        s_and_b32 s{sT1}, s2, 2
        s_lshl_b32 s{sT1}, s{sT1}, 2
        s_add_u32 s{sT0}, s{sT0}, s{sT1}
        s_add_u32 s{sT0}, s{sT0}, {RED}
        s_mov_b32 exec_hi, 0
        buffer_store_dwordx2 {vr(RD+4,2)}, v12, {srd_s(R_WS)}, s{sT0} offen sc1
        s_mov_b64 exec, -1
        kb_nored2:"""
        return x
    a(f"s_waitcnt vmcnt({vm.n_after(('dma', 0))})\ns_barrier")
    for x in reads(0, 0): a(x)
    for t in range(CFG.get("kb_init", 3), NR):
        for x in dma(t): a(x)
    pend = []
    T_OL, T_OC = CFG.get("kb_ol", 3), CFG.get("kb_oc", 5)
    for t in range(NS):
        a("s_waitcnt lgkmcnt(0)")
        if t == T_OL: pend = pend + o_loads()
        if t == T_OC + 1: pend = pend + o_fin(); vm.add("ost", 2)
        sched(a, mf(64, FS[0], t == 0), reads(t, 1), pend, CFG.get("kb_rf", 0.7))
        if t + 1 < NS:
            n = vm.n_after(('dma', t + 1))
            if t == T_OC: n = min(n, vm.n_after("ol"))
            a(f"s_waitcnt vmcnt({n}) lgkmcnt(0)\ns_barrier")
        else: a("s_waitcnt lgkmcnt(0)")
        d = dma(t + NR) if t + NR < NS else aload(t + 4 - NS) if t + 4 >= NS else []
        pend = d[4:] if t + 1 < NS else []
        now = d[:4] if t + 1 < NS else d
        if t == RP - 1: a(red_finish())
        if t == T_OC: now = o_mfma() + now
        sched(a, mf(64, FS[1], False), reads(t + 1, 0) if t + 1 < NS else [], now, CFG.get("kb_rf", 0.7))
    stamp(a, 11, [vm])
    a("s_nop 7")
    for x in range(1, 4):
        a(f"s_add_u32 s{sT0}, s{sKQ}, {x}\ns_and_b32 s{sT0}, s{sT0}, 3\ns_lshl_b32 s{sT0}, s{sT0}, 16\ns_add_u32 s{sT0}, s{sT0}, s{sEXW}\ns_add_u32 s{sT0}, s{sT0}, {(x-1)*16384}")
        for r in range(16): a(f"v_accvgpr_read_b32 v{32+r}, a{64+16*x+r}")
        for m in range(8): a(f"v_cvt_pk_bf16_f32 v{48+8*x+m}, v{32+2*m}, v{32+2*m+1}")
        for be in range(2):
            a(f"buffer_store_dwordx4 {vr(48+8*x+4*be,4)}, v1, {srd_s(R_WS)}, s{sT0} offen offset:{be*1024} sc1")
    vm.add("st", 6)
    a(f"s_waitcnt vmcnt({vm.n_after('al')})")
    a(validate([AB + 32 * k + r for k in range(4) for r in range(16)], 1))
    for k in range(4):
        for m in mf(0, AB + 32 * k, k == 0): a(m)
    a("s_waitcnt vmcnt(0)\ns_barrier")
    stamp(a, 14)
    a(f"""s_cmp_lg_u32 s{sW}, 0
    s_cbranch_scc1 kb_nopub
    s_lshl_b32 s{sT0}, s2, 7
    s_add_u32 s{sT0}, s{sT0}, {FLB}
    v_mov_b32 v10, 1
    s_mov_b64 exec, 1
    buffer_store_dword v10, off, {srd_s(R_WS)}, s{sT0} sc1
    s_mov_b64 exec, -1
    kb_nopub:""")
    a("s_nop 7")
    for x in range(4):
        for y in range(4):
            a(f"ds_write_b128 v8, a[{16*x+4*y}:{16*x+4*y+3}] offset:{x*16384+y*1024}")
    a("s_waitcnt lgkmcnt(0)\ns_barrier")
    RA = 32
    def finish(n, off):
        for m in range(8): a(f"v_cvt_pk_bf16_f32 v{RA+16+m}, v{RA+2*m}, v{RA+2*m+1}")
        for be in range(2): a(f"buffer_store_dwordx4 {vr(RA+16+4*be,4)}, v6, {srd_s(R_OUT)}, s{off} offen offset:{be*64}")
    def add4():
        for r in range(0, 16, 2):
            a(f"v_pk_add_f32 {vr(RA+r,2)}, {vr(RA+r,2)}, {vr(RA+16+r,2)}\nv_pk_add_f32 {vr(RA+32+r,2)}, {vr(RA+32+r,2)}, {vr(RA+48+r,2)}")
        for r in range(0, 16, 2): a(f"v_pk_add_f32 {vr(RA+r,2)}, {vr(RA+r,2)}, {vr(RA+32+r,2)}")
    for sw in range(4):
        for y in range(4): a(f"ds_read_b128 {vr(RA+16*sw+4*y,4)}, v9 offset:{sw*4096+y*1024}")
    a(f"""s_and_b32 s{sT0}, s2, 0xfc
    s_lshl_b32 s{sT0}, s{sT0}, 7
    s_add_u32 s{sT0}, s{sT0}, {FLB}
    v_lshlrev_b32 v11, 7, v0
    s_mov_b32 s{sCNT}, 0
    s_lshl_b32 s{sT2}, 1, s{sKQ}
    kb_poll:
    s_mov_b64 exec, 15
    buffer_load_dword v10, v11, {srd_s(R_WS)}, s{sT0} offen sc1
    s_waitcnt vmcnt(0)
    v_cmp_eq_u32 vcc, 1, v10
    s_mov_b64 exec, -1
    s_add_u32 s{sCNT}, s{sCNT}, 1
    s_or_b32 s{sT1}, vcc_lo, s{sT2}
    s_cmp_eq_u32 s{sT1}, 15
    s_cbranch_scc1 kb_ok
    s_sleep 1
    s_cmp_lt_u32 s{sCNT}, {CFG['spin']}
    s_cbranch_scc1 kb_poll
    kb_ok:""")
    stamp(a, 15)
    RA = 96
    for x in range(3):
        a(f"s_add_u32 s{sT0}, s{sEXR}, {x*16384}")
        for be in range(2): a(f"buffer_load_dwordx4 {vr(RA+64+8*x+4*be,4)}, v1, {srd_s(R_WS)}, s{sT0} offen offset:{be*1024} sc1")
    for r in range(16): a(f"v_accvgpr_read_b32 v{RA+r}, a{64+r}")
    RA = 32
    a("s_waitcnt lgkmcnt(0)")
    add4(); finish(0, sOA)
    RA = 96
    for x in range(3):
        a(f"s_waitcnt vmcnt({6 - 2*x})")
        for m in range(8):
            a(f"v_lshlrev_b32 v{RA+16+16*x+2*m}, 16, v{RA+64+8*x+m}\nv_and_b32 v{RA+16+16*x+2*m+1}, 0xffff0000, v{RA+64+8*x+m}")
    add4(); finish(1, sOB)
    stamp(a, 12)
    a(f"{END}:\ns_endpgm")
    for tag, ld in ((0, o_loads_red()), (1, a_o(0) + a_o(1) + a_o(2) + a_o(3))):
        a(f"kb_reload{tag}:\ns_add_u32 s{sCNT}, s{sCNT}, 1\ns_cmp_ge_u32 s{sCNT}, {CFG['spin']}\ns_cbranch_scc1 kb_valok{tag}\ns_sleep 2")
        for x in ld: a(x)
        a(f"s_waitcnt vmcnt(0)\ns_branch kb_val{tag}")
    a("code_end:")
    a.kernel_end(K, vgpr=384, accum=256)

HEADER = """; Fused hedgehog linear attention + MLA causal prefill attention for gfx950 (generated by own script).
; ka: K/V projection, hedgehog features, Q projection, flash attention ; kb: output projections."""

def build(path, **cfg):
    CFG.clear(); CFG.update(DEF); CFG.update(cfg)
    a = Asm()
    gen_KA(a)
    gen_KB(a)
    if CFG.get("kb2"): pass
    txt = a.text(HEADER)
    errs, n = hazard.check(txt)
    for e in errs: print("HAZARD", e)
    print(f"{path}: {n} instructions, {len(errs)} hazards, {len(txt)} bytes")
    open(path, "w").write(txt)

if __name__ == "__main__":
    build("k_dbg.s", stamps=True)
    build("k_dbg_bt.s", stamps=True, bartime=True)
    build("cdna_kernels/" + NAME + ".s")
```

```python
import re, sys
REG = re.compile(r"^(-?)(abs\()?([vsa])(\d+)\)?$")
RNG = re.compile(r"^(-?)([vsa])\[(\d+):(\d+)\]$")
def regs(tok):
    tok = tok.strip()
    m = REG.match(tok)
    if m: return {(m.group(3), int(m.group(4)))}
    m = RNG.match(tok)
    if m: return {(m.group(2), i) for i in range(int(m.group(3)), int(m.group(4)) + 1)}
    if tok == "vcc": return {("s", "vcc")}
    if tok == "exec": return {("s", "exec")}
    if tok == "m0": return {("s", "m0")}
    return set()
TRANS = ("v_exp_f32", "v_log_f32", "v_rcp_f32", "v_rsq_f32", "v_sqrt_f32", "v_sin_f32", "v_cos_f32")
class I:
    def __init__(s, line, n):
        s.line = line; s.n = n
        t = line.split(";")[0].strip()
        parts = t.split(None, 1)
        s.op = parts[0]
        rest = parts[1] if len(parts) > 1 else ""
        rest = re.sub(r"\s+(op_sel|neg_)\S*", "", rest)
        ops = [x.strip() for x in rest.split(",")]
        if ops and ops[-1]:
            last = ops[-1].split()
            s.mods = last[1:]
            ops[-1] = last[0]
        else:
            s.mods = []
        s.ops = [o for o in ops if o]
        op = s.op
        s.w = set(); s.r = set(); s.kind = "other"; s.states = 1; s.passes = 0
        s.A = s.B = s.C = set(); s.target = None; s.fall = True; s.data = set()
        R = [regs(o) for o in s.ops]
        if op == "s_nop": s.states = int(s.ops[0], 0) + 1; s.kind = "nop"
        elif op.startswith("v_mfma"):
            s.kind = "mfma"; s.passes = 8 if "32x32" in op else 4
            s.w = R[0]; s.A, s.B, s.C = R[1], R[2], R[3]; s.r = s.A | s.B | s.C
        elif op.startswith("v_"):
            s.kind = "valu"
            if op.startswith("v_cmp"):
                s.w = R[0]; s.r = set().union(*R[1:])
            elif op.startswith("v_permlane") and "swap" in op:
                s.w = R[0] | R[1]; s.r = R[0] | R[1]
            elif op.startswith(("v_add_co", "v_sub_co", "v_addc_co")):
                s.w = R[0] | R[1]; s.r = set().union(*R[2:])
            else:
                s.w = R[0]; s.r = set().union(*R[1:]) if len(R) > 1 else set()
                if op.startswith(("v_fmac", "v_writelane")) or "dpp" in op: s.r |= R[0]
        elif op.startswith(("buffer_load", "global_load")):
            s.kind = "vload"
            if "lds" in s.mods or "lds" in op:
                s.r = set().union(*R) | {("s", "m0")}; s.dma = True
            else:
                s.w = R[0]; s.r = set().union(*R[1:])
                if "d16" in op: s.r |= R[0]
        elif op.startswith(("buffer_store", "buffer_atomic")):
            s.kind = "vstore"; s.r = set().union(*R); s.data = R[0]
            if op.startswith("buffer_atomic") and "sc0" in s.mods: s.w = R[0]
        elif op.startswith("global_store"):
            s.kind = "vstore"; s.r = set().union(*R); s.data = R[1]
        elif op.startswith("ds_read") or op.startswith(("ds_bpermute", "ds_swizzle", "ds_permute")):
            s.kind = "ds"; s.w = R[0]; s.r = set().union(*R[1:])
        elif op.startswith("ds_"):
            s.kind = "ds"; s.r = set().union(*R)
        elif op.startswith("s_cbranch"):
            s.kind = "br"; s.target = s.ops[0]
        elif op == "s_branch":
            s.kind = "br"; s.target = s.ops[0]; s.fall = False
        elif op == "s_endpgm":
            s.fall = False
        elif op.startswith("s_") and not op.startswith(("s_waitcnt", "s_barrier", "s_sleep", "s_setprio", "s_cmp", "s_bitcmp")):
            s.kind = "salu"
            if R: s.w = R[0]; s.r = set().union(*R[1:]) if len(R) > 1 else set()
            if "saveexec" in op: s.w = s.w | {("s", "exec")}
        s.wide = s.kind == "vstore" and ("x4" in op or "x3" in op)
        s.trans = re.sub(r"_e(32|64)$", "", op) in TRANS
def need(p, c):
    n = 0; why = ""
    def up(k, w):
        nonlocal n, why
        if k > n: n, why = k, w
    vw = {x for x in p.w if x[0] in "va"}
    sw = {x for x in p.w if x[0] == "s"}
    if p.kind == "valu":
        if c.kind == "mfma" and vw & c.r: up(2, "valu->mfma operand")
        if c.op.startswith("v_permlane") and vw & c.r: up(2, "valu->permlane")
        if "dpp" in c.op and vw & c.r: up(2, "valu->dpp")
        if c.op.startswith(("v_readfirstlane", "v_readlane")) and vw & c.r: up(1, "valu->readlane")
        if p.op.startswith("v_permlane") and c.kind in ("valu", "vstore", "ds") and vw & c.r: up(1, "permlane->use (pad)")
        if p.trans and c.kind == "valu" and not c.trans and vw & c.r: up(1, "trans->valu")
        if p.trans and c.kind in ("vstore", "ds", "vload") and vw & c.r: up(1, "trans->mem")
        if sw:
            cr = set(c.r)
            if c.op.startswith("v_cndmask") and len(c.ops) == 3: cr |= {("s", "vcc")}
            if c.kind == "valu" and sw & cr: up(4 if c.op.startswith(("v_readlane", "v_writelane")) else 2, "valu sgpr->valu")
            if c.kind in ("vload", "vstore") and sw & cr: up(5, "valu sgpr->vmem")
            if c.kind == "salu" and (sw & cr) - {("s", "vcc")}: up(1, "valu sgpr->salu (pad)")
    if p.kind == "mfma":
        big = p.passes == 8
        if c.kind == "mfma":
            if p.w & (c.A | c.B): up(12 if big else 8, "mfma D->A/B")
            if p.w & c.C and not (p.w == c.C and p.passes == c.passes): up(10 if big else 6, "mfma D->C overlap")
        elif c.kind == "valu":
            if p.w & (c.r | c.w): up(12 if big else 8, "mfma D->valu")
            if p.C & c.w: up(7 if big else 3, "mfma C WAR")
        elif c.kind in ("vload", "vstore", "ds"):
            if p.w & (c.r | c.w): up(12 if big else 8, "mfma D->mem")
    if p.kind == "salu" and ("s", "m0") in p.w and getattr(c, "dma", False): up(1, "m0->dma")
    if p.wide and p.data & c.w: up(2 if c.kind == "valu" else 1, "store data WAR")
    return n, why
def check(text):
    ins = []; labels = {}
    for ln, line in enumerate(text.split("\n"), 1):
        t = line.split(";")[0].strip()
        if not t or t.startswith("."): continue
        if t.endswith(":"): labels[t[:-1]] = len(ins); continue
        ins.append(I(t, ln))
    errs = []
    global fixes
    fixes = {}
    for i, p in enumerate(ins):
        if p.kind not in ("valu", "mfma", "salu", "vstore"): continue
        if p.kind == "salu" and ("s", "m0") not in p.w: continue
        if p.kind == "vstore" and not p.wide: continue
        lim = 12 if p.kind == "mfma" else 5
        stack = []
        def succ(k):
            out = []
            q = ins[k]
            if q.fall and k + 1 < len(ins): out.append(k + 1)
            if q.target is not None and q.target in labels and labels[q.target] < len(ins): out.append(labels[q.target])
            return out
        seen = {}
        stack = [(k, 0) for k in succ(i)]
        while stack:
            k, d = stack.pop()
            if d >= lim or seen.get(k, 99) <= d: continue
            seen[k] = d
            c = ins[k]
            n, why = need(p, c)
            if d < n: fixes[c.n] = max(fixes.get(c.n, 0), n - d)
            if d < n: errs.append(f"line {p.n}: '{p.line}' -> line {c.n}: '{c.line}' has {d} states, needs {n} ({why})")
            for k2 in succ(k): stack.append((k2, d + c.states))
    return errs, len(ins)
if __name__ == "__main__":
    e, n = check(open(sys.argv[1]).read())
    for x in e: print(x)
    print(f"{n} instructions, {len(e)} hazards")

def autofix(text):
    tot = 0
    for _ in range(50):
        e, n = check(text)
        if not e: break
        lines = text.split("\n")
        first = min(fixes)
        last = -100; todo = []
        for ln in sorted(fixes):
            if ln - last > 14: todo.append(ln); last = ln
        for ln in reversed(todo):
            lines.insert(ln - 1, f"    s_nop {fixes[ln] - 1}"); tot += 1
        text = "\n".join(lines)
    return text, tot
```

```python
import sys, struct, math
from agen import Asm
import hazard

NAME = "concat_heads__linear_kernel_hedgehog__compressed_kv_cla__prompt"
KF   = 0x0100000
VF   = 0x1200000
CTX  = 0x2400000
PHQ  = 0x5300000
OAF  = 0x3580000
RED  = 0x3500000
WOF  = 0x3800000
WOAF = 0x3D00000
KVP  = 0x3E00000
FLG  = 0x4100000
XB   = 0x6000000
FW   = 0x4180000
STAMP = 0xF000000
WS_BYTES = 0x10000000
SLOT = 32768
SCR = 4 * SLOT
OOB = 0x40000000

def f32(x): return struct.unpack("<I", struct.pack("<f", x))[0]

DEF = dict(stamps=False, bias=102.0, thr=132.0, vsh=64, st_flags="sc1", ctx_flags="sc1", spin=20000, prefetch=False, denorm=0,
           s_pf=2, s_ps=11, s_pl=9, s_chk=12, s_go=12, kb_nb=5, rotm=(0, 0, 0), lvlA=2, pf_t0=1, pf_t1=15, n_init=3, tshift=5, out_flags='', clr_flags='sc1', q1l=None, q1q=None, q1full=True, cpf=[11], p2prio=1, nt=(20, 24, 44), hmap=1, pfeven=False, w1=None, lin={2: ["xa", "wa"], 5: ["xb", "wq"]}, stag=None, lin0=["c"],
           fast=[[8, 8, 9, 9, 10, 10, 11, 11, 12, 12, 13, 13, 14, 14, 15, 15], list(range(16))],
           slow=[[9, 11, 13, 15, 18, 18, 19, 19, 20, 20, 21, 21, 22, 22, 23, 24], list(range(16))])
CFG = dict(DEF)

sW, sHEAD, sTB, sTBA, sHP = 3, 4, 5, 6, 7
R_WS, R_DBG, R_C, R_WUK, R_WUV, R_XA, R_WQKV, R_XB, R_WQ, R_WOB, R_WOA, R_PHI = [8 + 4 * i for i in range(12)]
sMASK = 24
sT0, sT1, sT2, sT3 = 56, 57, 58, 59
sDM, sDMW = 60, 61
sO0, sO2 = 62, 63
sTD = 64
sW3 = 65
sST, sCNT, sG, sREM, sSLOT, sRET, sTHR = 66, 67, 68, 69, 70, 71, 72
sKO, sVO, sDST, sTMAX, sLD = 73, 74, 75, 76, 77
sA0, sA2 = 78, 79
sBL, sBS, sB2 = 80, 81, 82
sSTG = 83
sDK, sDV = 84, 85
sEX = 86
sSTAMP = 88
sSCL, sDSL = 90, 91
sPQ, sPX = 100, 101
sRT, sCT, sCT2, sCW = 94, 95, 96, 97
sTD2 = 99
sHK, sH2, sWO, sHL = 63, 78, 79, 80
R_OUT = 16
R_WO2 = 20
vWOD = 20
sHC = 98
sACK, sE9 = 94, 95
sTA = 96
sTH = 62
vTOK = 1
vW = [2 + i for i in range(8)]
vDTOK, vDW, vDWA, vST0, vST1 = 10, 11, 12, 13, 14
vT = [15 + i for i in range(9)]
vSP = 126
vPHIQ = 24
vSNAP = 20
vDTK2 = 23
vP0, vPD, vWB, vTKB = 24, 25, 22, 21

def srd_s(r): return f"s[{r}:{r+3}]"
def vr(a, n): return f"v[{a}:{a+n-1}]" if n > 1 else f"v{a}"

class VM:
    def __init__(s): s.ops = []
    def add(s, tag, n=1): s.ops += [tag] * n
    def has(s, tag): return tag in s.ops
    def n_after(s, tag):
        idx = max(i for i, t in enumerate(s.ops) if t == tag)
        return min(63, len(s.ops) - 1 - idx)

def interleave(a, mf, fill):
    n = len(mf); m = len(fill)
    slots = [[] for _ in range(n)]
    for k, f in enumerate(fill):
        slots[min((k * n) // max(m, 1), n - 1)].append(f)
    for x, s in zip(mf, slots):
        a(x)
        for f in s: a(f)

def sched(a, mf, reads, other, frac=None):
    frac = CFG.get("rfrac", 0.85) if frac is None else frac
    n = len(mf); slots = [[] for _ in range(n)]
    nr = max(1, int(n * frac))
    for k, f in enumerate(reads): slots[min((k * nr) // max(len(reads), 1), n - 1)].append(f)
    o0 = CFG.get("ostart", 0.0)
    for k, f in enumerate(other): slots[min(int(n * o0) + ((2 * k + 1) * (n - int(n * o0))) // (2 * len(other)), n - 1)].append(f)
    for x, sl in zip(mf, slots):
        a(x)
        for f in sl: a(f)

def merge(x, y):
    if not y: return list(x)
    if not x: return list(y)
    out = []; j = 0
    for i, e in enumerate(x):
        out.append(e)
        while j < len(y) and (j + 1) * len(x) <= (i + 1) * len(y):
            out.append(y[j]); j += 1
    return out + y[j:]

def mfma16(d, x, y, c=None):
    c = vr(d, 4) if c is None else c
    return f"v_mfma_f32_16x16x32_bf16 {vr(d,4)}, {vr(x,4)}, {vr(y,4)}, {c}"
def mfma32(d, x, y, c=None):
    c = vr(d, 16) if c is None else c
    return f"v_mfma_f32_32x32x16_bf16 {vr(d,16)}, {vr(x,4)}, {vr(y,4)}, {c}"

def stamp(a, idx, vms=()):
    if not CFG["stamps"]: return
    a(f"s_memrealtime s[{sSTAMP}:{sSTAMP+1}]\ns_memtime s[92:93]")
    a("s_waitcnt lgkmcnt(0)")
    a(f"v_mov_b32 v{vSP}, s{sSTAMP}\nv_mov_b32 v{vSP+1}, s92")
    a(f"s_lshl_b32 s{sSTAMP}, s2, 3\ns_add_u32 s{sSTAMP}, s{sSTAMP}, s{sW}\ns_lshl_b32 s{sSTAMP}, s{sSTAMP}, 7\ns_add_u32 s{sSTAMP}, s{sSTAMP}, {STAMP + idx*8}")
    a(f"buffer_store_dwordx2 v[{vSP}:{vSP+1}], off, {srd_s(R_WS)}, s{sSTAMP}")
    for v in vms: v.add("stamp")

def dma_unit(m0s, m0c, voff, srd, bs, bc):
    nt = " nt" if srd in CFG["nt"] else ""
    return f"s_add_u32 m0, s{m0s}, {m0c}\ns_add_u32 s{sTD}, s{bs}, {bc}\nbuffer_load_dwordx4 v{voff}, {srd_s(srd)}, s{sTD} offen{nt} lds"

def gen_KA(a):
    global vSP
    K = NAME + "_kernel"
    a.kernel_begin(K, 256, 512, 160 * 1024)
    marks = [{}, {}]
    VMS = [VM(), VM()]
    END = "ka_end"
    hm = CFG.get("hmap", 0)
    HCODE = f"s_mov_b32 s{sHC}, s{sHEAD}" if hm == 0 else f"s_and_b32 s{sHC}, s2, 31" if hm == 1 else \
            f"s_lshl_b32 s{sHC}, s{sT2}, 3\ns_add_u32 s{sT3}, s{sT0}, s{sT2}\ns_and_b32 s{sT3}, s{sT3}, 7\ns_add_u32 s{sHC}, s{sHC}, s{sT3}"
    vSP = 30
    a(f"s_cmp_ge_u32 s2, 256\ns_cbranch_scc1 {END}")
    for _ in range(CFG.get("pad", 0)): a("s_nop 0")
    for r, off in ((R_C, 40), (R_WUK, 56), (R_WUV, 64), (R_WS, 96)):
        a(f"s_load_dwordx2 s[{r}:{r+1}], s[0:1], {off}")
    a(f"""s_getpc_b64 s[{sEX}:{sEX+1}]
    ka_here:
    s_sub_u32 s{sEX}, s{sEX}, ka_here-{K}
    s_subb_u32 s{sEX+1}, s{sEX+1}, 0
    s_lshr_b32 s{sT0}, s2, 3
    s_mul_i32 s{sT0}, s{sT0}, 24
    s_sub_u32 s{sT0}, s{sT0}, 488
    v_add_u32 v2, s{sT0}, v0
    v_lshlrev_b32 v2, 7, v2
    v_min_u32 v2, code_end-{K}-4, v2
    v_cmp_lt_u32 vcc, 487, v0
    s_and_saveexec_b64 s[{sSTAMP}:{sSTAMP+1}], vcc
    s_cbranch_execz ka_nocpf
    global_load_dword v{vPD}, v2, s[{sEX}:{sEX+1}]
    ka_nocpf:
    s_mov_b64 exec, s[{sSTAMP}:{sSTAMP+1}]""")
    a(f"v_lshrrev_b32 v1, 6, v0\nv_and_b32 v0, 63, v0\nv_readfirstlane_b32 s{sW}, v1")
    SZ = {R_XA: 2 << 20, R_WQKV: 512 * 3072, R_PHI: 16384, R_WOA: 512 * 1024, R_XB: 2 << 20, R_C: 2 << 20,
          R_WQ: 4 << 20, R_WUK: 4 << 20, R_WUV: 4 << 20, R_WOB: 4 << 20, R_DBG: 256, R_WS: WS_BYTES}
    for r in (R_C, R_WUK, R_WUV, R_WS): a(f"s_mov_b32 s{r+2}, {SZ[r]}\ns_mov_b32 s{r+3}, 0x20000")
    a(f"""s_and_b32 s{sT0}, s2, 7
    s_lshr_b32 s{sT1}, s2, 3
    s_add_u32 s{sT1}, s{sT1}, {CFG.get("hshift", 0)}
    s_and_b32 s{sT2}, s{sT1}, 3
    s_lshl_b32 s{sHEAD}, s{sT0}, 2
    s_add_u32 s{sHEAD}, s{sHEAD}, s{sT2}
    {HCODE}
    s_lshr_b32 s{sTB}, s2, 5
    s_lshr_b32 s{sTBA}, s{sT0}, 1
    s_lshl_b32 s{sTBA}, s{sTBA}, 2
    s_add_u32 s{sTBA}, s{sTBA}, s{sT2}
    s_and_b32 s{sHP}, s{sT0}, 1
    s_lshl_b32 s{sHP}, s{sHP}, 3
    s_add_u32 s{sHP}, s{sHP}, s{sTB}
    s_and_b32 s{sW3}, s{sW}, 3
    s_lshl_b32 s{sDM}, s{sW}, 11
    s_lshl_b32 s{sDMW}, s{sW}, 10""")
    t0, t1, t2, t3, t4 = vT[0], vT[1], vT[2], vT[3], vT[4]
    def emit_f(x, out, tmp):
        a(f"v_lshrrev_b32 v{tmp}, 1, v{x}\nv_xor_b32 v{out}, v{x}, v{tmp}\nv_and_b32 v{out}, 1, v{out}\nv_lshl_or_b32 v{out}, v{out}, 1, v{tmp}")
    a(f"""v_lshrrev_b32 v{t0}, 4, v0
    v_and_b32 v{vDTOK}, 7, v0
    v_xor_b32 v{vDTOK}, v{vDTOK}, v{t0}
    v_lshlrev_b32 v{vDTOK}, 4, v{vDTOK}
    v_lshrrev_b32 v{vDTK2}, 3, v0
    v_lshl_or_b32 v{vDTOK}, v{vDTK2}, 10, v{vDTOK}
    v_xor_b32 v{vDTK2}, 64, v{vDTOK}""")
    a(f"s_and_b32 s{sT0}, s{sW}, 2\ns_lshl_b32 s{sT0}, s{sT0}, 1\ns_lshl_b32 s{sT1}, s{sW3}, 2\nv_and_b32 v{t2}, 15, v0")
    a(f"v_or_b32 v{t1}, s{sT0}, v{t0}\nv_lshlrev_b32 v{t1}, 1, v{t1}\nv_xor_b32 v{t1}, v{t1}, v{t2}")
    a(f"v_add_u32 v{t4}, s{sT1}, v{t0}")
    a(f"v_lshlrev_b32 v{vDW}, 13, v{t4}\nv_lshl_or_b32 v{vDW}, v{t1}, 4, v{vDW}")
    a(f"""s_lshl_b32 s{sO0}, s{sTB}, 8
    s_lshl_b32 s{sT0}, s{sW}, 4
    s_add_u32 s{sO0}, s{sO0}, s{sT0}
    s_lshl_b32 s{sO0}, s{sO0}, 10
    s_lshr_b32 s{sT0}, s{sW}, 2
    s_lshl_b32 s{sT0}, s{sT0}, 17
    s_lshl_b32 s{sO2}, s{sHC}, 8
    s_add_u32 s{sO2}, s{sO2}, s{sT0}""")

    NP1, NA1, NP2 = 16, 8, 16
    HB = 4 * CFG["lvlA"] - 5
    CL0, CLN = HB + 3, 4
    ACK = 12
    HK_ALL = 1 << ACK
    HK_W0 = sum(1 << x for x in (HB, HB + 2, ACK - 2, ACK + 1))
    assert WOF % 0x80000 == 0
    G_A1 = NP1; G_P2 = G_A1 + NA1; G_END = G_P2 + NP2
    WB = 65536
    def tko(t): return (t % 4) * 16384
    def rot_base(ph):
        mode = CFG["rotm"][ph]
        if mode == 0: return f"s_mov_b32 s{sRT}, 0"
        if mode == 2: return f"s_and_b32 s{sRT}, s2, 7" + (f"\ns_lshl_b32 s{sRT}, s{sRT}, 1" if ph != 1 else "")
        if ph == 1: return f"s_lshl_b32 s{sRT}, s{sTBA}, 1\ns_add_u32 s{sRT}, s{sRT}, s{sHP}"
        return f"s_lshl_b32 s{sRT}, s{sHEAD}, 1\ns_add_u32 s{sRT}, s{sRT}, s{sTB}\ns_lshl_b32 s{sRT}, s{sRT}, 1"
    def rk(dst, idx, mask, mul, base):
        return f"s_add_u32 s{dst}, s{sRT}, {idx}\ns_and_b32 s{dst}, s{dst}, {mask}\ns_mul_i32 s{dst}, s{dst}, {mul}\ns_add_u32 s{dst}, s{dst}, s{base}\n"
    TP1 = (0, 32768, SCR)
    TP = (0, 32768, 98304)
    def loader(t):
        return 2 if t < CFG['n_init'] else 0 if t < G_P2 + 2 else 1
    def loads(role, t): return t < G_END and loader(t) in (role, 2)
    rb_done = [set(), set()]
    def dma_stage(role, t):
        if not loads(role, t): return []
        hvs = [role] if loader(t) == 2 else [0, 1]
        ph = 0 if t < G_A1 else 1 if t < G_P2 else 2
        b = tko(t); out = []
        vd = (vDTOK, vDTK2)
        st = CFG["rotm"][ph] == 0
        def bs(reg, base, idx, mul): return (base, idx * mul) if st else (reg, 0)
        if ph == 0:
            pre = rk(sCT, t, 15, 64, sO0) + rk(sCW, t, 15, 32 * 8192, sO2)
            (bt, ct), (bw, cw) = bs(sCT, sO0, t, 64), bs(sCW, sO2, t, 32 * 8192)
            assert st
            p_, hf = t // 2, t % 2
            if loader(t) == 2: out += [dma_unit(sDM, TP1[(p_ - 5) % 3] + hf * 16384 + d * 1024, vd[d], R_C, sO0, p_ * 128 + hf * 131072 + d * 8192) for d in range(2)]
            else: out += [dma_unit(sLD, TP1[(p_ - 5) % 3] + hf * 16384 + d * 1024, vd[d & 1], R_C, sO0, p_ * 128 + hf * 131072 + d * 8192) for d in range(4)]
            for hv in hvs:
                out += [dma_unit(sDMW, WB + b + m * 8192 + hv * 4096, vDW, (R_WUK, R_WUV)[m], bw, cw + 16 * hv * 8192) for m in range(2)]
        elif ph == 1:
            pre = rk(sCT, t - G_A1, 7, 128, sA0) + rk(sCW, t - G_A1, 7, 64 * 3072, sA2)
            (bt, ct), (bw, cw) = bs(sCT, sA0, t - G_A1, 128), bs(sCW, sA2, t - G_A1, 64 * 3072)
            for hv in hvs:
                out += [dma_unit(sDM, b + hv * 8192 + d * 1024, vd[d], R_XA, bt, ct + hv * 65536 + d * 8192) for d in range(2)]
                out += [dma_unit(sDMW, WB + b + m * 8192 + hv * 4096, vDWA, R_WQKV, bw, cw + (16 * hv + 32 * m) * 3072) for m in range(2)]
        else:
            s_ = t - G_P2; p_, hv = s_ // 2, s_ % 2
            pre = rk(sCT, 2 * p_, 14, 64, (sBL, sBS)[hv]) + rk(sCW, s_, 15, 32 * 8192, sB2)
            (bt, ct), (bw, cw) = bs(sCT, (sBL, sBS)[hv], 2 * p_, 64), bs(sCW, sB2, s_, 32 * 8192)
            out += [dma_unit(sLD, TP[p_ % 3] + hv * 16384 + d * 1024, vd[d & 1], R_XB, bt, ct + d * 8192) for d in range(4)]
            out += [dma_unit(sDMW, WB + (s_ % 4) * 8192 + h * 4096, vDW, R_WQ, bw, cw + 16 * h * 8192) for h in range(2)]
        if st: pre = ""
        VMS[role].add(("dma", t), len(out))
        if ph not in rb_done[role]:
            rb_done[role].add(ph); pre = rot_base(ph) + "\n" + pre
        out[0] = pre + out[0]
        return out
    landed = [-1, -1]
    def sync(role, t, cover=None):
        vm = VMS[role]
        tr = CFG.get("trace") and t > G_A1
        if tr: a(f"s_memtime s[92:93]\ns_waitcnt lgkmcnt(0)\nv_writelane_b32 v19, s92, {32 + t - G_A1}\nv_writelane_b32 v19, s100, {t - G_A1 - 1}")
        need = [t] + ([t + 1] if ((t >= G_P2 or t < G_A1) and t % 2 == 0) else [])
        if t == G_P2: need = []
        n = min([vm.n_after(("dma", x)) for x in need if loads(role, x) and x > landed[role]] + [63])
        if cover is not None: n = min(n, len(vm.ops) - cover)
        a(f"s_waitcnt vmcnt({n}) lgkmcnt(0)" if n < 63 else "s_waitcnt lgkmcnt(0)")
        a("s_barrier")
        if tr: a("s_memtime s[100:101]")

    a("s_waitcnt lgkmcnt(0)")
    stamp(a, 0, VMS)
    for t in range(CFG['n_init']):
        for f in dma_stage(0, t): a(f)
        dma_stage(1, t)
    a(f"s_lshl_b32 s{sDM}, s{sW3}, 11\ns_lshl_b32 s{sDMW}, s{sW3}, 10\ns_lshl_b32 s{sT0}, s{sW}, 14\ns_add_u32 s{sO0}, s{sO0}, s{sT0}")
    for r, off in ((R_XA, 0), (R_WQKV, 8), (R_PHI, 16), (R_WOA, 24), (R_XB, 32), (R_WQ, 48), (R_DBG, 88)):
        a(f"s_load_dwordx2 s[{r}:{r+1}], s[0:1], {off}\ns_mov_b32 s{r+2}, {SZ[r]}\ns_mov_b32 s{r+3}, 0x20000")
    a(f"v_lshlrev_b32 v{vP0}, 7, v0")
    a(f"v_mul_u32_u24 v{vDWA}, 3072, v{t4}\nv_lshrrev_b32 v{t3}, 2, v{t1}\nv_lshl_add_u32 v{vDWA}, v{t3}, 10, v{vDWA}")
    a(f"v_and_b32 v{t4}, 3, v{t1}\nv_lshl_add_u32 v{vDWA}, v{t4}, 4, v{vDWA}")
    a(f"v_cmp_eq_u32 vcc, 3, v{t3}\nv_mov_b32 v{t4}, {OOB}\ns_nop 0\nv_cndmask_b32 v{vDWA}, v{vDWA}, v{t4}, vcc")
    a(f"v_bfe_u32 v{t3}, v0, 2, 2")
    a(f"v_bfe_u32 v{vTKB}, v0, 1, 3\nv_xor_b32 v{vTKB}, v{vTKB}, v{t0}\nv_lshlrev_b32 v{vTKB}, 4, v{vTKB}\nv_and_b32 v{t2}, 15, v0\nv_lshl_or_b32 v{vTKB}, v{t2}, 7, v{vTKB}")
    a(f"""s_lshl_b32 s{sA0}, s{sTBA}, 7
    s_lshl_b32 s{sT0}, s{sW3}, 4
    s_add_u32 s{sA0}, s{sA0}, s{sT0}
    s_lshl_b32 s{sA0}, s{sA0}, 10
    s_lshl_b32 s{sA2}, s{sHP}, 6
    s_add_u32 s{sTA}, s{sTB}, {CFG["tshift"]}
    s_and_b32 s{sTA}, s{sTA}, 7
    s_lshl_b32 s{sT0}, s{sTA}, 2
    s_add_u32 s{sBS}, s{sT0}, s{sW3}
    s_sub_u32 s{sBL}, 63, s{sBS}
    s_cmp_lt_u32 s{sW}, 4
    s_cselect_b32 s{sG}, s{sBL}, s{sBS}
    s_lshl_b32 s{sBL}, s{sBL}, 15
    s_lshl_b32 s{sBS}, s{sBS}, 15
    s_lshl_b32 s{sB2}, s{sHC}, 8""")
    a(f"""v_lshl_add_u32 v{t2}, v{t0}, 3, v{t3}
    v_lshlrev_b32 v{vWB}, 8, v{t2}
    v_and_b32 v{t2}, 1, v{t0}
    v_lshl_or_b32 v{t2}, v{t2}, 2, v{t3}
    v_lshl_or_b32 v{vWB}, v{t2}, 5, v{vWB}
    v_and_b32 v{t2}, 3, v0
    v_lshl_or_b32 v{vWB}, v{t2}, 3, v{vWB}
    v_or_b32 v{vWB}, {WB}, v{vWB}
    s_lshr_b32 s{sT0}, s{sW}, 2
    s_lshl_b32 s{sT0}, s{sT0}, 13
    s_and_b32 s{sT1}, s{sW}, 2
    s_lshl_b32 s{sT1}, s{sT1}, 6
    s_or_b32 s{sT0}, s{sT0}, s{sT1}
    v_xor_b32 v{vW[0]}, s{sT0}, v{vWB}""")
    for b in range(1, 4): a(f"v_xor_b32 v{vW[b]}, {b*32}, v{vW[0]}")
    a(f"s_and_b32 s{sT0}, s{sW}, 1\ns_lshl_b32 s{sT0}, s{sT0}, 14\nv_add_u32 v{vTOK}, s{sT0}, v{vTKB}\nv_xor_b32 v6, 64, v{vTOK}\nv_add_u32 v7, {SCR}, v{vTOK}\nv_xor_b32 v9, 64, v7")
    a(f"""s_lshl_b32 s{sT0}, s{sHEAD}, 6
    s_lshl_b32 s{sT1}, s{sTB}, 3
    s_add_u32 s{sT0}, s{sT0}, s{sT1}
    s_and_b32 s{sT1}, s{sW}, 1
    s_lshl_b32 s{sT1}, s{sT1}, 2
    s_add_u32 s{sT0}, s{sT0}, s{sT1}
    s_lshl_b32 s{sST}, s{sT0}, 13
    s_and_b32 s{sT1}, s{sW}, 2
    s_lshl_b32 s{sT1}, s{sT1}, 11
    s_add_u32 s{sST}, s{sST}, s{sT1}""")
    vL16, vKV = vT[0], 2
    a(f"""s_lshl_b32 s{sKO}, s{sHEAD}, 19
    s_lshl_b32 s{sLD}, s{sW3}, 12
    s_add_u32 s{sKO}, s{sKO}, s{sLD}
    s_add_u32 s{sVO}, s{sKO}, {VF - 2*8192}
    s_add_u32 s{sKO}, s{sKO}, {KF}
    s_mov_b32 s{sDST}, 0
    s_lshl_b32 s{sT1}, s{sTA}, 1
    s_sub_u32 s{sTMAX}, 32, s{sT1}
    s_add_u32 s{sDSL}, s{sLD}, {4*SLOT}
    s_mov_b32 s{sTHR}, {f32(2.0 ** (CFG['thr'] - CFG['bias']))}""")
    vCV = vW[4:7]
    a(f"""v_and_b32 v{t4}, 3, v0
    v_lshrrev_b32 v{vCV[2]}, 2, v0
    v_lshlrev_b32 v{vCV[2]}, 6, v{vCV[2]}
    v_lshl_or_b32 v{vCV[2]}, v{t4}, 4, v{vCV[2]}
    s_and_b32 s{sT0}, s{sW}, 1
    s_lshl_b32 s{sT0}, s{sT0}, 3
    s_add_u32 s{sT0}, s{sT0}, {SCR + 16384}
    v_add_u32 v{vCV[2]}, s{sT0}, v{vCV[2]}
    v_lshlrev_b32 v{vL16}, 4, v0""")
    a(f"s_cmp_ge_u32 s{sW}, 4\ns_cbranch_scc1 stream_s")

    ACC = 128
    SETS = (32, 80)
    def p1_reads(t):
        s = SETS[t % 2]; o = tko(t); r = []
        for b in range(4):
            r.append(f"ds_read_b64_tr_b16 {vr(s+4*b,2)}, v{vW[b]} offset:{o}")
            r.append(f"ds_read_b64_tr_b16 {vr(s+4*b+2,2)}, v{vW[b]} offset:{o+1024}")
        sl = (t // 2 - 5) % 3
        for T in range(8):
            r.append(f"ds_read_b128 {vr(s+16+4*T,4)}, v{((vTOK, 6), (7, 9))[sl == 2][t & 1]} offset:{(sl & 1) * 32768 + T * 2048}")
        return r
    def p1_acc(role, n, T):
        if role == 0: s = (T // 2) * 4 + (T & 1) + 2 * (n // 2); return ACC + 8 * s + 4 * (n & 1)
        else: s = (T // 2) * 4 + n; return ACC + 8 * s + 4 * (T & 1)
    def p1_mfmas(role, t, first=False):
        s = SETS[t % 2]; out = []
        for T in range(8):
            for n in range(4):
                w, k = s + 4 * n, s + 16 + 4 * T
                d = p1_acc(role, n, T)
                out.append(mfma16(d, w, k, "0" if first else None) if role == 0 else mfma16(d, k, w, "0" if first else None))
        return out
    def a1_reads(t):
        s = SETS[t % 2]; o = tko(t); r = []
        for u in range(2):
            b = s + 20 * u
            for T in range(2):
                r.append(f"ds_read_b128 {vr(b+12+4*T,4)}, v{(vTOK, vW[3])[u]} offset:{o+T*2048}")
            for m in range(3):
                r.append(f"ds_read_b64_tr_b16 {vr(b+4*m,2)}, v{vW[m]} offset:{o+u*8192}")
                r.append(f"ds_read_b64_tr_b16 {vr(b+4*m+2,2)}, v{vW[m]} offset:{o+u*8192+1024}")
        return r
    AQ, AK, AV = 128, 136, 144
    vPH = 152
    CA = 160
    SEL, ONES = 176, 184
    def a1_mfmas(t, first):
        s = SETS[t % 2]; out = []
        for u in range(2):
            b = s + 20 * u
            c = "0" if (first and u == 0) else None
            for T in range(2):
                x = b + 12 + 4 * T
                out += [mfma16(AQ + 4 * T, b, x, c), mfma16(AK + 4 * T, b + 4, x, c), mfma16(AV + 4 * T, x, b + 8, c)]
        return out
    def p2_reads(t):
        s = SETS[t % 2]; s_ = t - G_P2; o = (s_ % 4) * 8192; r = []
        r.append(f"v_xor_b32 v{vTKB}, {TP[(s_ // 2) % 3] | ((s_ & 1) * 64)}, v{vTOK}\nds_read_b128 {vr(s+32,4)}, v{vTKB}")
        r.append(f"ds_read_b128 {vr(s+36,4)}, v{vTKB} offset:2048")
        for n in range(8):
            r.append(f"ds_read_b64_tr_b16 {vr(s+4*n,2)}, v{vW[n]} offset:{o}")
            r.append(f"ds_read_b64_tr_b16 {vr(s+4*n+2,2)}, v{vW[n]} offset:{o+1024}")
        return r
    def p2_acc(n, T): return 128 + 16 * (n // 2) + 8 * T + 4 * (n & 1)
    def p2_mfmas(t, first):
        s = SETS[t % 2]
        return [mfma16(p2_acc(n, T), s + 4 * n, s + 32 + 4 * T, "0" if first else None) for n in range(8) for T in range(2)]
    SRDN = dict(c=(R_C, 11), wuk=(R_WUK, 12), wuv=(R_WUV, 12), xa=(R_XA, 11), wa=(R_WQKV, 11), xb=(R_XB, 11), wq=(R_WQ, 12), wob=(R_WOB, 12))
    def lin_pf(names):
        if CFG.get("pfeven"):
            x = f"s_lshr_b32 s{sT0}, s2, 1\ns_lshl_b32 s{sT0}, s{sT0}, 2\ns_add_u32 s{sT0}, s{sT0}, s{sW3}\ns_lshl_b32 s{sT1}, s{sT0}, 13\ns_lshl_b32 s{sT0}, s{sT0}, 12\n"
            x += f"s_bitcmp1_b32 s2, 0\ns_cselect_b32 s{sT0}, {OOB}, s{sT0}\ns_cselect_b32 s{sT1}, {OOB}, s{sT1}\n"
            for n in names:
                srd, sh = SRDN[n]
                x += f"s_mov_b32 exec_hi, {'0' if sh == 11 else '-1'}\nbuffer_load_dword v{vPD}, v{vP0}, {srd_s(srd)}, s{sT0 if sh == 11 else sT1} offen\n"
            return x + "s_mov_b64 exec, -1"
        x = f"s_lshl_b32 s{sT0}, s2, 2\ns_add_u32 s{sT0}, s{sT0}, s{sW3}\ns_lshl_b32 s{sT1}, s{sT0}, 12\ns_lshl_b32 s{sT0}, s{sT0}, 11\ns_mov_b32 exec_hi, 0\n"
        for n in names:
            srd, sh = SRDN[n]
            x += f"s_mov_b32 exec_lo, {'0xffff' if sh == 11 else '-1'}\nbuffer_load_dword v{vPD}, v{vP0}, {srd_s(srd)}, s{sT0 if sh == 11 else sT1} offen\n"
        return x + "s_mov_b64 exec, -1"
    def code_pf(dst, tmp):
        l = a.lab("cpf"); h = a.lab("here")
        return f"""s_cmp_lg_u32 s{sW}, 4
        s_cbranch_scc1 {l}
        s_getpc_b64 s[{sEX}:{sEX+1}]
        {h}:
        s_sub_u32 s{sEX}, s{sEX}, {h}-{K}
        s_subb_u32 s{sEX+1}, s{sEX+1}, 0
        s_lshr_b32 s{sT0}, s2, 3
        s_mul_i32 s{sT0}, s{sT0}, {24*128}
        v_lshlrev_b32 v{tmp}, 7, v0
        v_add_u32 v{tmp}, s{sT0}, v{tmp}
        v_min_u32 v{tmp}, code_end-{K}-4, v{tmp}
        s_mov_b64 exec, 0xffffff
        global_load_dword v{dst}, v{tmp}, s[{sEX}:{sEX+1}]
        s_mov_b64 exec, -1
        {l}:"""
    def q1_local(srds, nt, full=False):
        sh = 3 if full else 1
        x = f"""s_lshr_b32 s{sT0}, s2, 3
        s_lshl_b32 s{sT0}, s{sT0}, 2
        s_add_u32 s{sT0}, s{sT0}, s{sW3}
        s_lshl_b32 s{sT0}, s{sT0}, 15
        s_and_b32 s{sT1}, s2, 7
        s_lshl_b32 s{sT1}, s{sT1}, 10
        s_add_u32 s{sT0}, s{sT0}, s{sT1}
        s_add_u32 s{sT0}, s{sT0}, {0 if full else 256}
        v_lshrrev_b32 v{t3}, {sh}, v0
        v_lshlrev_b32 v{t3}, 13, v{t3}
        v_and_b32 v{t4}, {(1 << sh) - 1}, v0
        v_lshl_or_b32 v{t3}, v{t4}, 7, v{t3}
        s_mov_b32 exec_hi, 0
        s_mov_b32 exec_lo, {'-1' if full else '0xff'}
        """
        for r in srds: x += f"buffer_load_dword v{vPD}, v{t3}, {srd_s(r)}, s{sT0} offen{' nt' if nt else ''}\n"
        VMS[1].add("pf", len(srds))
        return x + "s_mov_b64 exec, -1"
    def pf_at(role, t):
        if role != 1: return []
        out = []
        if CFG.get("w1") == t:
            x = f"""s_lshr_b32 s{sT0}, s2, 3
            s_lshl_b32 s{sT0}, s{sT0}, 2
            s_add_u32 s{sT0}, s{sT0}, s{sW3}
            s_lshl_b32 s{sT0}, s{sT0}, 15
            s_and_b32 s{sT1}, s2, 7
            s_lshl_b32 s{sT1}, s{sT1}, 8
            s_add_u32 s{sT0}, s{sT0}, s{sT1}
            s_and_b32 s{sT1}, s2, {CFG.get('w1mask', 3)}
            s_cmp_eq_u32 s{sT1}, 1
            s_cselect_b32 s{sT0}, s{sT0}, {OOB}
            v_lshrrev_b32 v{t3}, 1, v0
            v_lshlrev_b32 v{t3}, 11, v{t3}
            v_and_b32 v{t4}, 1, v0
            v_lshl_or_b32 v{t3}, v{t4}, 7, v{t3}
            s_mov_b32 exec_hi, 0
            buffer_load_dword v{vPD}, v{t3}, {srd_s(R_WUK)}, s{sT0} offen nt
            buffer_load_dword v{vPD}, v{t3}, {srd_s(R_WUV)}, s{sT0} offen nt
            s_mov_b64 exec, -1"""
            VMS[1].add("pf", 2); out.append(x)
        if CFG.get("q1q") == t: out.append(q1_local([R_WQ], CFG.get("qqnt", False), CFG.get("qqfull", False)))
        if CFG.get("q1l") == t: out.append(q1_local([R_WUK, R_WUV], CFG.get("q1nt", True), CFG.get("q1full", False)))
        if t in CFG["cpf"]:
            out.append(code_pf(vPD, t4)); marks[1]["pf"] = len(VMS[1].ops)
        if t in CFG["lin"]:
            VMS[1].add("pf", len(CFG["lin"][t])); out.append(lin_pf(CFG["lin"][t]))
        if CFG["stag"] and t in CFG["stag"][1]:
            tbs = [i for i, x in enumerate(CFG["stag"][1]) if x == t]
            l = a.lab("stg")
            cond = f"s_cmp_lg_u32 s{sTB}, {tbs[0]}\n" if len(tbs) == 1 else f"s_lshr_b32 s{sT0}, s{sTB}, 1\ns_cmp_lg_u32 s{sT0}, {tbs[0] // 2}\n"
            out.append(cond + f"s_cbranch_scc1 {l}\n" + lin_pf(CFG["stag"][0]) + f"\n{l}:")
            VMS[1].add("pf", 0); marks[1]["pf"] = len(VMS[1].ops)
        return out
    def conv_dma():
        vCB, vCA = t1, t2
        pre = f"""v_lshrrev_b32 v{vCB}, 4, v0
        s_lshl_b32 s{sT1}, s{sW3}, 2
        v_add_u32 v{vCB}, s{sT1}, v{vCB}
        v_and_b32 v{vCA}, 7, v{vCB}
        v_lshlrev_b32 v{vCA}, 1, v{vCA}
        v_and_b32 v{vWOD}, 15, v0
        v_xor_b32 v{vWOD}, v{vWOD}, v{vCA}
        v_lshlrev_b32 v{vWOD}, 4, v{vWOD}
        v_lshl_or_b32 v{vWOD}, v{vCB}, 10, v{vWOD}
        v_lshrrev_b32 v{vCA}, 2, v0
        v_lshlrev_b32 v{vCA}, 10, v{vCA}
        v_and_b32 v{t4}, 3, v0
        v_lshl_or_b32 v{vCA}, v{t4}, 4, v{vCA}
        s_lshr_b32 s{sT2}, s2, 4
        s_lshl_b32 s{sT2}, s{sT2}, 1
        s_add_u32 s{sT2}, s{sT2}, s{sW3}
        s_lshl_b32 s{sT2}, s{sT2}, 14
        s_and_b32 s{sT3}, s2, 15
        s_lshl_b32 s{sT3}, s{sT3}, 6
        s_add_u32 s{sT2}, s{sT2}, s{sT3}
        s_cmp_lt_u32 s{sW3}, 2
        s_cselect_b32 s{sT2}, s{sT2}, {OOB}"""
        u = [dma_unit(sDM, SCR + 16384, vCA, R_WOA, sT2, 0)]
        VMS[1].add("cv", 1)
        return [pre] + u
    def flag_voff(v):
        return f"""s_and_b32 s{sT2}, s{sHEAD}, 3
        s_lshl_b32 s{sT2}, s{sT2}, 3
        s_add_u32 s{sT2}, s{sT2}, s{sTB}
        s_sub_u32 s{sT2}, s{sT2}, 1024
        v_lshlrev_b32 v{v}, 5, v0
        v_add_u32 v{v}, s{sT2}, v{v}
        s_lshr_b32 s{sT2}, s{sHEAD}, 2
        s_lshl_b32 s{sT2}, s{sT2}, 5
        s_mov_b32 exec_hi, 0
        v_add_u32 v{v}, s{sT2}, v0
        s_mov_b32 exec_hi, 0xff
        v_lshlrev_b32 v{v}, 7, v{v}
        s_mov_b32 s{sT2}, {FLG}"""
    def flag_load(dst, v, own=False):
        m = f"\ns_and_b32 s{sT3}, s{sHEAD}, 3\ns_lshl_b32 s{sT3}, s{sT3}, 3\ns_lshl_b32 exec_lo, 0xff, s{sT3}\ns_mov_b32 exec_hi, 0" if own else ""
        return flag_voff(v) + m + f"\nbuffer_load_dword v{dst}, v{v}, {srd_s(R_WS)}, s{sT2} offen sc1\ns_mov_b64 exec, -1"
    def publish(level, x, v):
        return f"""{flag_voff(v)}
        v_add_u32 v{x}, {level}, v{vSNAP}
        s_and_b32 s{sT3}, s{sHEAD}, 3
        s_lshl_b32 s{sT3}, s{sT3}, 3
        s_add_u32 s{sT3}, s{sT3}, s{sTB}
        s_lshl_b32 exec_lo, 1, s{sT3}
        s_mov_b32 exec_hi, 0
        buffer_store_dword v{x}, v{v}, {srd_s(R_WS)}, s{sT2} offen sc1
        s_mov_b64 exec, -1"""
    def poll_code(l, r, need_lo, need_hi, level, first_wait, new, v, spin, inv=True):
        lp, ok, tst = a.lab("poll"), a.lab("pollok"), a.lab("polltst")
        return f"""{l}:
        s_mov_b32 s{sCNT}, 0
        s_waitcnt vmcnt({first_wait})
        s_branch {tst}
        {lp}:
        s_sleep 2
        {flag_load(new, v)}
        s_waitcnt vmcnt(0)
        {tst}:
        v_sub_u32 v{new}, v{new}, v{vSNAP}
        {need_lo}
        v_cmp_gt_u32 vcc, {level}, v{new}
        s_add_u32 s{sCNT}, s{sCNT}, 1
        s_and_b32 s{sT1}, vcc_lo, s{sT3}
        s_and_b32 s{sT2}, vcc_hi, {need_hi}
        s_or_b32 s{sT1}, s{sT1}, s{sT2}
        s_cbranch_scc0 {ok}
        s_cmp_lt_u32 s{sCNT}, {spin}
        s_cbranch_scc1 {lp}
        {ok}:
        
        s_branch {r}"""
    ool = []
    def st_ins(k, r=0):
        sc = "".join(f"v_add_u32 v{192+4*k+i}, {hex((CFG['vsh'] << 7) * 0x10001)}, v{192+4*k+i}\n" for i in range(4)) if (r == 1 and CFG["vsh"]) else ""
        return sc + f"s_add_u32 s{sTD2}, s{sST}, {(k // 4) * 8192}\nbuffer_store_dwordx4 {vr(192+4*k,4)}, v{vL16}, {srd_s(R_WS)}, s{sTD2} offen offset:{(k&3)*1024} {CFG['st_flags']}"
    def st_slot1(r, n):
        kf = [k for k, x in enumerate(CFG["fast"][r]) if x == n]; ks = [k for k, x in enumerate(CFG["slow"][r]) if x == n]
        if not kf and not ks: return None
        VMS[r].add("kvst", min(len(kf), len(ks)))
        if kf: marks[r]["fast"] = len(VMS[r].ops)
        if ks: marks[r]["slow"] = len(VMS[r].ops)
        marks[r]["nslow"] = max(ks) + 1 if ks else marks[r].get("nslow", 0)
        f = "\n".join(st_ins(k, r) for k in kf); s = "\n".join(st_ins(k, r) for k in ks)
        w = ""
        if r == 0 and n == min(CFG["fast"][0] + CFG["slow"][0]):
            assert n >= 8
            w = "s_waitcnt vmcnt(0)\n"; landed[0] = G_P2 + 1
        if kf == ks: return w + f
        l1, l2 = a.lab("ss"), a.lab("se")
        c = w + f"s_cmp_lt_u32 s{sTB}, {CFG['lvlA']}\n"
        if not ks: return c + f"s_cbranch_scc0 {l2}\n{f}\n{l2}:"
        if not kf: return c + f"s_cbranch_scc1 {l2}\n{s}\n{l2}:"
        return c + f"s_cbranch_scc1 {l1}\n{s}\ns_branch {l2}\n{l1}:\n{f}\n{l2}:"
    def st_slot(roles, n):
        x = [st_slot1(r, n) for r in roles]
        if len(roles) == 1: return [x[0]] if x[0] else []
        l1, l2 = a.lab("rs"), a.lab("re")
        return [f"s_cmp_ge_u32 s{sW}, 4\ns_cbranch_scc1 {l1}\n{x[0] or ''}\ns_branch {l2}\n{l1}:\n{x[1] or ''}\n{l2}:"]

    def part1(role):
        vm = VMS[role]
        a(f"s_add_u32 s{sST}, s{sST}, {(KF, VF)[role]}")
        if role == 0:
            a(flag_voff(t3) + f"\ns_cmp_eq_u32 s{sW}, 0\ns_cselect_b32 s{sT2}, s{sT2}, {OOB}\nbuffer_load_dword v{vSNAP}, v{t3}, {srd_s(R_WS)}, s{sT2} offen sc1\ns_mov_b64 exec, -1"); vm.add("snap")
        if role == 1 and -1 in CFG["cpf"]: a(code_pf(vPD, t4))
        if role == 1 and CFG.get("q1pf") is not None:
            a(f"""s_lshl_b32 s{sT0}, s2, 2
            s_add_u32 s{sT0}, s{sT0}, s{sW3}
            s_lshl_b32 s{sT0}, s{sT0}, 12
            s_add_u32 s{sT0}, s{sT0}, {CFG['q1pf'] * 256}
            v_lshrrev_b32 v{t3}, 1, v0
            v_lshlrev_b32 v{t3}, 10, v{t3}
            v_and_b32 v{t4}, 1, v0
            v_lshl_or_b32 v{t3}, v{t4}, 7, v{t3}
            s_mov_b64 exec, 0xff
            buffer_load_dword v{vPD}, v{t3}, {srd_s(R_WUK)}, s{sT0} offen""")
            if not CFG.get("q1half"): a(f"buffer_load_dword v{vPD}, v{t3}, {srd_s(R_WUV)}, s{sT0} offen")
            a("s_mov_b64 exec, -1")
            vm.add("pf", 1 if CFG.get("q1half") else 2)
        if role == 1 and CFG.get("q1l") == -1: a(q1_local([R_WUK, R_WUV], CFG.get("q1nt", True), CFG.get("q1full", False)))
        if role == 1 and CFG["lin0"]:
            a(lin_pf(CFG["lin0"])); vm.add("pf", len(CFG["lin0"]))
        sync(role, 0)
        stamp(a, 13, [vm])
        for f in p1_reads(0): a(f)
        for t in range(CFG['n_init'], 4):
            for f in dma_stage(role, t): a(f)
        CVR = 26
        cv_t = 15
        def cv_read(k):
            if k == 4: return f"ds_read_b64_tr_b16 {vr(CVR,2)}, v{vCV[2]}\nds_read_b64_tr_b16 {vr(CVR+2,2)}, v{vCV[2]} offset:2048"
            o = (k >> 1) * 8192 + (k & 1) * 8
            return f"ds_read_b64_tr_b16 {vr(CVR,2)}, v{vCV[0]} offset:{o}\nds_read_b64_tr_b16 {vr(CVR+2,2)}, v{vCV[0]} offset:{4096+o}"
        def cv_store(k):
            vm.add("cvst")
            if k == 4:
                x = f"""s_and_b32 s{sT2}, s2, 15
                s_lshl_b32 s{sT2}, s{sT2}, 1
                s_add_u32 s{sT2}, s{sT2}, s{sW3}
                s_lshl_b32 s{sT2}, s{sT2}, 4
                s_lshr_b32 s{sT3}, s2, 4
                s_add_u32 s{sT2}, s{sT2}, s{sT3}
                s_lshl_b32 s{sT2}, s{sT2}, 10
                s_add_u32 s{sT2}, s{sT2}, {WOAF}
                s_cmp_lt_u32 s{sW3}, 2
                s_cselect_b32 s{sT2}, s{sT2}, {OOB}"""
            else:
                x = f"""s_lshl_b32 s{sT2}, s{sHEAD}, 17
                s_and_b32 s{sT3}, s{sTB}, 1
                s_lshl_b32 s{sT3}, s{sT3}, 16
                s_add_u32 s{sT2}, s{sT2}, s{sT3}
                s_lshr_b32 s{sT3}, s{sTB}, 1
                s_lshl_b32 s{sT3}, s{sT3}, 13
                s_add_u32 s{sT2}, s{sT2}, s{sT3}
                s_add_u32 s{sT2}, s{sT2}, s{sDM}
                s_add_u32 s{sT2}, s{sT2}, {WOF + (k >> 1) * 32768 + (k & 1) * 1024}"""
            return x + f"\nbuffer_store_dwordx4 {vr(CVR,4)}, v{vL16}, {srd_s(R_WS)}, s{sT2} offen sc1"
        def early_clear():
            vm.add("clr", 4)
            return f"""v_mov_b32 v{CVR}, -1
            v_mov_b32 v{CVR+1}, -1
            v_mov_b32 v{CVR+2}, -1
            v_mov_b32 v{CVR+3}, -1
            s_lshl_b32 s{sT2}, s2, 13
            s_add_u32 s{sT2}, s{sT2}, s{sDM}
            s_add_u32 s{sT2}, s{sT2}, {OAF}
            buffer_store_dwordx4 {vr(CVR,4)}, v{vL16}, {srd_s(R_WS)}, s{sT2} offen sc1
            buffer_store_dwordx4 {vr(CVR,4)}, v{vL16}, {srd_s(R_WS)}, s{sT2} offen offset:1024 sc1
            s_lshl_b32 s{sT2}, s2, 10
            s_add_u32 s{sT2}, s{sT2}, {FW}
            s_cmp_eq_u32 s{sW3}, 0
            s_cselect_b32 s{sT2}, s{sT2}, {OOB}
            buffer_store_dwordx4 {vr(CVR,4)}, v{vL16}, {srd_s(R_WS)}, s{sT2} offen sc1
            s_lshl_b32 s{sT2}, s2, 2
            s_add_u32 s{sT2}, s{sT2}, s{sW3}
            s_lshl_b32 s{sT2}, s{sT2}, 6
            s_add_u32 s{sT2}, s{sT2}, {RED}
            s_mov_b64 exec, 15
            buffer_store_dwordx4 {vr(CVR,4)}, v{vL16}, {srd_s(R_WS)}, s{sT2} offen sc1
            s_mov_b64 exec, -1"""
        for t in range(NP1):
            if role == 1 and t == 2: stamp(a, 14, [vm])
            if role == 1 and t == 12: stamp(a, 15, [vm])
            sync(role, t + 1, marks[1]["cv"] if (role == 1 and t == cv_t + 4) else None)
            d = dma_stage(role, t + 4)
            pre = []; post = []
            if role == 1:
                if t == cv_t: d = d + conv_dma(); marks[1]["cv"] = len(vm.ops)
                if t == CFG.get('clr_t', 14): d = d + [early_clear()]
                k = t - (cv_t + 4)
                if k == 1: pre = [cv_store(4)]
                if k == 0: post = [cv_read(4)]
            if t + 1 < NP1: rd = p1_reads(t + 1)
            else:
                rd = [f"v_add_u32 v{vTOK}, s{sLD}, v{vTKB}\nv_xor_b32 v{vW[3]}, 64, v{vTOK}\nv_xor_b32 v{vW[0]}, {role*32}, v{vWB}\nv_xor_b32 v{vW[1]}, {64 + role*32}, v{vWB}\nv_xor_b32 v{vW[2]}, {128 + role*32}, v{vWB}"] + a1_reads(G_A1)
            mf = p1_mfmas(role, t, first=(t == 0))
            cv = [f"v_cvt_pk_bf16_f32 v{192+m}, v{ACC+2*m}, v{ACC+2*m+1}" for m in range(63, -1, -1)]
            if t + 1 == NP1 and CFG.get("cvtin", True):
                mf.sort(key=lambda x: -int(x.split("v[")[1].split(":")[0]))
                LAG = 8
                for i in range(LAG, 32): mf[i] += "\n" + "\n".join(cv[2 * (i - LAG):2 * (i - LAG) + 2])
                cv = cv[2 * (32 - LAG):]
            sched(a, mf, rd + post, d + pre + pf_at(role, t))
        if not CFG.get("cvtin", True): a("s_nop 7")
        for x in cv: a(x)
        stamp(a, 1, [vm])
        a(f"""s_lshl_b32 s{sT2}, s{sHP}, 10
        v_lshrrev_b32 v{t1}, 4, v0
        v_and_b32 v{t2}, 15, v0
        v_lshlrev_b32 v{t3}, 1, v{t2}
        v_lshl_or_b32 v{t3}, v{t1}, 7, v{t3}
        buffer_load_ushort v{vPH}, v{t3}, {srd_s(R_PHI)}, s{sT2} offen offset:{role*512}
        buffer_load_ushort v{vPH+1}, v{t3}, {srd_s(R_PHI)}, s{sT2} offen offset:{role*512+64}
        buffer_load_ushort v{vPH+2}, v{t3}, {srd_s(R_PHI)}, s{sT2} offen offset:{role*512+32}
        buffer_load_ushort v{vPH+3}, v{t3}, {srd_s(R_PHI)}, s{sT2} offen offset:{role*512+96}""")
        vm.add("phi", 4)
        cst = [f"v_lshlrev_b32 v{t1}, 2, v{t1}\nv_sub_u32 v{t1}, v{t2}, v{t1}\nv_mov_b32 v{t2}, 0x3f80\nv_mov_b32 v{t3}, 0x3f800000"]
        for j in range(2):
            cst.append(f"v_cmp_eq_u32 vcc, {2*j}, v{t1}\nv_mov_b32 v{SEL+2+j}, 0\nv_mov_b32 v{SEL+4+j}, 0\nv_cndmask_b32 v{SEL+j}, 0, v{t2}, vcc")
            cst.append(f"v_cmp_eq_u32 vcc, {2*j+1}, v{t1}\nv_mov_b32 v{ONES+2*j}, 0x3f803f80\nv_mov_b32 v{ONES+2*j+1}, 0x3f803f80\nv_cndmask_b32 v{SEL+j}, v{SEL+j}, v{t3}, vcc")
        cst.append(f"v_mov_b32 v{SEL+6}, v{SEL}\nv_mov_b32 v{SEL+7}, v{SEL+1}")
        for t in range(G_A1, G_P2):
            s = t - G_A1
            sync(role, t + 1, marks[1]["cv"] if (role == 1 and s == 3) else None)
            d = dma_stage(role, t + 4)
            ex = []
            if role == 1 and s == 3: ex.append(cv_read(4))
            if role == 1 and s == 4: ex.append(cv_store(4))
            ex += st_slot([role], s)
            if 1 <= s <= 6: ex.append(cst[s - 1])
            rd = a1_reads(t + 1) if t + 1 < G_P2 else []
            sched(a, a1_mfmas(t, t == G_A1), rd, d + ex + pf_at(role, t))
        stamp(a, 2, [vm])
        a(f"s_waitcnt vmcnt({min(vm.n_after('phi'), vm.n_after('pf') if vm.has('pf') else 63)})")
        assert role == 0 or "pf" not in marks[1] or len(vm.ops) - marks[1]["pf"] >= vm.n_after('phi')
    part1(0)
    a("s_branch a1_epi\nstream_s:")
    part1(1)
    a("a1_epi:")
    vSP = 124
    stn = [8]
    def epi_store():
        for x in st_slot([0, 1], stn[0]): a(x)
        stn[0] += 1
    L2E = f32(math.log2(math.e))
    a(f"s_mov_b32 s{sSCL}, {L2E}")
    a(f"v_lshl_or_b32 v{vPH}, v{vPH+2}, 16, v{vPH}\nv_lshl_or_b32 v{vPH+1}, v{vPH+3}, 16, v{vPH+1}")
    epi_store()
    a("s_nop 2")
    B = 32
    QB, KB_, VB = B, B + 4, B + 8
    for T in range(2):
        for j in range(2):
            a(f"v_cvt_pk_bf16_f32 v{QB+2*T+j}, v{AQ+4*T+2*j}, v{AQ+4*T+2*j+1}")
            a(f"v_cvt_pk_bf16_f32 v{KB_+2*T+j}, v{AK+4*T+2*j}, v{AK+4*T+2*j+1}")
    PP = B + 12
    a("s_nop 1")
    for i in range(4):
        a(f"v_mfma_f32_16x16x16_bf16 {vr(PP+4*i,4)}, {vr(vPH,2)}, {vr(QB+2*i,2)}, 0")
    for T in range(2):
        for j in range(2):
            a(f"v_cvt_pk_bf16_f32 v{VB+2*T+j}, v{AV+4*T+2*j}, v{AV+4*T+2*j+1}")
    a(f"s_lshl_b32 s{sT0}, s{sW}, 12\nv_add_u32 v{vTOK}, s{sT0}, v{vTKB}\nv_mov_b32 v{vW[0]}, v{vWB}")
    for b in range(1, 8): a(f"v_xor_b32 v{vW[b]}, {b*32}, v{vWB}")
    MX = B + 40; EX = B + 56
    for i in range(4):
        p = PP + 4 * i
        a(f"v_max3_f32 v{MX+2*i}, v{p}, v{p+1}, v{p+2}\nv_max3_f32 v{MX+2*i+1}, -v{p}, -v{p+1}, -v{p+2}")
    for i in range(4):
        p = PP + 4 * i
        a(f"v_max_f32 v{MX+2*i}, v{MX+2*i}, v{p+3}\nv_max_f32_e64 v{MX+2*i+1}, v{MX+2*i+1}, -v{p+3}")
    def xreduce(op, mid):
        a("s_nop 1")
        for i in range(4): a(f"v_permlane32_swap_b32 v{MX+2*i}, v{MX+2*i+1}")
        for i in range(4): a(f"{op} v{MX+2*i}, v{MX+2*i}, v{MX+2*i+1}")
        a("s_nop 1")
        for i in range(2): a(f"v_permlane16_swap_b32 v{MX+4*i}, v{MX+4*i+2}")
        a("s_nop 0")
        for i in range(2): a(f"{op} v{MX+4*i}, v{MX+4*i}, v{MX+4*i+2}")
        for i in range(2): a(mid(MX + 4 * i))
        a("s_nop 0")
        for i in range(2): a(f"v_mov_b32 v{MX+4*i+2}, v{MX+4*i}")
        a("s_nop 1")
        for i in range(2): a(f"v_permlane16_swap_b32 v{MX+4*i}, v{MX+4*i+2}")
        a("s_nop 0")
        for i in range(4): a(f"v_mov_b32 v{MX+2*i+1}, v{MX+2*i}")
        a("s_nop 1")
        for i in range(4): a(f"v_permlane32_swap_b32 v{MX+2*i}, v{MX+2*i+1}")
        a("s_nop 0")
    epi_store()
    xreduce("v_max_f32", lambda r: f"v_mul_f32 v{r}, s{sSCL}, v{r}")
    epi_store()
    for i in range(4):
        p = PP + 4 * i
        for r in range(4):
            a(f"v_fma_f32 v{EX+8*i+r}, v{p+r}, s{sSCL}, -v{MX+2*i}\nv_fma_f32 v{EX+8*i+4+r}, -v{p+r}, s{sSCL}, -v{MX+2*i+1}")
    epi_store()
    for r in range(32): a(f"v_exp_f32 v{EX+r}, v{EX+r}")
    epi_store()
    for i in range(8):
        e = EX + 4 * i
        a(f"v_pk_add_f32 {vr(PP+2*i,2)}, {vr(e,2)}, {vr(e+2,2)}")
    for i in range(8): a(f"v_add_f32 v{MX+i}, v{PP+2*i}, v{PP+2*i+1}")
    xreduce("v_add_f32", lambda r: f"v_rcp_f32 v{r}, v{r}")
    epi_store()
    for i in (4, 5, 6, 7):
        for r in range(4): a(f"v_mul_f32 v{EX+4*i+r}, v{EX+4*i+r}, v{MX+i}")
    PHK = B + 12
    for T in range(2):
        for j in range(4):
            a(f"v_cvt_pk_bf16_f32 v{PHK+4*T+j}, v{EX+16+8*T+2*j}, v{EX+16+8*T+2*j+1}")
    a("s_nop 1")
    TR = EX + 16
    for sg in range(2):
        for T in range(2):
            a(mfma16(TR + 8 * sg + 4 * T, PHK + 4 * T, SEL + 4 * sg, "0"))
    for i in (0, 1, 2, 3):
        for r in range(4): a(f"v_mul_f32 v{EX+4*i+r}, v{EX+4*i+r}, v{MX+i}")
    PKT = B + 20
    for sg in range(2):
        for j in range(4):
            a(f"v_cvt_pk_bf16_f32 v{PKT+4*sg+j}, v{TR+8*sg+2*j}, v{TR+8*sg+2*j+1}")
    a("s_nop 1")
    KVZ = 128
    for sg in range(2):
        a(mfma16(KVZ + 4 * sg, PKT + 4 * sg, VB, "0"))
        a(mfma16(KVZ + 8 + 4 * sg, PKT + 4 * sg, ONES, "0"))
    for T in range(2):
        for j in range(4):
            a(f"v_cvt_pk_bf16_f32 v{vPHIQ+4*T+j}, v{EX+8*T+2*j}, v{EX+8*T+2*j+1}")
    a(f"""s_lshl_b32 s{sT0}, s{sTBA}, 2
    s_add_u32 s{sT0}, s{sT0}, s{sW3}
    s_lshl_b32 s{sT0}, s{sT0}, 5
    s_add_u32 s{sT0}, s{sT0}, s{sHP}
    s_lshl_b32 s{sT0}, s{sT0}, 1
    s_lshr_b32 s{sT1}, s{sW}, 2
    s_add_u32 s{sT0}, s{sT0}, s{sT1}
    s_lshl_b32 s{sT0}, s{sT0}, 10
    s_add_u32 s{sT0}, s{sT0}, {PHQ}
    s_add_u32 s{sT1}, s{sT0}, 32768
    buffer_store_dwordx4 {vr(vPHIQ,4)}, v{vL16}, {srd_s(R_WS)}, s{sT0} offen sc1
    buffer_store_dwordx4 {vr(vPHIQ+4,4)}, v{vL16}, {srd_s(R_WS)}, s{sT1} offen sc1""")
    for r in range(2): VMS[r].add("phq", 2)
    epi_store()
    a(f"s_lshl_b32 s{sT0}, s{sW}, 12\ns_add_u32 s{sT0}, s{sT0}, {SCR}\nv_add_u32 v{t1}, s{sT0}, v{vL16}")
    for qd in range(4): a(f"ds_write_b128 v{t1}, {vr(KVZ+4*qd,4)} offset:{qd*1024}")
    a(f"""s_lshr_b32 s{sT0}, s{sW}, 2
    s_lshl_b32 s{sT0}, s{sT0}, 14
    s_lshl_b32 s{sT1}, s{sW3}, 10
    s_add_u32 s{sT0}, s{sT0}, s{sT1}
    s_add_u32 s{sT0}, s{sT0}, {SCR}
    v_add_u32 v{t1}, s{sT0}, v{vL16}
    s_lshl_b32 s{sT0}, s{sHP}, 1
    s_lshr_b32 s{sT2}, s{sW}, 2
    s_add_u32 s{sT0}, s{sT0}, s{sT2}
    s_lshl_b32 s{sT0}, s{sT0}, 4
    s_add_u32 s{sT0}, s{sT0}, s{sTBA}
    s_lshl_b32 s{sT0}, s{sT0}, 12
    s_add_u32 s{sT0}, s{sT0}, s{sT1}
    s_add_u32 s{sT0}, s{sT0}, {KVP}""")
    epi_store()
    assert stn[0] == 16 and landed[0] == G_P2 + 1
    a("s_waitcnt lgkmcnt(0)\ns_barrier")
    for i in range(4): a(f"ds_read_b128 {vr(KVZ+4*i,4)}, v{t1} offset:{i*4096}")
    rd = p2_reads(G_P2)
    for f in rd[:10]: a(f)
    a("s_waitcnt lgkmcnt(10)")
    for f in rd[10:]: a(f)
    for r in (0, 2): a(f"v_pk_add_f32 {vr(KVZ+r,2)}, {vr(KVZ+r,2)}, {vr(KVZ+4+r,2)}\nv_pk_add_f32 {vr(KVZ+8+r,2)}, {vr(KVZ+8+r,2)}, {vr(KVZ+12+r,2)}")
    for r in (0, 2): a(f"v_pk_add_f32 {vr(72+r,2)}, {vr(KVZ+r,2)}, {vr(KVZ+8+r,2)}")
    a(f"buffer_store_dwordx4 {vr(72,4)}, v{vL16}, {srd_s(R_WS)}, s{sT0} offen sc1")
    for r in range(2): VMS[r].add("pst"); marks[r]["pst"] = len(VMS[r].ops)
    stamp(a, 3, VMS)
    assert CFG["hmap"] == 1
    a(f"""s_load_dwordx2 s[{R_WO2}:{R_WO2+1}], s[0:1], 72
    s_lshl_b32 s{sWO}, s{sHC}, 17
    s_and_b32 s{sT0}, s{sHEAD}, 3
    s_lshl_b32 s{sT0}, s{sT0}, 8
    s_add_u32 s{sWO}, s{sWO}, s{sT0}
    s_sub_u32 s{sH2}, s{sTMAX}, 8
    s_min_u32 s{sH2}, s{sH2}, {CFG.get("h2cap", 13)}""")
    a(f"s_cmp_ge_u32 s{sW}, 4\ns_cbranch_scc1 p2_s")

    dsl_adv = f"s_add_u32 s{sDST}, s{sDST}, 1\ns_add_u32 s{sDSL}, s{sDSL}, {SLOT}\ns_cmp_ge_u32 s{sDSL}, {5*SLOT}\ns_cselect_b32 s{sDSL}, s{sLD}, s{sDSL}"
    def att_dma_parts(first=False):
        pre = f"""s_cmp_lt_u32 s{sDST}, s{sTMAX}
        s_cselect_b32 s{sDK}, s{sKO}, {OOB}
        s_mov_b32 s{sDV}, {OOB if first else 's%d' % sVO}
        s_mov_b32 m0, s{sDSL}
        s_add_u32 s{sKO}, s{sKO}, 16384"""
        ld = [f"buffer_load_dwordx4 v{vL16}, {srd_s(R_WS)}, s{sDK} offen offset:{i*1024} sc1 lds" for i in range(4)] + \
             [f"buffer_load_dwordx4 v{vL16}, {srd_s(R_WS)}, s{sDV} offen offset:{i*1024} sc1 lds" for i in range(4)]
        ld[4] = f"s_add_u32 m0, s{sDSL}, 16384\ns_add_u32 s{sVO}, s{sVO}, 16384\n" + ld[4]
        return pre, ld, dsl_adv
    wo_ret = []
    def att_dma():
        r = a.lab("wor"); wo_ret.append(r)
        a(f"s_mov_b32 s{sTD2}, {len(wo_ret)-1}\ns_cmp_gt_u32 s{sDST}, s{sTMAX}\ns_cbranch_scc1 wo_dma")
        pre, ld, post = att_dma_parts()
        a(pre)
        for x in ld: a(x)
        a(f"{r}:")
        a(post)
    PL = 192
    KR_ = 112
    def part2(role):
        vm = VMS[role]
        npl = [0]
        for t in range(G_P2, G_END):
            s = t - G_P2
            cover = None
            if s == CFG["s_pf"]: cover = marks[role]["fast"]
            if s == CFG["s_ps"]: cover = max(marks[role]["slow"], marks[role]["pst"]); assert max(CFG["slow"][role]) - 16 < s
            if role == 1 and s == 15: cover = marks[1]["idx0"]
            if role == 0 and s == CFG["s_chk"] and not CFG.get("nopoll"):
                l, r = a.lab("chk"), a.lab("chkr")
                a(f"s_cmp_eq_u32 s{sW}, 0\ns_cbranch_scc1 {l}\n{r}:")
                ool.append(poll_code(l, r, f"s_and_b32 s{sT3}, s{sHEAD}, 3\ns_lshl_b32 s{sT3}, s{sT3}, 3\ns_lshl_b32 s{sT3}, {(1 << CFG['lvlA']) - 1}, s{sT3}", 0, 1, len(vm.ops) - marks[0]["fl"], t3, t4, CFG["spin"]))
                marks[0]["inv"] = len(vm.ops)
            sync(role, t + 1, cover)
            if role == 0 and s in (CFG["s_pf"], CFG["s_ps"]):
                l, r = a.lab("pub"), a.lab("pubr")
                a(f"s_cmp_eq_u32 s{sW}, 0\ns_cbranch_scc1 {l}\n{r}:")
                x = f"{l}:\ns_cmp_lt_u32 s{sTB}, {CFG['lvlA']}\ns_cbranch_scc0 {r}\n{publish(1, t2, t4)}\ns_branch {r}" if s == CFG['s_pf'] else f"{l}:\n{publish(2, t2, t4)}\ns_branch {r}"
                ool.append(x)
            if role == 0 and s == CFG["s_pl"] and not CFG.get("nopoll"):
                l, r = a.lab("fl"), a.lab("flr")
                a(f"s_cmp_eq_u32 s{sW}, 0\ns_cbranch_scc1 {l}\n{r}:")
                ool.append(f"{l}:\n{flag_load(t3, t4, True)}\ns_branch {r}")
                marks[0]["fl"] = len(vm.ops)
            pre = []
            d = dma_stage(role, t + 4)
            rd = p2_reads(t + 1) if t + 1 < G_END else []
            ex = st_slot([role], 16 + s)
            nd = {CFG["s_go"]: 1, 13: 1, 15: 2}.get(s, 0) if role == 1 else 0
            assert CFG["s_go"] < 13
            if s in (12, 14):
                for r in range(8 * (s == 14), 8 * (s == 14) + 8):
                    m = sum(1 << l for l in range(64) if 16 * ((r // 4) % 2) + 4 * (l // 16) + r % 4 > 16 * (r // 8) + l % 16)
                    ex.append(f"s_mov_b32 s{sMASK+2*r}, {hex(m & 0xffffffff)}\ns_mov_b32 s{sMASK+2*r+1}, {hex(m >> 32)}")
            for i in range(nd):
                p_, ld, post = att_dma_parts(first=(s == CFG["s_go"]))
                ex += [p_] + ld + [post]; vm.add("adma", 8)
                marks[1].setdefault("idx0", len(vm.ops))
            sched(a, p2_mfmas(t, t == G_P2), rd, d + ex)
        stamp(a, 4, [vm])
    part2(0)
    a("s_branch q_epi\np2_s:")
    if CFG["p2prio"]: a("s_setprio 1")
    part2(1)
    a("q_epi:")
    if CFG.get("trace"):
        a(f"s_waitcnt lgkmcnt(0)\nv_writelane_b32 v19, s100, {G_END - G_A1}\ns_lshl_b32 s94, s2, 3\ns_add_u32 s94, s94, s{sW}\ns_lshl_b32 s94, s94, 9\ns_add_u32 s94, s94, {STAMP + 0x100000}\nv_lshlrev_b32 v21, 2, v0")
        a(f"buffer_store_dword v19, v21, {srd_s(R_WS)}, s94 offen offset:256\ns_nop 2")
    vSP = 22
    E9, ACKS = 5, 8
    a(f"""s_mov_b32 s{sACK}, {ACKS}
    s_mov_b32 s{sE9}, {E9}
    s_max_u32 s{sH2}, s{sH2}, {ACKS + 4}
    s_lshl_b32 s{sT0}, 5, s{sH2}
    s_or_b32 s{sT0}, s{sT0}, {(1 << HB) | (1 << (HB + 2)) | (9 << (ACKS - 2))}
    s_cmp_eq_u32 s{sW}, 0
    s_cselect_b32 s{sHK}, s{sT0}, 0
    s_or_b32 s{sHK}, s{sHK}, {1 << ACKS}
    s_sub_u32 s{sT0}, s{sTMAX}, 3
    s_lshl_b32 s{sT0}, -1, s{sT0}
    s_cmp_ge_u32 s{sW}, 4
    s_cselect_b32 s{sHK}, s{sT0}, s{sHK}""")
    Q = 32
    MS = CFG.get("msum", True)
    vE = [12, 13, 1, 21, 22, 23]
    vM, vNINF, TS, ONE = 3, 14, 4, 28
    O, S, NEG, P, KR, VR = 64, (128, 144), 160, (176, 184), 192, 224
    def vL(p, t): return 168 + 2 * p + t
    R = 172
    a(f"s_mov_b32 s92, {f32(math.log2(math.e) / math.sqrt(128.0))}\ns_mov_b32 s93, s92")
    a(f"v_add_u32 v{vM}, {4*SLOT}, v{vL16}")
    for c in range(8): a(f"ds_read_b128 {vr(KR+4*c,4)}, v{vM} offset:{c*1024}")
    for r in range(0, 64, 2): a(f"v_pk_mul_f32 {vr(128+r,2)}, {vr(128+r,2)}, s[92:93]")
    for m in range(32): a(f"v_cvt_pk_bf16_f32 v{Q+m}, v{128+2*m}, v{128+2*m+1}")
    a(f"v_mov_b32 v{vNINF}, 0xff800000")
    stamp(a, 5)
    a("s_waitcnt lgkmcnt(0)\ns_nop 0")
    def qk(dst, n, t, c0): return mfma16(dst + 8 * t + 4 * (n & 1), KR + 4 * n, Q + 8 * (n // 2) + 4 * t, c0 if n < 2 else None)
    def pvm(e, t, pb): return mfma16(O + 16 * (e // 2) + 8 * t + 4 * (e & 1), VR + 4 * e, pb + 4 * t)
    for c in range(8):
        a(qk(S[0], c, 0, "0")); a(qk(S[0], c, 1, "0"))
        a(f"ds_read_b128 {vr(KR+4*c,4)}, v{vM} offset:{8192+c*1024}")
    for r in range(4): a(f"v_mov_b32 v{ONE+r}, 0x3f803f80")
    a(f"v_mov_b32 v{vL(1,0)}, 0\nv_mov_b32 v{vL(1,1)}, 0")
    stamp(a, 6)
    def mask_op(s, r): return f"v_cndmask_b32 v{s+r}, v{s+r}, v{vNINF}, s[{sMASK+2*r}:{sMASK+2*r+1}]"
    def allred(op):
        for sw in ("v_permlane32_swap_b32", "v_permlane16_swap_b32"):
            a(f"v_mov_b32 v{R+1}, v{R}\nv_mov_b32 v{R+3}, v{R+2}\n{sw} v{R}, v{R+1}\n{sw} v{R+2}, v{R+3}\n{op} v{R}, v{R}, v{R+1}\n{op} v{R+2}, v{R+2}, v{R+3}")
    def rowmax(s):
        for t in range(2):
            b = s + 8 * t; d = R + 2 * t
            a(f"v_max3_f32 v{d}, v{b}, v{b+1}, v{b+2}\nv_max3_f32 v{d}, v{d}, v{b+3}, v{b+4}\nv_max3_f32 v{d}, v{d}, v{b+5}, v{b+6}\nv_max_f32 v{d}, v{d}, v{b+7}")
        allred("v_max_f32")
    nm = a.lab("nomask0")
    a(f"s_cmp_lg_u32 s{sG}, 0\ns_cbranch_scc1 {nm}")
    for r in range(16): a(mask_op(S[0], r))
    a(f"{nm}:")
    rowmax(S[0])
    for t in range(2):
        for r in range(4): a(f"v_sub_f32 v{NEG+4*t+r}, {f32(-CFG['bias'])}, v{R+2*t}")
    for r in range(0, 16, 2): a(f"v_pk_add_f32 {vr(S[0]+r,2)}, {vr(S[0]+r,2)}, {vr(NEG+4*(r//8),2)}")
    a(f"s_mov_b32 s{sSLOT}, {4*SLOT}\ns_mov_b32 s{sREM}, s{sG}\ns_mov_b32 s{sSTG}, 0")

    slot_adv = f"s_add_u32 s{sSLOT}, s{sSLOT}, {SLOT}\ns_cmp_ge_u32 s{sSLOT}, {5*SLOT}\ns_cselect_b32 s{sSLOT}, 0, s{sSLOT}\ns_add_u32 s{sSTG}, s{sSTG}, 1"
    kv_adv = f"v_add_u32 v{vKV}, s{sSLOT}, v{vL16}"
    def bar(vmn):
        w = f"s_waitcnt vmcnt({vmn})\n" if vmn is not None else ""
        if CFG.get("bartime"):
            a(f"s_waitcnt lgkmcnt(0)\ns_memtime s[94:95]\ns_waitcnt lgkmcnt(0)\n{w}s_barrier\ns_memtime s[96:97]\ns_waitcnt lgkmcnt(0)\ns_sub_u32 s96, s96, s94\ns_add_u32 s98, s98, s96\ns_mov_b32 s97, m0\ns_mov_b32 m0, s{sSTG}\ns_nop 0\nv_writelane_b32 v21, s96, m0\ns_mov_b32 m0, s97")
        elif CFG.get("nobar"): pass
        else: a(w + "s_barrier")
    def gen_sync(vmn=16):
        a(slot_adv); a(kv_adv)
        bar(vmn)
        nl = a.lab("nold")
        a(f"s_cmp_lt_u32 s{sW}, 4\ns_cbranch_scc1 {nl}")
        att_dma()
        a(f"{nl}:")
    def cond_sync(vmn=16):
        sk = a.lab("nosync")
        a(f"s_cmp_gt_u32 s{sSTG}, s{sTMAX}\ns_cbranch_scc1 {sk}")
        gen_sync(vmn)
        a(f"{sk}:")
    EG = CFG.get("eg", [0, 0, 1, 2, 3, 4, 5, 6, 6, 7, 8, 9, 10, 11, 12, 13] if not MS else [0, 0, 1, 2, 2, 3, 4, 4, 5, 6, 6, 7, 8, 8, 9, 10])
    def sm_ops(p, masked=False):
        s = S[p]; g = [[] for _ in range(16)]; pre = []
        NE = len(vE)
        for m in range(16):
            g[EG[m]].append(f"v_exp_f32 v{vE[m%NE]}, v{s+m}")
        for m in range(16 if not MS else 0):
            src = vL(1 - p, m // 8) if m % 8 == 0 else vL(p, m // 8)
            g[EG[m] + 1].append(f"v_add_f32 v{vL(p, m // 8)}, v{src}, v{vE[m%NE]}")
        for k in range(8):
            g[EG[2 * k + 1] + 1].append(f"v_cvt_pk_bf16_f32 v{P[p]+k}, v{vE[(2*k)%NE]}, v{vE[(2*k+1)%NE]}")
        if MS:
            g[EG[7] + 3].append(mfma16(TS, ONE, P[p], "0"))
            g[EG[15] + 2].insert(0, mfma16(TS + 4, ONE, P[p] + 4, "0"))
            g[13].append(f"v_add_f32 v{vL(p,0)}, v{vL(1-p,0)}, v{TS}")
            g[14].append(f"v_add_f32 v{vL(p,1)}, v{vL(1-p,1)}, v{TS+4}")
        if masked:
            for m in range(16):
                if EG[m] == 0: pre.append(mask_op(s, m))
                else: g[EG[m] - 1].append(mask_op(s, m))
        return pre, g
    rets = []
    ORDER = CFG.get("order", "QPQPQPQPQPQPQPQP")
    def cmp_ops(p, thr): return [f"v_add_f32 v{vM}, v{vL(p,0)}, v{vL(p,1)}", f"v_cmp_nge_f32 vcc, s{thr}, v{vM}"]
    def real_check(p):
        r = a.lab("ret"); rets.append((p, r))
        return "\n".join(cmp_ops(p, sTHR)) + f"\ns_mov_b32 s{sRET}, {len(rets)-1}\ns_cbranch_vccnz rare{p}\n{r}:"
    QKF = qk
    def hot_body(p, extra, barrier):
        s_ = S[p]; NE = len(vE)
        mf = []; rds = []; nq = npv = 0
        for m in range(16):
            if ORDER[m] == "Q":
                mf += [QKF(S[1 - p], nq, t, vr(NEG + 4 * t, 4)) for t in range(2)]
                rds.append(f"ds_read_b128 {vr(KR+4*nq,4)}, v{vKV} offset:{p*8192+nq*1024}"); nq += 1
            else:
                mf += [pvm(npv, t, P[1 - p]) for t in range(2)]
                rds.append(f"ds_read_b128 {vr(VR+4*npv,4)}, v{vKV} offset:{16384+p*8192+npv*1024}"); npv += 1
        misc = [y for k in sorted(extra) for x in extra[k] for y in ([x] if "buffer_" in x else x.split("\n")) if x != kv_adv]
        last = [kv_adv] if any(kv_adv in v for v in extra.values()) else []
        pat = CFG.get("pat", "EEEsEEsEEsEEsEEsEEsEEsEsssssssss")
        S0, S1, AD = CFG.get("sums", (17, 25, 30))
        ne = nc = nr = 0
        eh = []
        def cready(): return sum(1 for x in eh if x <= h - CFG.get('clag', 2)) // 2
        a("s_waitcnt lgkmcnt(8)")
        for h in range(32):
            if h == 16: a(f"s_waitcnt lgkmcnt({nr})")
            a(mf[h])
            def smalls(n):
                nonlocal nc, nr
                for _ in range(n):
                    if nr < 16 and nr < (h + 1) // 2 and (nc >= cready() or _ == 0) and not (barrier and h < 2): a(rds[nr]); nr += 1
                    elif nc < cready():
                        a(f"v_cvt_pk_bf16_f32 v{P[p]+nc}, v{vE[(2*nc)%NE]}, v{vE[(2*nc+1)%NE]}"); nc += 1
                    elif misc: a(misc.pop(0))
            if pat[h] == "E":
                a(f"v_exp_f32 v{vE[ne%NE]}, v{s_+ne}"); ne += 1; eh.append(h)
                if misc and CFG.get("mixs", False) and h % 3 == 1: a(misc.pop(0))
            else:
                smalls(2)
                if len(misc) > CFG.get("mthr", 10) and h >= 2:
                    for _ in range(CFG.get("mper", 1)):
                        if misc: a(misc.pop(0))
            if h == 1 and barrier: barrier()
            if h == S0: assert nc >= 4; a(mfma16(TS, ONE, P[p], "0")); smalls(2)
            if h == S1: assert nc == 8; a(mfma16(TS + 4, ONE, P[p] + 4, "0")); a(f"v_add_f32 v{vL(p,0)}, v{vL(1-p,0)}, v{TS}"); smalls(1)
            if h == AD:
                while any("cselect_b32 s%d" % sTH in x for x in misc): a(misc.pop(0))
                a(f"v_add_f32 v{vL(p,1)}, v{vL(1-p,1)}, v{TS+4}")
                for x in cmp_ops(p, sTH): a(x)
        while nr < 16: a(rds[nr]); nr += 1
        for x in misc + last: a(x)
    def body(p, qk=True, pv=True, sm=True, vrd=True, w0=8, w1=8, masked=False, extra=None, hot=False, barrier=None):
        if hot and MS and CFG.get("packed", True): return hot_body(p, extra, barrier)
        pre, g = sm_ops(p, masked) if sm else ([], [[] for _ in range(16)])
        for k, x in (extra or {}).items(): g[k] += x
        if sm and hot: g[14] += cmp_ops(p, sTH)
        for x in pre: a(x)
        nq = npv = 0
        for m in range(16):
            if m == 0: a(f"s_waitcnt lgkmcnt({w0})")
            if m == 8: a(f"s_waitcnt lgkmcnt({w1})")
            rd = None; mm = []
            if ORDER[m] == "Q":
                if qk:
                    mm = [QKF(S[1 - p], nq, t, vr(NEG + 4 * t, 4)) for t in range(2)]
                    rd = f"ds_read_b128 {vr(KR+4*nq,4)}, v{vKV} offset:{p*8192+nq*1024}"
                nq += 1
            else:
                if pv: mm = [pvm(npv, t, P[1 - p]) for t in range(2)]
                if vrd: rd = f"ds_read_b128 {vr(VR+4*npv,4)}, v{vKV} offset:{16384+p*8192+npv*1024}"
                npv += 1
            gm = list(g[m])
            n1 = min(len(gm), 1 if (gm and gm[0].startswith("v_exp")) else 2)
            if m == 15: n1 = 0
            if mm: a(mm[0])
            for x in gm[:n1]: a(x)
            if mm: a(mm[1])
            if m == 0 and barrier is not None:
                for x in gm[n1:]: a(x)
                barrier()
                if rd: a(rd)
            else:
                if rd: a(rd)
                for x in gm[n1:]: a(x)
        if sm and not hot: a(real_check(p))
    zero_o = {k: ["\n".join(f"v_mov_b32 v{O+4*k+r}, 0" for r in range(4))] for k in range(16)}
    a("s_waitcnt lgkmcnt(0)")
    gen_sync()
    a(f"s_cmp_eq_u32 s{sG}, 0\ns_cbranch_scc1 att_g0")
    body(0, pv=False, extra=zero_o)
    a(f"s_cmp_eq_u32 s{sREM}, 1\ns_cbranch_scc1 att_last_odd")
    if CFG.get("prio") is not None:
        pl = a.lab("prio")
        a(f"s_setprio 0\ns_cmp_{'ge' if CFG['prio'] == 0 else 'lt'}_u32 s{sW}, 4\ns_cbranch_scc1 {pl}\ns_setprio 1\n{pl}:")
    else: a("s_setprio 0")
    a(f"s_cmp_ge_u32 s{sW}, 4\ns_cbranch_scc1 att_loop1")
    sa = slot_adv.split("\n")
    sCL = 81
    a(f"""s_lshl_b32 s{sT0}, s2, 2
    s_add_u32 s{sT0}, s{sT0}, s{sW}
    s_lshl_b32 s{sT0}, s{sT0}, 12
    v_lshlrev_b32 v{t1}, 7, v0
    s_mov_b32 exec_hi, 0
    buffer_load_dword v{t1}, v{t1}, {srd_s(R_WO2)}, s{sT0} offen
    s_mov_b64 exec, -1""")
    a(f"""v_mov_b32 v24, -1
    v_mov_b32 v25, -1
    v_mov_b32 v26, -1
    v_mov_b32 v27, -1
    s_lshl_b32 s{sCL}, s2, 2
    s_add_u32 s{sCL}, s{sCL}, s{sW}
    s_lshl_b32 s{sCL}, s{sCL}, 15
    s_add_u32 s{sCL}, s{sCL}, {XB + 16384}""")
    def clr(i): return [] if (CFG.get("noclr") or (CFG.get("halfclr") and i & 1)) else [f"buffer_store_dwordx4 v[24:27], v{vL16}, {srd_s(R_WS)}, s{sCL} offen offset:{i*1024} {CFG.get('clrf', 'sc1')}"]
    for lp in (2, 0, 1):
        role = 1 if lp == 1 else 0
        a(f"att_loop{lp}:")
        ex = {2: [f"s_sub_u32 s{sREM}, s{sREM}, 2", sa[3]], 4: [f"s_cmp_eq_u32 s{sREM}, 0", f"s_cselect_b32 s{sTH}, -1.0, s{sTHR}"],
              11: sa[0:1], 13: sa[1:3], 15: [kv_adv]}
        ex[9] = [f"s_bitcmp1_b32 s{sHK}, s{sSTG}", f"s_cselect_b32 s{sTH}, -1.0, s{sTH}"]
        if lp == 2: ex[4] = [f"s_mov_b32 s{sTH}, s{sTHR}"] + clr(0)
        body(1, extra=ex, hot=True)
        a(f"s_cbranch_vccnz att_sp{lp}\natt_cont{lp}:")
        ex = {k: [] for k in range(16)}
        ex[13] += [f"s_cmp_eq_u32 s{sREM}, 1" if lp != 2 else f"s_cmp_eq_u32 s{sSTG}, {E9}", f"s_cselect_b32 s{sTH}, -1.0, s{sTHR}"]
        if lp == 2: ex[4] += clr(1); ex[11] += [f"s_add_u32 s{sCL}, s{sCL}, 2048"]
        if role:
            ld = [f"buffer_load_dwordx4 v{vL16}, {srd_s(R_WS)}, s{sKO if i < 4 else sVO} offen offset:{(i%4)*1024} sc1 lds" for i in range(8)]
            ex[2] += [f"s_mov_b32 m0, s{sDSL}", f"s_add_u32 s{sDST}, s{sDST}, 1"] + ld[:4] + [f"s_add_u32 m0, s{sDSL}, 16384", f"s_add_u32 s{sKO}, s{sKO}, 16384"] + ld[4:]
            ex[15] += [f"s_add_u32 s{sVO}, s{sVO}, 16384", f"s_add_u32 s{sDSL}, s{sDSL}, {SLOT}", f"s_cmp_ge_u32 s{sDSL}, {5*SLOT}", f"s_cselect_b32 s{sDSL}, s{sLD}, s{sDSL}"]
        body(0, extra=ex, hot=True, barrier=lambda: bar(16 if role else None))
        a(f"s_cbranch_vccz att_loop{lp}")
        a(real_check(0))
        if lp == 2:
            a(f"s_cmp_lg_u32 s{sSTG}, {E9}\ns_cbranch_scc1 att_loop2\ns_branch att_loop0")
            a("att_sp2:")
            a(real_check(1))
            a(f"s_bitcmp1_b32 s{sHK}, s{sSTG}\ns_cbranch_scc1 lvlb\ns_branch att_cont2")
            continue
        a(f"s_cmp_lg_u32 s{sREM}, 1\ns_cbranch_scc1 att_loop{role}\ns_branch att_last_odd")
        a(f"att_sp{role}:")
        a(real_check(1))
        if role == 0: a(f"s_bitcmp1_b32 s{sHK}, s{sSTG}\ns_cbranch_scc1 lvlb\nlvlb_ret:\ns_cmp_le_u32 s{sSTG}, s{sE9}\ns_cbranch_scc1 att_cont2")
        if role == 1:
            a(f"""s_cmp_eq_u32 s{sREM}, 0
            s_cbranch_scc1 att_sp1x
            s_cmp_lt_u32 s{sDST}, s{sTMAX}
            s_cbranch_scc1 att_cont1
            s_mov_b32 s{sKO}, {OOB}
            s_cmp_eq_u32 s{sDST}, s{sTMAX}
            s_cbranch_scc1 att_cont1
            """)
            bar(16); att_dma()
            body(0)
            a("s_branch att_last_odd\natt_sp1x:")
        else: a(f"s_cmp_lg_u32 s{sREM}, 0\ns_cbranch_scc1 att_cont{role}")
        bar(16 if role else None)
        a(f"s_branch att_last_even{role}")
    a("att_g0:")
    body(0, qk=False, pv=False, extra=zero_o)
    a("s_branch att_fin_odd")
    a("att_last_even1:")
    att_dma()
    a("att_last_even0:")
    a(f"s_setprio {CFG.get('tailprio', 2)}\ns_nop 3")
    body(0, qk=False, w1=4, masked=True)
    a("att_fin_odd:")
    a(f"v_mov_b32 v{R}, v{vL(0,0)}\nv_mov_b32 v{R+2}, v{vL(0,1)}")
    body(1, qk=False, sm=False, vrd=False, w0=0, w1=0)
    cond_sync()
    a("s_branch att_done")
    a("att_last_odd:")
    a(f"s_setprio {CFG.get('tailprio', 2)}\ns_nop 3")
    body(1, qk=False, w1=4, masked=True)
    a("s_waitcnt lgkmcnt(0)")
    cond_sync()
    a(f"v_mov_b32 v{R}, v{vL(1,0)}\nv_mov_b32 v{R+2}, v{vL(1,1)}")
    body(0, qk=False, sm=False, vrd=False, w0=0, w1=0)
    a("att_done:")
    stamp(a, 7)
    if CFG.get("bartime"):
        a(f"s_lshl_b32 s94, s2, 3\ns_add_u32 s94, s94, s{sW}\ns_lshl_b32 s94, s94, 9\ns_add_u32 s94, s94, {STAMP + 0x100000}\nv_lshlrev_b32 v19, 2, v0\nbuffer_store_dword v21, v19, {srd_s(R_WS)}, s94 offen")
        a(f"s_getreg_b32 s99, hwreg(HW_REG_HW_ID)\nv_mov_b32 v{vSP}, s98\nv_mov_b32 v{vSP+1}, s99\nbuffer_store_dwordx2 v[{vSP}:{vSP+1}], off, {srd_s(R_WS)}, s{sSTAMP} offset:16")
    if not MS: allred("v_add_f32")
    for t in range(2): a(f"v_mul_f32 v{R+2*t}, {f32(2.0 ** CFG['vsh'])}, v{R+2*t}\nv_rcp_f32 v{R+2*t}, v{R+2*t}")
    CF = KR
    sCX, sEW = 81, 82
    a(f"""s_load_dwordx2 s[{R_OUT}:{R_OUT+1}], s[0:1], 80
    s_mov_b32 s{R_OUT+2}, {4 << 20}
    s_mov_b32 s{R_OUT+3}, 0x20000
    s_and_b32 s{sHL}, s{sHEAD}, 3
    s_lshl_b32 s{sCX}, s2, 2
    s_add_u32 s{sCX}, s{sCX}, s{sW3}
    s_lshl_b32 s{sCX}, s{sCX}, 2
    s_lshr_b32 s{sT0}, s{sW}, 2
    s_add_u32 s{sCX}, s{sCX}, s{sT0}
    s_lshl_b32 s{sCX}, s{sCX}, 13
    s_add_u32 s{sCX}, s{sCX}, {XB}
    s_add_u32 s{sEW}, s{sCX}, 16384
    v_mov_b32 v{R+1}, v{R}
    v_mov_b32 v{R+3}, v{R+2}""")
    for t in range(4):
        for c in range(2):
            b = O + 16 * t + 8 * c; d = CF + 4 * (2 * t + c)
            for r in range(0, 8, 2): a(f"v_pk_mul_f32 {vr(b+r,2)}, {vr(b+r,2)}, {vr(R+2*c,2)}")
            for j in range(4): a(f"v_cvt_pk_bf16_f32 v{d+j}, v{b+2*j}, v{b+2*j+1}")
    a(f"s_add_u32 s{sT0}, s{sCX}, 4096")
    for i in range(8): a(f"buffer_store_dwordx4 {vr(CF+4*i,4)}, v{vL16}, {srd_s(R_WS)}, s{sCX if i < 4 else sT0} offen offset:{(i%4)*1024} sc1")
    def wpub(level):
        return f"""s_lshl_b32 s{sT0}, s2, 3
        s_add_u32 s{sT0}, s{sT0}, s{sW}
        s_lshl_b32 s{sT0}, s{sT0}, 7
        s_add_u32 s{sT0}, s{sT0}, {FW}
        v_mov_b32 v{t4}, {level}
        s_mov_b64 exec, 1
        buffer_store_dword v{t4}, off, {srd_s(R_WS)}, s{sT0} sc1
        s_mov_b64 exec, -1"""
    def wload(sib):
        return f"""s_andn2_b32 s{sT0}, s2, {0x18 if sib else 7}
        s_lshl_b32 s{sT0}, s{sT0}, 3
        s_add_u32 s{sT0}, s{sT0}, s{sW}
        s_lshl_b32 s{sT0}, s{sT0}, 7
        s_add_u32 s{sT0}, s{sT0}, {FW}
        v_lshlrev_b32 v{t2}, {13 if sib else 10}, v0
        s_mov_b64 exec, {15 if sib else 0xff}
        buffer_load_dword v{t3}, v{t2}, {srd_s(R_WS)}, s{sT0} offen sc1
        s_mov_b64 exec, -1"""
    def wtest(sib, level):
        return f"v_cmp_gt_i32 vcc, {level}, v{t3}\ns_nop 0\ns_and_b32 s{sT0}, vcc_lo, {15 if sib else 0xff}"
    def wpoll(sib, level, spin):
        lp, ok = a.lab("wp"), a.lab("wok")
        a(f"s_mov_b32 s{sCNT}, 0\n{lp}:\n{wload(sib)}\ns_add_u32 s{sCNT}, s{sCNT}, 1\ns_waitcnt vmcnt(0)\n{wtest(sib, level)}\ns_cbranch_scc0 {ok}\ns_sleep 1\ns_cmp_lt_u32 s{sCNT}, {spin}\ns_cbranch_scc1 {lp}\n{ok}:")
    a(f"s_setprio 0\ns_mov_b32 s28, 0\ns_mov_b32 s29, 0\ns_waitcnt lgkmcnt(0)\ns_cmp_ge_u32 s{sW}, 4\ns_cbranch_scc1 s_idle")
    a(f"l_idle:\ns_cmp_gt_u32 s{sSTG}, s{sTMAX}\ns_cbranch_scc1 tail_gemm")
    a(slot_adv); a(kv_adv); bar(None)
    a("s_branch l_idle")
    vals = []
    def validate(regs, loads, spin):
        tag = len(vals); vals.append((tag, loads, spin))
        x = f"s_mov_b32 s{sCNT}, 0\nval{tag}:\nv_max3_u32 v{vM}, v{regs[0]}, v{regs[1]}, v{regs[2]}\n"
        for r in range(3, len(regs) - 1, 2): x += f"v_max3_u32 v{vM}, v{vM}, v{regs[r]}, v{regs[r+1]}\n"
        a(x + f"v_max_u32 v{vM}, v{vM}, v{regs[-1]}\nv_cmp_eq_u32 vcc, -1, v{vM}\ns_cbranch_vccnz reload{tag}\ns_cmp_eq_u32 exec_lo, 0\ns_mov_b64 exec, -1\ns_cbranch_scc1 loads{tag}\nvalok{tag}:")
    SB = 32
    def sib_loads():
        out = []
        for c in range(1, 4):
            out.append(f"s_add_u32 s{sT0}, s{sHL}, {c}\ns_and_b32 s{sT0}, s{sT0}, 3\ns_sub_u32 s{sT0}, s{sT0}, s{sHL}\ns_lshl_b32 s{sT0}, s{sT0}, 20\ns_add_u32 s{sT0}, s{sT0}, s{sCX}\ns_add_u32 s{sT1}, s{sT0}, 4096")
            out += [f"buffer_load_dwordx4 {vr(SB+32*(c-1)+4*i,4)}, v{vL16}, {srd_s(R_WS)}, s{sT0 if i < 4 else sT1} offen offset:{(i%4)*1024} sc1" for i in range(8)]
        return out
    a(f"s_idle:\ns_mov_b32 s{sCNT}, 0\nidle24:")
    a(f"s_cmp_ge_u32 s{sSTG}, s{sTMAX}\ns_cbranch_scc1 s_pre")
    gen_sync(24)
    a(f"s_add_u32 s{sCNT}, s{sCNT}, 1\ns_cmp_lt_u32 s{sCNT}, 3\ns_cbranch_scc1 idle24")
    a("idle16:")
    a(f"s_cmp_ge_u32 s{sSTG}, s{sTMAX}\ns_cbranch_scc1 s_pre")
    gen_sync(16)
    a(f"s_cmp_lg_u32 s28, 0\ns_cbranch_scc1 idle_p\n{wpub(1)}\ns_mov_b32 s28, 1\ns_branch idle16\nidle_p:")
    a(f"s_sub_u32 s{sT0}, s{sTMAX}, s{sSTG}\ns_cmp_lg_u32 s{sT0}, 5\ns_cbranch_scc1 idle_r\ns_cmp_le_u32 s{sSTG}, {ACKS + 1}\ns_cbranch_scc1 idle16")
    a(wload(True))
    gen_sync(17)
    a(f"s_waitcnt vmcnt(8)\n{wtest(True, 1)}\ns_cbranch_scc1 idle16")
    sl = sib_loads()
    for c in range(3):
        for x in sl[9 * c:9 * c + 9]: a(x)
        gen_sync(24 + 8 * c)
    a(f"s_mov_b32 s29, 1\ns_branch idle16\nidle_r:")
    a(f"s_cmp_lg_u32 s{sT0}, {CFG.get('o_e', 8)}\ns_cbranch_scc1 idle_r2\ns_cmp_ge_u32 s{sTA}, 4\ns_cbranch_scc1 idle16")
    RV, PV, TN, OP = 32, 48, 80, 144
    a(f"""s_and_b32 s{sT0}, s2, 31
    s_lshl_b32 s{sT1}, s{sTA}, 5
    s_add_u32 s{sT0}, s{sT0}, s{sT1}
    s_lshl_b32 s{sT0}, s{sT0}, 2
    s_add_u32 s{sT0}, s{sT0}, s{sW3}
    s_and_b32 s26, s{sT0}, 15
    s_lshr_b32 s{sT0}, s{sT0}, 4
    s_lshl_b32 s{sT3}, s{sT0}, 6
    s_add_u32 s{sT3}, s{sT3}, s26
    s_lshl_b32 s{sT0}, s{sT3}, 11
    s_add_u32 s{sT0}, s{sT0}, {PHQ}""")
    red_ld = [f"s_lshl_b32 s{sT2}, s26, 12\ns_add_u32 s{sT2}, s{sT2}, {RED}"] + [f"buffer_load_dwordx4 {vr(RV+4*i,4)}, v{vL16}, {srd_s(R_WS)}, s{sT2} offen offset:{i*1024} sc1" for i in range(4)]
    for x in red_ld: a(x)
    for T in range(4):
        for h in range(2): a(f"buffer_load_dwordx4 {vr(PV+8*T+4*h,4)}, v{vL16}, {srd_s(R_WS)}, s{sT0} offen offset:{h*1024} sc1")
        a(f"s_add_u32 s{sT0}, s{sT0}, 32768")
    gen_sync(28)
    a("s_waitcnt vmcnt(8)")
    validate(list(range(RV, RV + 16)), red_ld, 20 * CFG["spin"])
    for T in range(4):
        for h in range(2):
            a(mfma16(TN + 16 * T + 8 * h, RV + 8 * h, PV + 8 * T + 4 * h, "0")); a(mfma16(TN + 16 * T + 8 * h + 4, RV + 8 * h + 4, PV + 8 * T + 4 * h, "0"))
    a(f"s_lshl_b32 s{sT3}, s{sT3}, 10\ns_add_u32 s{sT3}, s{sT3}, {OAF}")
    for i in range(8): a(f"v_add_f32 v{TN+8*i+4}, {f32(1e-6)}, v{TN+8*i+4}\nv_rcp_f32 v{TN+8*i+4}, v{TN+8*i+4}")
    gen_sync(16)
    for i in range(8):
        n = TN + 8 * i; o = OP + 2 * i
        for r in range(4): a(f"v_mul_f32 v{n+r}, v{n+r}, v{n+4}")
        a(f"v_cvt_pk_bf16_f32 v{o}, v{n}, v{n+1}\nv_cvt_pk_bf16_f32 v{o+1}, v{n+2}, v{n+3}")
        if i & 1: a(f"buffer_store_dwordx4 {vr(OP+2*i-2,4)}, v{vL16}, {srd_s(R_WS)}, s{sT3} offen sc1\ns_add_u32 s{sT3}, s{sT3}, 16384")
    a("s_branch idle16\nidle_r2:")
    a(f"s_cmp_lg_u32 s{sTA}, {CFG.get('rta', 1)}\ns_cbranch_scc1 idle16\ns_cmp_lg_u32 s{sSTG}, {CFG.get('h2cap', 13) + 3}\ns_cbranch_scc1 idle16")
    a(f"""s_lshl_b32 s{sT0}, s{sHEAD}, 16
    s_add_u32 s{sT0}, s{sT0}, s{sDMW}
    s_add_u32 s{sT0}, s{sT0}, {KVP}
    s_cmp_lt_u32 s{sW3}, 2
    s_cselect_b32 s{sT1}, -1, 0x300
    v_and_b32 v{t1}, s{sT1}, v{vL16}""")
    for i in range(16): a(f"buffer_load_dwordx4 {vr(32+4*i,4)}, v{t1}, {srd_s(R_WS)}, s{sT0} offen sc1\ns_add_u32 s{sT0}, s{sT0}, 4096")
    gen_sync(32); gen_sync(32)
    a("s_waitcnt vmcnt(16)")
    for st in (8, 4, 2, 1):
        for i in range(st):
            for r in (0, 2): a(f"v_pk_add_f32 {vr(32+4*i+r,2)}, {vr(32+4*i+r,2)}, {vr(32+4*(i+st)+r,2)}")
    a(f"""v_cvt_pk_bf16_f32 v36, v32, v33
    v_cvt_pk_bf16_f32 v37, v34, v35
    s_lshl_b32 s{sT0}, s{sHEAD}, 1
    s_lshr_b32 s{sT1}, s{sW3}, 1
    s_add_u32 s{sT0}, s{sT0}, s{sT1}
    s_lshl_b32 s{sT0}, s{sT0}, 10
    s_and_b32 s{sT1}, s{sW3}, 1
    s_lshl_b32 s{sT1}, s{sT1}, 3
    s_add_u32 s{sT0}, s{sT0}, s{sT1}
    s_add_u32 s{sT0}, s{sT0}, {RED}
    buffer_store_dwordx2 v[36:37], v{vL16}, {srd_s(R_WS)}, s{sT0} offen sc1
    s_branch idle16""")
    a("s_pre:")
    a(f"s_mov_b32 s30, s{sSLOT}\ns_setprio {CFG.get('sprio', 2)}")
    gen_sync(16)
    a(f"s_cmp_lg_u32 s28, 0\ns_cbranch_scc1 pub_done\ns_waitcnt vmcnt(8)\n{wpub(1)}\ns_mov_b32 s28, 1\npub_done:")
    a(f"s_mov_b32 s31, s{sSLOT}\ns_add_u32 s{sT0}, s30, 32720\nv_mov_b32 v{t2}, s{sT0}\nv_mov_b32 v24, 0\nv_mov_b32 v25, 0\nv_mov_b32 v26, 0\nv_mov_b32 v27, 0\nds_write_b128 v{t2}, v[24:27]\nds_write_b128 v{t2}, v[24:27] offset:32")
    a("s_waitcnt lgkmcnt(0)")
    a("tail_gemm:")
    stamp(a, 10)
    AC, WR = 128, 224
    WA = 4
    a(f"""v_lshrrev_b32 v{WA+1}, 2, v0
    v_and_b32 v{WA+2}, 7, v{WA+1}
    v_lshlrev_b32 v{WA}, 8, v{WA+1}
    v_lshl_or_b32 v{WA}, v{WA+2}, 5, v{WA}
    v_and_b32 v{WA+2}, 3, v0
    v_lshl_or_b32 v{WA}, v{WA+2}, 3, v{WA}
    v_add_u32 v{WA}, s{sSLOT}, v{WA}""")
    for n in range(1, 8): a(f"v_xor_b32 v{WA+n}, {n*32}, v{WA}")
    def rd(n, k, h): return f"ds_read_b64_tr_b16 {vr(WR+4*n+2*h,2)}, v{WA+n} offset:{k*8192+h*4096}"
    def rd8():
        for n in range(8): a(rd(n, 0, 0)); a(rd(n, 0, 1))
    def chunk(c, pre, nxt):
        src = CF if c == 0 else SB + 32 * (c - 1)
        if pre: rd8()
        pend = []
        for k in range(4):
            if k == 3 and c < 3:
                a(f"s_mov_b32 s{sTD}, s{sSLOT}"); a(slot_adv); a(f"s_sub_u32 s{sTD}, s{sSLOT}, s{sTD}")
            more = k < 3 or nxt
            for n in range(8):
                if n % 2 == 0: a(f"s_waitcnt lgkmcnt({(10 if (k or n) else 12) if (more or n == 0) else max(0, 12 - 2 * n)})")
                for T in range(2):
                    a(mfma16(AC + 16 * (n // 2) + 8 * T + 4 * (n & 1), WR + 4 * n, src + 8 * k + 4 * T, "0" if (c == 0 and k == 0) else None))
                    if pend: a(pend.pop(0))
                    if T == 1 and k == 3 and c < 3: a(f"v_add_u32 v{WA+n}, s{sTD}, v{WA+n}")
                if more: pend = [rd(n, (k + 1) % 4, 0), rd(n, (k + 1) % 4, 1)]
        for x in pend: a(x)
    a(f"""s_cmp_ge_u32 s{sW}, 4
    s_cbranch_scc1 tail_c0
    s_sub_u32 s30, s{sSLOT}, {SLOT}
    s_cselect_b32 s30, {4*SLOT}, s30
    s_waitcnt vmcnt(0)
    {wpub(1)}
    s_barrier""")
    sl = sib_loads()
    wpoll(True, 1, 40 * CFG["spin"])
    for x in sl: a(x)
    a("s_mov_b32 s29, 1\ntail_c0:")
    chunk(0, True, False)
    a(f"""s_cmp_lt_u32 s{sW}, 4
    s_cbranch_scc1 tail_b2
    s_waitcnt vmcnt(0)
    s_barrier
    tail_b2:
    s_lshl_b32 s{sT0}, s{sW}, 2
    s_add_u32 s{sT0}, s{sT0}, s30
    s_add_u32 s{sT0}, s{sT0}, 32720
    v_mov_b32 v{t2}, s{sT0}
    v_mov_b32 v{t4}, 1
    ds_write_b32 v{t2}, v{t4}
    s_waitcnt lgkmcnt(0)""")
    rd8()
    a("s_cmp_lg_u32 s29, 0\ns_cbranch_scc1 tail_have")
    wpoll(True, 1, 40 * CFG["spin"])
    for x in sl: a(x)
    a("tail_have:")
    sGO, sGW = 24, 26
    GO, GW, GA = 64, 192, 128
    GWY = (192, 208, 32, 48)
    def g_loads(base, reg):
        out = []
        for x in range(4):
            if base == sGO: out.append(f"s_add_u32 s{sT0}, s{sW3}, {x}\ns_and_b32 s{sT0}, s{sT0}, 3\ns_lshl_b32 s{sT0}, s{sT0}, 14\ns_add_u32 s{sT0}, s{sT0}, s{base}")
            else: out.append(f"s_add_u32 s{sT0}, s{base}, {x*16384}")
            out += [f"buffer_load_dwordx4 {vr((reg+16*x if base == sGO else GWY[x])+4*i,4)}, v{vL16}, {srd_s(R_WS)}, s{sT0} offen offset:{i*1024} sc1" for i in range(4)]
        return out
    for c in range(1, 4):
        a(f"s_waitcnt vmcnt({8 * (3 - c)})")
        if c == 1: stamp(a, 9)
        if c == 3:
            a(f"""s_cmp_lt_u32 s{sW}, 4
    s_cbranch_scc1 tail_nw
    s_lshl_b32 s{sT0}, s{sTBA}, 1
    s_and_b32 s{sT1}, s{sHP}, 1
    s_add_u32 s{sT0}, s{sT0}, s{sT1}
    s_lshr_b32 s{sT1}, s{sHP}, 1
    s_lshl_b32 s{sGO}, s{sT0}, 16
    s_add_u32 s{sGO}, s{sGO}, s{sLD}
    s_add_u32 s{sGO}, s{sGO}, {OAF}
    s_lshl_b32 s{sGW}, s{sT1}, 16
    s_add_u32 s{sGW}, s{sGW}, s{sLD}
    s_add_u32 s{sGW}, s{sGW}, {WOAF}
    s_lshl_b32 s28, s{sT0}, 2
    s_add_u32 s28, s28, s{sW3}
    s_lshl_b32 s28, s28, 15
    s_lshl_b32 s{sT1}, s{sT1}, 7
    s_add_u32 s28, s28, s{sT1}""")
            for x in g_loads(sGW, GW): a(x)
            a("tail_nw:")
        if c == CFG.get("pdrop", 4): a("s_setprio 0")
        chunk(c, False, c < 3)
    if CFG.get("pdrop", 4) == 4: a("s_setprio 0")
    stamp(a, 11)
    a(f"s_cmp_lt_u32 s{sW}, 4\ns_cbranch_scc1 tail_pk")
    for x in g_loads(sGO, GO): a(x)
    a(f"tail_pk:\ns_add_u32 s{sT0}, s{sEW}, 4096\ns_nop 6")
    for T in range(2):
        for be in range(4):
            p = 4 * T + be; b = AC + 16 * be + 8 * T
            for j in range(4): a(f"v_cvt_pk_bf16_f32 v{224+4*p+j}, v{b+2*j}, v{b+2*j+1}")
            a(f"buffer_store_dwordx4 {vr(224+4*p,4)}, v{vL16}, {srd_s(R_WS)}, s{sEW if T == 0 else sT0} offen offset:{be*1024} sc1")
    a(f"""v_and_b32 v{t1}, 15, v0
    v_lshlrev_b32 v{t1}, 11, v{t1}
    v_lshrrev_b32 v{t2}, 4, v0
    v_lshl_or_b32 v{t1}, v{t2}, 4, v{t1}
    s_cmp_lt_u32 s{sW}, 4
    s_cbranch_scc1 tail_ex""")
    XP = 64
    ex_ld = [f"s_and_b32 s{sT1}, s2, 7\ns_lshl_b32 s{sT0}, s{sT1}, 17\ns_sub_u32 s{sT0}, s{sEW}, s{sT0}\ns_lshl_b32 s{sT1}, s{sT1}, 10\ns_add_u32 s{sT0}, s{sT0}, s{sT1}"]
    ex_ld += [f"buffer_load_dwordx4 {vr(XP+4*i,4)}, v{vL16}, {srd_s(R_WS)}, s{sT0} offen sc1\ns_add_u32 s{sT0}, s{sT0}, 131072" for i in range(8)]
    a(f"s_waitcnt vmcnt(0)\n{wpub(2)}")
    validate([GO + r for r in range(64)], g_loads(sGO, GO), 80 * CFG["spin"])
    for k in range(4):
        for x in range(4):
            for y in range(4): a(mfma16(GA + 16 * x + 4 * y, GWY[y] + 4 * k, GO + 16 * x + 4 * k, "0" if k == 0 else None))
    for x in range(1, 4):
        a(f"""s_add_u32 s{sT0}, s{sW3}, {x}
        s_bitcmp1_b32 s{sT0}, 1
        s_cselect_b32 s{sT1}, s31, s30
        s_and_b32 s{sT0}, s{sT0}, 1
        s_mul_i32 s{sT0}, s{sT0}, 12288
        s_add_u32 s{sT0}, s{sT0}, s{sT1}
        v_add_u32 v{23+x}, s{sT0}, v{vL16}""")
    a(f"""s_add_u32 s{sT1}, s30, 32720
    v_mov_b32 v{t3}, s{sT1}
    s_mov_b32 s{sCNT}, 0
    l_spin:
    ds_read_b128 v[28:31], v{t3}
    s_add_u32 s{sCNT}, s{sCNT}, 1
    s_waitcnt lgkmcnt(0)
    v_and_b32 v28, v28, v29
    v_and_b32 v30, v30, v31
    v_and_b32 v28, v28, v30
    v_cmp_eq_u32 vcc, 1, v28
    s_cbranch_vccnz l_go
    s_sleep 1
    s_cmp_lt_u32 s{sCNT}, {4000 * CFG['spin']}
    s_cbranch_scc1 l_spin
    l_go:""")
    for x in range(1, 4):
        for y in range(4): a(f"ds_write_b128 v{23+x}, {vr(GA+16*x+4*y,4)} offset:{(x-1)*4096+y*1024}")
    a(f"""s_lshl_b32 s{sT0}, s{sW3}, 2
    s_add_u32 s{sT1}, s30, 32752
    s_add_u32 s{sT0}, s{sT0}, s{sT1}
    v_mov_b32 v{t2}, s{sT0}
    v_mov_b32 v{t3}, s{sT1}
    v_mov_b32 v{t4}, 1
    s_bitcmp1_b32 s{sW3}, 1
    s_cselect_b32 s{sT1}, s31, s30
    s_and_b32 s{sT0}, s{sW3}, 1
    s_mul_i32 s{sT0}, s{sT0}, 12288
    s_add_u32 s{sT0}, s{sT0}, s{sT1}
    v_add_u32 v24, s{sT0}, v{vL16}
    s_waitcnt lgkmcnt(0)
    ds_write_b32 v{t2}, v{t4}
    v_mov_b32 v25, v{t3}""")
    wpoll(False, 2, 80 * CFG["spin"])
    for x in ex_ld: a(x)
    a(f"""s_mov_b32 s{sCNT}, 0
    g_spin:
    ds_read_b128 v[28:31], v25
    s_add_u32 s{sCNT}, s{sCNT}, 1
    s_waitcnt lgkmcnt(0)
    v_and_b32 v28, v28, v29
    v_and_b32 v30, v30, v31
    v_and_b32 v28, v28, v30
    v_cmp_eq_u32 vcc, 1, v28
    s_cbranch_vccnz g_go
    s_sleep 1
    s_cmp_lt_u32 s{sCNT}, {4000 * CFG['spin']}
    s_cbranch_scc1 g_spin
    g_go:""")
    for sw in range(3):
        for y in range(4): a(f"ds_read_b128 {vr(GA+16+16*sw+4*y,4)}, v24 offset:{sw*4096+y*1024}")
    a("s_waitcnt lgkmcnt(0)")
    for r in range(0, 16, 2):
        a(f"v_pk_add_f32 {vr(GA+r,2)}, {vr(GA+r,2)}, {vr(GA+16+r,2)}\nv_pk_add_f32 {vr(GA+32+r,2)}, {vr(GA+32+r,2)}, {vr(GA+48+r,2)}")
    for r in range(0, 16, 2): a(f"v_pk_add_f32 {vr(GA+r,2)}, {vr(GA+r,2)}, {vr(GA+32+r,2)}")
    for m in range(8): a(f"v_cvt_pk_bf16_f32 v{GW+m}, v{GA+2*m}, v{GA+2*m+1}")
    for be in range(2): a(f"buffer_store_dwordx4 {vr(GW+4*be,4)}, v{t1}, {srd_s(R_OUT)}, s28 offen offset:{be*64} {CFG['out_flags']}")
    a("s_waitcnt vmcnt(2)\ns_branch tail_ex2")
    a("tail_ex:")
    stamp(a, 14)
    if CFG.get("ex_sleep"): a(f"s_waitcnt vmcnt(0)")
    for x in ex_ld: a(x)
    a(f"""s_waitcnt vmcnt(0)
    tail_ex2:
    s_lshl_b32 s{sT2}, s{sG}, 1
    s_bfe_u32 s{sT3}, s2, 0x10002
    s_add_u32 s{sT2}, s{sT2}, s{sT3}
    s_lshl_b32 s{sT2}, s{sT2}, 15
    s_lshl_b32 s{sT3}, s{sHL}, 8
    s_add_u32 s{sT2}, s{sT2}, s{sT3}
    s_and_b32 s{sT3}, s2, 3
    s_lshl_b32 s{sT3}, s{sT3}, 6
    s_add_u32 s{sT2}, s{sT2}, s{sT3}
    s_add_u32 s{sT2}, s{sT2}, 1024""")
    validate(list(range(XP, XP + 32)), ex_ld, 80 * CFG["spin"])
    U = 128
    for i in range(8):
        for j in range(4): a(f"v_lshlrev_b32 v{U+8*i+2*j}, 16, v{XP+4*i+j}\nv_and_b32 v{U+8*i+2*j+1}, 0xffff0000, v{XP+4*i+j}")
    for st in (4, 2, 1):
        for i in range(st):
            for r in range(0, 8, 2): a(f"v_pk_add_f32 {vr(U+8*i+r,2)}, {vr(U+8*i+r,2)}, {vr(U+8*(i+st)+r,2)}")
    for j in range(4): a(f"v_cvt_pk_bf16_f32 v{XP+j}, v{U+2*j}, v{U+2*j+1}")
    a(f"""v_lshrrev_b32 v{t2}, 4, v0
    v_lshlrev_b32 v{t2}, 3, v{t2}
    v_sub_u32 v{t1}, v{t1}, v{t2}
    buffer_store_dwordx2 {vr(XP,2)}, v{t1}, {srd_s(R_OUT)}, s{sT2} offen
    buffer_store_dwordx2 {vr(XP+2,2)}, v{t1}, {srd_s(R_OUT)}, s{sT2} offen offset:32""")
    if CFG["stamps"]: a("s_waitcnt vmcnt(0)")
    stamp(a, 12); stamp(a, 8)
    if CFG.get("dbggrp") is not None:
        a(f"""s_waitcnt vmcnt(0)
        s_cmp_lg_u32 s{sW}, 1
        s_cbranch_scc1 {END}
        s_sub_u32 s{sSTAMP}, s{sSTAMP}, 64
        s_mov_b64 exec, 1
        buffer_load_dword v4, off, {srd_s(R_WS)}, s{sSTAMP} offset:{CFG['dbggrp']*8} sc1
        buffer_load_dword v5, off, {srd_s(R_WS)}, s{sSTAMP} sc1
        s_waitcnt vmcnt(0)
        v_sub_u32 v4, v4, v5
        s_lshl_b32 s{sT0}, s{sHL}, 2
        {'s_and_b32 s%d, s2, 7' % sT1 if CFG.get('dbgx') else 's_mov_b32 s%d, s%d' % (sT1, sTB)}
        s_lshl_b32 s{sT1}, s{sT1}, 2
        s_add_u32 s{sT1}, s{sT1}, 16
        buffer_atomic_add v4, off, {srd_s(R_DBG)}, s{sT0} sc1
        buffer_atomic_add v4, off, {srd_s(R_DBG)}, s{sT1} sc1
        buffer_atomic_umax v4, off, {srd_s(R_DBG)}, 0 offset:48 sc1
        s_waitcnt vmcnt(0)""")
    if CFG.get("dbgsum"):
        a(f"""s_waitcnt vmcnt(0)
        s_cmp_lg_u32 s{sW}, {CFG['dbgsum']}
        s_cbranch_scc1 {END}
        s_sub_u32 s{sSTAMP}, s{sSTAMP}, 64
        v_lshlrev_b32 v2, 3, v0
        v_lshlrev_b32 v3, 2, v0
        s_mov_b64 exec, 0x7fff
        buffer_load_dword v4, v2, {srd_s(R_WS)}, s{sSTAMP} offen sc1
        s_waitcnt vmcnt(0)
        {'v_not_b32 v4, v4' if CFG.get('dbgmin') else 's_nop 0'}
        buffer_atomic_umax v4, v3, {srd_s(R_DBG)}, 0 offen sc1
        s_mov_b64 exec, 1
        {'v_not_b32 v4, v4' if not CFG.get('dbgmin') else 's_nop 0'}
        buffer_atomic_umax v4, off, {srd_s(R_DBG)}, 0 offset:60 sc1
        s_waitcnt vmcnt(0)""")
    a(f"{END}:\ns_endpgm")
    for tag, ld, spin in vals:
        a(f"reload{tag}:\ns_mov_b64 exec, -1\ns_add_u32 s{sCNT}, s{sCNT}, 1\ns_cmp_ge_u32 s{sCNT}, {spin}\ns_cbranch_scc1 valok{tag}\n{'s_mov_b32 exec_lo, 0' if CFG.get('light') else 's_nop 0'}\n{'s_mov_b32 exec_hi, 0x80000000' if CFG.get('light') else 's_nop 0'}\ns_sleep {CFG.get('vsleep', 1)}\nloads{tag}:")
        for x in ld: a(x)
        a(f"s_waitcnt vmcnt(0)\ns_branch val{tag}")
    a(f"wo_dma:\ns_sub_u32 s{sDK}, s{sDSL}, s{sLD}\ns_add_u32 s{sDK}, s{sDK}, s{sDMW}")
    for i in range(8): a(dma_unit(sDK, i * 4096, vWOD, R_WO2, sWO, i * 16384).replace(" nt", ""))
    a(f"s_add_u32 s{sWO}, s{sWO}, 0x100000\ns_and_b32 s{sWO}, s{sWO}, 0x3fffff")
    for i, r in enumerate(wo_ret[:-1]): a(f"s_cmp_eq_u32 s{sTD2}, {i}\ns_cbranch_scc1 {r}")
    a(f"s_branch {wo_ret[-1]}")
    a(f"""lvlb:
    s_cmp_eq_u32 s{sSTG}, {HB+2}
    s_cbranch_scc1 lvlb_chk0
    s_cmp_eq_u32 s{sSTG}, s{sACK}
    s_cbranch_scc1 lvlb_wait
    s_add_u32 s{sT0}, s{sACK}, 1
    s_cmp_eq_u32 s{sSTG}, s{sT0}
    s_cbranch_scc1 lvlb_chk1
    s_cmp_gt_u32 s{sSTG}, s{sH2}
    s_cbranch_scc1 lvlb_chk2
    lvlb_load:
    {flag_load(t3, t4)}
    s_branch lvlb_ret
    lvlb_pub:
    {publish(3, t2, t4)}
    s_branch lvlb_ret
    lvlb_wait:
    s_waitcnt vmcnt(0)
    s_branch lvlb_ret
    lvlb_chk0:
    s_cmp_lg_u32 s{sE9}, 0
    s_cbranch_scc1 lvlb_chk
    s_waitcnt vmcnt(0)""")
    a(poll_code("lvlb_chk", "lvlb_ret", f"s_and_b32 s{sT3}, s{sHEAD}, 3\ns_lshl_b32 s{sT3}, s{sT3}, 3\ns_lshl_b32 s{sT3}, 0xff, s{sT3}", 0, 1, 0 if CFG.get("noclr") else 4, t3, t4, 3 * CFG["spin"]))
    a(poll_code("lvlb_chk1", "lvlb_pub", f"s_mov_b32 s{sT3}, -1", 0, 2, 0, t3, t4, 3 * CFG["spin"]))
    a(poll_code("lvlb_chk2", "lvlb_ret", f"s_mov_b32 s{sT3}, 0", 0xff, 3, 0, t3, t4, 9 * CFG["spin"], inv=False))
    for x in ool: a(x)
    for p in range(2):
        mine = [(i, r) for i, (pp, r) in enumerate(rets) if pp == p]
        if not mine: continue
        a(f"rare{p}:")
        a("s_nop 11")
        rowmax(S[p])
        for t in range(2):
            d = R + 2 * t
            a(f"v_add_f32 v{d}, {f32(CFG['bias'])}, v{d}\nv_max_f32 v{d}, 0, v{d}\nv_sub_f32 v{d+1}, 0, v{d}\nv_exp_f32 v{d+1}, v{d+1}")
        for r in range(16):
            d = R + 2 * (r // 8)
            a(f"v_sub_f32 v{S[0]+r}, v{S[0]+r}, v{d}\nv_sub_f32 v{S[1]+r}, v{S[1]+r}, v{d}")
        for r in range(8): a(f"v_sub_f32 v{NEG+r}, v{NEG+r}, v{R+2*(r//4)}")
        for r in range(64): a(f"v_mul_f32 v{O+r}, v{O+r}, v{R+2*((r//8)&1)+1}")
        for t in range(2): a(f"v_mul_f32 v{vL(1-p,t)}, v{vL(1-p,t)}, v{R+2*t+1}")
        for grp in sm_ops(p)[1]:
            for x in grp: a(x)
            a("s_nop 0")
        a("s_nop 1")
        for i, r in mine[:-1]:
            a(f"s_cmp_eq_u32 s{sRET}, {i}\ns_cbranch_scc1 {r}")
        a(f"s_branch {mine[-1][1]}")
    a("code_end:")
    a.kernel_end(K, denorm=CFG["denorm"])

HEADER = """; Fused hedgehog linear attention + MLA causal prefill attention for gfx950 (generated by own script).
; one persistent kernel: K/V projection, hedgehog features, Q projection, flash attention, output projections."""

def build(path, **cfg):
    CFG.clear(); CFG.update(DEF); CFG.update(cfg)
    a = Asm()
    gen_KA(a)
    txt = a.text(HEADER)
    txt, nfix = hazard.autofix(txt)
    if nfix: print("auto nops:", nfix)
    errs, n = hazard.check(txt)
    for e in errs: print("HAZARD", e)
    print(f"{path}: {n} instructions, {len(errs)} hazards, {len(txt)} bytes")
    open(path, "w").write(txt)

if __name__ == "__main__":
    build("k_dbg.s", stamps=True)
    build("cdna_kernels/" + NAME + ".s")
```
